```python
import torch

def _softmax(x, axis=-1):
    return torch.softmax(x, dim=axis)
def _gelu(x):
    return torch.nn.functional.gelu(x, approximate="tanh")
def _silu(x):
    return torch.nn.functional.silu(x)
def _sigmoid(x):
    return torch.sigmoid(x)
def _layernorm(x, axis=-1, eps=1e-5):
    m = x.mean(dim=axis, keepdim=True)
    v = x.var(dim=axis, keepdim=True, unbiased=False)
    return (x - m) / torch.sqrt(v + eps)
def _scatter_add(tgt, idx, src, axis=0):
    return tgt.clone().index_add_(axis, idx, src)
def _segment_sum(src, seg, n):
    out = torch.zeros((n,) + src.shape[1:], dtype=src.dtype)
    return out.index_add_(0, seg, src)
def _pad(x, pw):
    flat = tuple(v for pair in reversed(pw) for v in pair)
    return torch.nn.functional.pad(x, flat)

kernel_name = 'gated_mix__sliding_local_dilated__grouped_kv_mqa__prompt'

def setup_inputs():

    _w = (lambda a: (lambda t: t.to(torch.bfloat16) if t.is_floating_point() else t)(torch.as_tensor(a)))
    def _A_setup():
        B, S, D = 1, 2048, 512
        return {
            "x": _w((lambda *s: torch.randn(*s, dtype=torch.bfloat16) * 0.05)(B, S, D)),
            "wqkv": _w((lambda *s: torch.randn(*s, dtype=torch.bfloat16) * 0.8)(D, 3 * D)),
            "wo": _w((lambda *s: torch.randn(*s, dtype=torch.bfloat16) * 0.05)(D, D)),
        }
    _A_in = _A_setup()

    def _B_setup():
        B, S, D, H = 1, 2048, 512, 32
        Dh = D // H
        return {
            "x": _w((lambda *s: torch.randn(*s, dtype=torch.bfloat16) * 0.05)(B, S, D)),
            "wq": _w((lambda *s: torch.randn(*s, dtype=torch.bfloat16) * 1.6)(D, H * Dh)),
            "wk": _w((lambda *s: torch.randn(*s, dtype=torch.bfloat16) * 1.6)(D, Dh)),
            "wv": _w((lambda *s: torch.randn(*s, dtype=torch.bfloat16) * 0.2)(D, Dh)),
            "wo": _w((lambda *s: torch.randn(*s, dtype=torch.bfloat16) * 0.2)(H * Dh, D)),
        }
    _B_in = _B_setup()

    return {
        "A_x": _A_in["x"],
        "A_wqkv": _A_in["wqkv"],
        "A_wo": _A_in["wo"],
        "B_x": _B_in["x"],
        "B_wq": _B_in["wq"],
        "B_wk": _B_in["wk"],
        "B_wv": _B_in["wv"],
        "B_wo": _B_in["wo"],
        "gate_w": _w((lambda *s: torch.randn(*s, dtype=torch.bfloat16) * 0.05)(512) * 16.0),
    }

def reference(A_x, A_wqkv, A_wo, B_x, B_wq, B_wk, B_wv, B_wo, gate_w):
    def _A_ref(x, wqkv, wo):
        B, S, D = x.shape
        H = 32; Dh = D // H
        W, dil = 8, 2
        qkv = (lambda x, *d: x.permute(*d))((x @ wqkv).reshape(B, S, 3, H, Dh), 2, 0, 3, 1, 4)
        q, k, v = qkv[0], qkv[1], qkv[2]
        scale = Dh ** -0.5
        pos = torch.arange(S)
        off = torch.arange(W) * dil
        idx = pos[:, None] - off[None, :]
        mask = idx >= 0
        idx_c = torch.where(mask, idx, 0).reshape(-1)
        kg = k[:, :, idx_c, :].reshape(B, H, S, W, Dh)
        vg = v[:, :, idx_c, :].reshape(B, H, S, W, Dh)
        logits = torch.einsum("bhsd,bhswd->bhsw", q, kg) * scale
        logits = torch.where(mask[None, None, :, :], logits, -1e9)
        attn = _softmax(logits, axis=-1)
        o = torch.einsum("bhsw,bhswd->bhsd", attn, vg)
        return (lambda x, *d: x.permute(*d))(o, 0, 2, 1, 3).reshape(B, S, D) @ wo

    def _B_ref(x, wq, wk, wv, wo):
        B, S, D = x.shape
        H = 32
        Dh = D // H
        q = (lambda x, *d: x.permute(*d))((x @ wq).reshape(B, S, H, Dh), 0, 2, 1, 3)
        k = x @ wk
        v = x @ wv
        scores = torch.einsum("bhqd,bkd->bhqk", q, k) * (Dh ** -0.5)
        p = _softmax(scores, axis=-1)
        o = torch.einsum("bhqk,bkd->bhqd", p, v)
        return (lambda x, *d: x.permute(*d))(o, 0, 2, 1, 3).reshape(B, S, H * Dh) @ wo

    x = A_x
    g = _sigmoid((x * gate_w).sum(-1, keepdims=True))
    a = _A_ref(x, A_wqkv, A_wo)
    b = _B_ref(x, B_wq, B_wk, B_wv, B_wo)
    return g * a + (1 - g) * b
```

```python
import re

REG_RE = re.compile(r'\b([vas])(\d+)\b|\b([vas])\[(\d+):(\d+)\]')
TRANS = ("v_exp_f32", "v_log_f32", "v_rcp_f32", "v_rsq_f32", "v_sqrt_f32", "v_sin_f32", "v_cos_f32", "v_exp_f16", "v_rcp_iflag_f32")

def regs_of(tok):
    out = []
    for m in REG_RE.finditer(tok):
        if m.group(1):
            out.append((m.group(1), int(m.group(2))))
        else:
            out += [(m.group(3), i) for i in range(int(m.group(4)), int(m.group(5)) + 1)]
    if re.search(r'\bvcc\b', tok): out += [("s", 106), ("s", 107)]
    if re.search(r'\bm0\b', tok): out.append(("m", 0))
    if re.search(r'\bexec\b', tok): out.append(("x", 0))
    return out

def split_ops(s):
    ops, depth, cur = [], 0, ""
    for ch in s:
        if ch == '[': depth += 1
        if ch == ']': depth -= 1
        if ch == ',' and depth == 0:
            ops.append(cur.strip()); cur = ""
        else:
            cur += ch
    if cur.strip(): ops.append(cur.strip())
    return ops

class Ins:
    __slots__ = ("text", "op", "kind", "wr", "rd", "srcC", "passes", "states", "ab")

def classify(text):
    t = text.split(";")[0].strip()
    parts = t.split(None, 1)
    op = parts[0]; rest = parts[1] if len(parts) > 1 else ""
    ops = split_ops(rest)
    I = Ins(); I.text = text; I.op = op; I.wr = []; I.rd = []; I.srcC = []; I.passes = 0; I.states = 1; I.ab = []
    if op == "s_nop":
        I.kind = "nop"; I.states = int(ops[0], 0) + 1; return I
    if op.startswith("v_mfma"):
        I.kind = "mfma"; I.wr = regs_of(ops[0]); I.ab = regs_of(ops[1]) + regs_of(ops[2]); I.srcC = regs_of(ops[3].split()[0]); I.rd = I.ab + I.srcC
        I.passes = 8 if "32x32" in op else 4
        return I
    if op.startswith("v_"):
        I.kind = "valu"
        if op.startswith("v_cmp"):
            I.wr = regs_of(ops[0]); I.rd = sum((regs_of(o) for o in ops[1:]), [])
        elif op.startswith("v_permlane") and "swap" in op:
            I.wr = regs_of(ops[0]) + regs_of(ops[1]); I.rd = list(I.wr); I.kind = "perm"
        elif op == "v_writelane_b32":
            I.wr = regs_of(ops[0]); I.rd = sum((regs_of(o) for o in ops), []); I.kind = "valu"
        elif op in ("v_readfirstlane_b32", "v_readlane_b32"):
            I.wr = regs_of(ops[0]); I.rd = sum((regs_of(o) for o in ops[1:]), []); I.kind = "rdlane"
        elif op.startswith(("v_add_co", "v_sub_co", "v_addc_co", "v_subb_co")):
            I.wr = regs_of(ops[0]) + regs_of(ops[1]); I.rd = sum((regs_of(o) for o in ops[2:]), [])
        else:
            I.wr = regs_of(ops[0]); I.rd = sum((regs_of(o) for o in ops[1:]), [])
            if op.startswith(("v_fmac", "v_dot2c", "v_pk_fmac")) or "UNUSED_PRESERVE" in t: I.rd += I.wr
            if op.startswith("v_cndmask") and len(ops) == 3: I.rd += [("s", 106), ("s", 107)]
            if "dpp" in op or "row_" in t or "quad_perm" in t: I.kind = "dpp"; I.rd += I.wr
        if re.sub(r"_e(32|64)$", "", op) in TRANS: I.kind = "trans"
        return I
    if op.startswith(("buffer_", "global_", "flat_")):
        I.kind = "vmem"
        islds = re.search(r'\blds\b', t) is not None or "load_lds" in op
        if "store" in op or ("atomic" in op):
            I.rd = sum((regs_of(o) for o in ops), [])
            if "atomic" in op and "sc0" in t: I.wr = regs_of(ops[0])
            if "store" in op and ("x4" in op or "x3" in op): I.kind = "wstore"
        elif islds:
            I.rd = sum((regs_of(o) for o in ops), []) + [("m", 0)]; I.kind = "dma"
        else:
            I.wr = regs_of(ops[0]); I.rd = sum((regs_of(o) for o in ops[1:]), [])
        return I
    if op.startswith("ds_"):
        I.kind = "ds"
        if op.startswith(("ds_write", "ds_add_f32", "ds_add_u32", "ds_max", "ds_or_b32")) and "rtn" not in op:
            I.rd = sum((regs_of(o) for o in ops), [])
        else:
            I.wr = regs_of(ops[0]); I.rd = sum((regs_of(o) for o in ops[1:]), [])
        return I
    I.kind = "salu"
    if op.startswith(("s_cmp", "s_cbranch", "s_branch", "s_waitcnt", "s_barrier", "s_endpgm", "s_setprio", "s_sleep", "s_bitcmp")):
        I.rd = sum((regs_of(o) for o in ops), [])
    else:
        I.wr = regs_of(ops[0]) if ops else []; I.rd = sum((regs_of(o) for o in ops[1:]), [])
        if "saveexec" in op: I.wr.append(("x", 0))
    return I

class Asm:
    def __init__(self):
        self.lines = []
        self.hist = []
        self.pos = 0
        self.nops = 0
    def raw(self, s):
        self.lines.append(s)
    def comment(self, s):
        self.lines.append("    ; " + s)
    def label(self, name, flush=True):
        self.lines.append(name + ":")
    def fence(self, n=16):
        self._nop(n)
    def _nop(self, n):
        while n > 0:
            k = min(n, 16)
            self.lines.append(f"    s_nop {k-1}")
            self.pos += k; n -= k; self.nops += 1
    def need(self, I):
        need = 0
        rd = set(I.rd); wr = set(I.wr)
        for (p, J) in reversed(self.hist):
            dist = self.pos - p
            if dist > 24: break
            jw = set(J.wr)
            req = 0
            jvalu = J.kind in ("valu", "trans", "perm", "dpp", "rdlane")
            ivalu = I.kind in ("valu", "trans", "perm", "dpp", "rdlane")
            if jvalu:
                vw = {r for r in jw if r[0] in "va"}
                sw = {r for r in jw if r[0] == "s"}
                if I.kind == "mfma" and vw & rd: req = max(req, 2)
                if I.kind == "perm" and vw & rd: req = max(req, 2)
                if I.kind == "dpp" and vw & rd: req = max(req, 2)
                if I.kind == "rdlane" and vw & rd: req = max(req, 1)
                if J.kind == "trans" and ivalu and I.kind != "trans" and vw & rd: req = max(req, 1)
                if J.kind == "trans" and I.kind in ("vmem", "wstore", "ds", "dma") and vw & rd: req = max(req, 1)
                if sw & rd:
                    if ivalu: req = max(req, 4 if I.kind == "rdlane" else 2)
                    if I.kind in ("vmem", "wstore", "dma"): req = max(req, 5)
                if "sdwa" in J.op and ivalu and vw & (rd | wr): req = max(req, 1)
                if J.op.startswith("v_dot") and I.op != J.op and vw & (rd | wr): req = max(req, 3)
            if J.kind == "mfma":
                big = J.passes == 8
                if I.kind == "mfma":
                    if jw & set(I.ab): req = max(req, 12 if big else 8)
                    c = set(I.srcC)
                    if jw & c:
                        if not (jw == c and I.passes == J.passes): req = max(req, 10 if big else 6)
                    elif jw & wr: req = max(req, 10 if big else 6)
                else:
                    if jw & (rd | wr): req = max(req, 12 if big else 8)
                    if ivalu and set(J.srcC) & wr: req = max(req, 7 if big else 3)
            if J.kind == "salu" and ("m", 0) in jw and I.kind == "dma": req = max(req, 1)
            if J.kind == "wstore" and (ivalu or I.kind in ("ds", "vmem")) and set(J.rd) & wr: req = max(req, 2)
            need = max(need, req - dist)
        return need
    def __call__(self, text):
        for line in text.strip().split("\n"):
            line = line.strip()
            if not line: continue
            if line.startswith(";"):
                self.lines.append("    " + line); continue
            if line.endswith(":"):
                self.label(line[:-1]); continue
            if line.startswith("."):
                self.lines.append(line); continue
            I = classify(line)
            n = self.need(I)
            if n > 0: self._nop(n)
            self.lines.append("    " + line)
            self.pos += I.states
            self.hist.append((self.pos, I))
            if len(self.hist) > 40: self.hist.pop(0)
    def text(self):
        return "\n".join(self.lines) + "\n"

class VM:
    def __init__(self, a): self.a = a; self.q = []
    def issue(self, tag, n=1): self.q += [tag] * n
    def wait(self, tag):
        idx = [i for i, t in enumerate(self.q) if t == tag]
        if not idx: return
        n = len(self.q) - 1 - idx[-1]
        assert n <= 63, n
        self.a(f"s_waitcnt vmcnt({n})")
        self.q = self.q[idx[-1] + 1:]
    def copy(self, a=None):
        v = VM(a or self.a); v.q = list(self.q); return v
```

```python
import sys, struct
from dsl import Asm, VM

NAME = "gated_mix__sliding_local_dilated__grouped_kv_mqa__prompt"
WS_KV = 0x0
WS_KN = 0x20000
WS_G = 0x21000
WS_GO = 0x24000
WS_OA = 0x100000
WS_OB = 0x300000
WS_DBG = 0x800000
WS_PROF = 0x1C00000
WS_SIZE = 0x2000000
L_X = 0
XBLK = 20480
L_RING = 81920
L_WK = 147456
L_WV = L_RING + 3 * 16384
L_T = 98304
L_QB = 147456
L_SP = 131072
LDS_BYTES = 163840
LOG2E = 1.4426950408889634
QSCALE = 0.25 * LOG2E
def f32(x): return "0x%08x" % struct.unpack("<I", struct.pack("<f", x))[0]

STOP = int(sys.argv[2]) if len(sys.argv) > 2 else 99
PROF = len(sys.argv) > 3 and sys.argv[3] == "prof"
OPT = set(sys.argv[4:])

a = Asm()
S_WAVE, S_PB, S_HG, S_P0 = "s3", "s4", "s5", "s6"
SRD_X, SRD_W, SRD_WS, SRD_DBG, SRD_WK, SRD_WV, SRD_GT, SRD_AWO, SRD_BWO, SRD_OUT = [f"s[{8+4*i}:{11+4*i}]" for i in range(10)]
PREG = "v255"
def stamp(i):
    if PROF:
        a(f"""s_memtime s[100:101]
s_waitcnt lgkmcnt(0)
v_writelane_b32 {PREG}, s100, {i}""")
def prof_dump():
    if PROF:
        a(f"""v_lshlrev_b32 v254, 2, v1
s_lshl_b32 s100, s2, 3
s_add_u32 s100, s100, {S_WAVE}
s_lshl_b32 s100, s100, 8
s_add_u32 s100, s100, {WS_PROF}
buffer_store_dword {PREG}, v254, {SRD_WS}, s100 offen
s_waitcnt vmcnt(0)""")

def srd(idx, plo, size):
    b = 8 + 4 * idx
    a(f"""s_mov_b32 s{b}, s{plo}
s_and_b32 s{b+1}, s{plo+1}, 0xffff
s_mov_b32 s{b+2}, {size}
s_mov_b32 s{b+3}, 0x00020000""")

def prologue():
    a(f"""
s_cmp_ge_u32 s2, 256
s_cbranch_scc1 L_end
s_load_dwordx16 s[64:79], s[0:1], 0
s_load_dwordx8 s[80:87], s[0:1], 64
v_and_b32 v1, 63, v0
v_lshrrev_b32 v2, 6, v0
s_and_b32 s48, s2, 7
s_lshr_b32 s49, s2, 3
v_readfirstlane_b32 {S_WAVE}, v2
s_lshr_b32 s50, s48, 1
s_lshl_b32 s50, s50, 3
s_and_b32 s51, s49, 7
s_add_u32 {S_PB}, s50, s51
s_and_b32 s50, s48, 1
s_lshl_b32 s50, s50, 2
s_lshr_b32 s51, s49, 3
s_add_u32 {S_HG}, s50, s51
s_lshl_b32 {S_P0}, {S_PB}, 6
s_and_b32 s90, {S_WAVE}, 3
s_and_b32 s7, {S_HG}, 3
s_lshl_b32 s53, s90, 10
s_mov_b32 s14, 1572864
s_mov_b32 s52, 3072
s_mov_b32 s15, 0x00020000
s_lshl_b32 s54, {S_HG}, 7
s_waitcnt lgkmcnt(0)
""")
    srd(0, 64, 2048 * 1024)
    a(f"""
s_cmp_eq_u32 s90, 3
s_cselect_b32 s12, s72, s66
s_cselect_b32 s13, s73, s67
s_cselect_b32 s14, 524288, s14
s_cselect_b32 s52, 1024, s52
s_cselect_b32 s53, 0, s53
s_and_b32 s13, s13, 0xffff
s_add_u32 s53, s53, s54
""")
    a(f"""
s_cmp_ge_u32 {S_HG}, 4
s_cselect_b32 s74, s76, s74
s_cselect_b32 s75, s77, s75
""")
    srd(4, 74, 16384)
    srd(2, 86, WS_SIZE)
    srd(3, 84, 256)
    srd(6, 80, 1024)
    srd(7, 68, 524288)
    srd(8, 78, 524288)
    srd(9, 82, 2048 * 1024)
    a(f"""
v_lshrrev_b32 v10, 4, v1
v_and_b32 v11, 15, v1
s_lshl_b32 s48, s90, 2
v_add_u32 v12, s48, v10
v_xor_b32 v11, v11, v12
v_lshlrev_b32 v11, 4, v11
v_lshlrev_b32 v10, 10, v10
v_add_u32 v2, v10, v11
s_sub_u32 s49, {S_P0}, 16
s_max_i32 s50, s49, 0
s_add_u32 s49, s49, s48
s_add_u32 s50, s50, s48
s_lshl_b32 s98, s49, 10
s_lshl_b32 s99, s50, 10
s_lshl_b32 s91, s90, 10
""")
    for rel in range(4):
        a(f"""
s_add_u32 s48, s7, {rel}
s_and_b32 s48, s48, 3
s_add_u32 s48, s48, 1
s_lshl_b32 s49, s48, 12
s_add_u32 s{64+rel}, s49, s91
s_lshl_b32 s49, s48, 14
s_add_u32 s{68+rel}, s49, s98
""")
    stamp(0)
    a(f"""
s_cmp_ge_u32 {S_WAVE}, 4
s_cbranch_scc1 L_aux
""")

def broadcast(va, vb):
    a(f"""
v_lshlrev_b32 {va}, 7, v1
v_add_u32 {va}, {WS_GO}, {va}
v_mov_b32 {vb}, 1
s_movk_i32 s57, 0x2000
s_movk_i32 s58, 0x4000
s_movk_i32 s59, 0x6000
buffer_store_dword {vb}, {va}, {SRD_WS}, 0 offen sc1
buffer_store_dword {vb}, {va}, {SRD_WS}, s57 offen sc1
buffer_store_dword {vb}, {va}, {SRD_WS}, s58 offen sc1
buffer_store_dword {vb}, {va}, {SRD_WS}, s59 offen sc1
""")

def PF(lo, hi):
    mask = ((1 << (4*hi)) - 1) ^ ((1 << (4*lo)) - 1)
    a(f"""
s_mov_b32 s48, {mask & 0xffffffff}
s_mov_b32 s49, {mask >> 32}
s_mov_b64 exec, s[48:49]
buffer_load_dword v29, v28, {SRD_W}, s53 offen
s_mov_b64 exec, -1
""")

SCR_D = 3 * XBLK
SCR_G = 2 * XBLK
def g_phase1():
    a.comment("---- L2 prefetch address v28: lane -> stage l>>2, row 4j + (l&3)")
    a(f"""
v_lshrrev_b32 v4, 2, v1
v_lshlrev_b32 v4, 5, v4
v_and_b32 v3, 3, v1
s_and_b32 s48, {S_PB}, 7
s_lshl_b32 s48, s48, 2
v_add3_u32 v4, v4, v3, s48
v_mul_lo_u32 v28, v4, s52
""")
    a(f"""
s_cmp_lt_u32 {S_HG}, 4
s_cbranch_scc1 L_g_nogate
v_lshrrev_b32 v7, 4, v1
v_lshlrev_b32 v7, 4, v7
s_lshl_b32 s50, {S_WAVE}, 8
s_mov_b32 s48, 0x00010001
s_mov_b32 s49, 0x00010001
s_mov_b64 exec, s[48:49]
""")
    for ks in range(4):
        a(f"buffer_load_dwordx4 v[{64+4*ks}:{67+4*ks}], v7, {SRD_GT}, s50 offen offset:{ks*64}")
    a("""
s_mov_b64 exec, -1
L_g_nogate:
""")
    if "nopf" not in OPT: PF(4, 8)
    vmg = VM(a)
    for rel in (1, 2, 3, 4): x_instr(vmg, 1, rel, "x")
    a(f"""
v_and_b32 v10, 31, v1
v_lshrrev_b32 v11, 5, v1
v_add_u32 v12, 16, v10
v_and_b32 v13, 15, v12
v_xor_b32 v13, v13, v11
v_lshlrev_b32 v13, 4, v13
v_lshlrev_b32 v12, 8, v12
v_add_u32 v16, v12, v13
v_xor_b32 v17, 32, v16
v_xor_b32 v18, 64, v16
v_xor_b32 v19, 96, v16
v_xor_b32 v20, 128, v16
v_xor_b32 v21, 160, v16
v_xor_b32 v22, 192, v16
v_xor_b32 v23, 224, v16
v_lshrrev_b32 v10, 4, v1
v_and_b32 v11, 1, v10
v_lshrrev_b32 v10, 1, v10
v_bfe_u32 v12, v1, 2, 2
v_and_b32 v13, 3, v1
v_lshlrev_b32 v14, 3, v10
v_add_u32 v14, v14, v12
v_lshlrev_b32 v14, 7, v14
v_lshrrev_b32 v15, 1, v12
v_lshlrev_b32 v15, 6, v15
v_lshlrev_b32 v11, 5, v11
v_lshlrev_b32 v13, 3, v13
v_add3_u32 v14, v14, v15, v11
v_add_u32 v14, v14, v13
s_lshl_b32 s48, {S_WAVE}, 12
s_add_u32 s48, s48, {L_RING}
v_add_u32 v6, s48, v14
v_xor_b32 v7, 64, v6
""")
    kv_partial()
    XB = lambda buf, mt, ks2: 128 + 32 * buf + 4 * (2 * mt + ks2)
    WB = lambda buf, nt, ks2: 144 + 32 * buf + 4 * (2 * nt + ks2)
    ACC = lambda nt, mt: 64 + 16 * (2 * nt + mt)
    def reads(s):
        buf = s & 1; slot = s & 3; out = []
        for ks2 in range(2):
            k16 = 2 * s + ks2
            for nt in range(2):
                r = WB(buf, nt, ks2)
                for half in range(2):
                    off = slot * 16384 + (16 * ks2 + 4 * half) * 128
                    out.append(f"ds_read_b64_tr_b16 v[{r+2*half}:{r+2*half+1}], v{6+nt} offset:{off}")
            for mt in range(2):
                off = ((k16 >> 3) & 1) * XBLK + mt * 8192
                r = XB(buf, mt, ks2)
                out.append(f"ds_read_b128 v[{r}:{r+3}], v{16+(k16&7)} offset:{off}")
        return out
    def mf(s, ks2, nt, mt):
        buf = s & 1
        d = ACC(nt, mt); w = WB(buf, nt, ks2); x = XB(buf, mt, ks2)
        c = "0" if (s == 0 and ks2 == 0) else f"v[{d}:{d+15}]"
        return f"v_mfma_f32_32x32x16_bf16 v[{d}:{d+15}], v[{w}:{w+3}], v[{x}:{x+3}], {c}"
    def mfmas(s):
        return [mf(s, ks2, nt, mt) for ks2 in range(2) for nt in range(2) for mt in range(2)]
    for s in range(16):
        if s == 4: a("s_waitcnt vmcnt(%d)" % (0 if "nopf" in OPT else 1))
        a(f"s_barrier   ; B_{s}")
        if s in (0, 4, 8, 12, 15): stamp(8 + s)
        if s == 8:
            for i in range(8): a(f"v_add_u32 v{16+i}, {2*XBLK}, v{16+i}")
        if "nopf" not in OPT and s == 0: PF(8, 12)
        if "nopf" not in OPT and s == 4: PF(12, 16)
        R = reads(s); M = mfmas(s - 1) if s > 0 else []
        while R or M:
            if M: a(M.pop(0))
            for _ in range(3):
                if R: a(R.pop(0))
        a("s_waitcnt lgkmcnt(0)")
    a(f"""
v_and_b32 v10, 31, v1
v_lshrrev_b32 v11, 5, v1
v_lshlrev_b32 v10, 5, v10
v_lshlrev_b32 v11, 4, v11
s_mul_i32 s49, {S_WAVE}, 10240
s_add_u32 s49, s49, {L_T + 512}
v_add3_u32 v8, v10, v11, s49
v_lshlrev_b32 v9, 4, v1
v_add_u32 v9, {L_QB}, v9
s_movk_i32 s50, 2560
s_cmp_eq_u32 {S_WAVE}, 3
s_cselect_b64 vcc, -1, 0
s_cselect_b32 s50, 2048, s50
v_cndmask_b32 v8, v8, v9, vcc
v_add_u32 v9, s50, v8
v_add_u32 v10, s50, v9
v_add_u32 v11, s50, v10
""")
    tiles = [(nt, mt) for nt in range(2) for mt in range(2)]
    def pack(n):
        nt, mt = tiles[n]; d = ACC(nt, mt)
        for hh in range(2):
            p = 128 + 4 * (2 * n + hh)
            for e in range(4):
                a(f"v_cvt_pk_bf16_f32 v{p+e}, v{d+8*hh+2*e}, v{d+8*hh+2*e+1}")
            a(f"ds_write_b128 v{8+2*nt+hh}, v[{p}:{p+3}] offset:{mt*1024}")
    for n, (nt, mt) in enumerate(tiles):
        a(mf(15, 0, nt, mt)); a(mf(15, 1, nt, mt))
        if n >= 2: pack(n - 2)
    pack(2); pack(3)
    a("s_waitcnt lgkmcnt(0)")
    stamp(30)
    a("s_barrier   ; B_e")
    stamp(31)

def kv_partial():
    a.comment("---- KV partial: G wave j handles k-block j of rows 16+16*u4+i")
    a(f"""
s_lshl_b32 s48, s7, 4
s_add_u32 s48, s48, 16
v_and_b32 v12, 15, v1
v_lshrrev_b32 v13, 4, v1
v_add_u32 v14, s48, v12
v_lshlrev_b32 v14, 8, v14
v_xor_b32 v15, v12, v13
v_lshlrev_b32 v15, 4, v15
s_mul_i32 s49, {S_WAVE}, {XBLK}
v_add3_u32 v2, v15, v14, s49
v_xor_b32 v3, 64, v2
v_xor_b32 v4, 128, v2
v_xor_b32 v5, 192, v2
v_bfe_u32 v14, v1, 2, 2
v_lshlrev_b32 v15, 3, v13
v_add_u32 v15, v15, v14
v_lshlrev_b32 v15, 5, v15
v_and_b32 v14, 3, v1
v_lshlrev_b32 v14, 3, v14
s_lshl_b32 s49, {S_WAVE}, 12
s_add_u32 s49, s49, {L_WK}
v_add3_u32 v8, v15, v14, s49
v_lshlrev_b32 v9, 4, v1
s_lshl_b32 s49, {S_WAVE}, 10
s_add_u32 s49, s49, {SCR_D}
v_add_u32 v9, s49, v9
v_lshlrev_b32 v10, 2, v1
s_lshl_b32 s49, {S_WAVE}, 8
s_add_u32 s49, s49, {SCR_G}
v_add_u32 v10, s49, v10
""")
    stamp(3)
    a("s_waitcnt vmcnt(4)")
    a("s_barrier   ; B_kv")
    stamp(4)
    for ks in range(4):
        a(f"ds_read_b128 v[{192+4*ks}:{195+4*ks}], v{2+ks}")
        for half in range(2):
            a(f"ds_read_b64_tr_b16 v[{128+4*ks+2*half}:{129+4*ks+2*half}], v8 offset:{ks*1024 + half*128}")
    a(f"s_cmp_ge_u32 {S_HG}, 4")
    a("s_cbranch_scc1 L_kv_V")
    for isV in (False, True):
        for ks in range(4):
            a(f"s_waitcnt lgkmcnt({3*(3-ks)})")
            w = f"v[{128+4*ks}:{131+4*ks}]"; x = f"v[{192+4*ks}:{195+4*ks}]"
            c0 = "0" if ks == 0 else "v[24:27]"; c1 = "0" if ks == 0 else "v[32:35]"
            if isV:
                a(f"v_mfma_f32_16x16x32_bf16 v[32:35], v[{64+4*ks}:{67+4*ks}], {x}, {c1}")
                a(f"v_mfma_f32_16x16x32_bf16 v[24:27], {x}, {w}, {c0}")
            else:
                a(f"v_mfma_f32_16x16x32_bf16 v[24:27], {w}, {x}, {c0}")
        if isV:
            a("ds_write_b32 v10, v32")
        else:
            a("s_branch L_kv_done")
            a("L_kv_V:")
    a("L_kv_done:")
    a.fence(8)
    a("ds_write_b128 v9, v[24:27]")
    a("s_waitcnt lgkmcnt(0)")
    stamp(5)

def kv_final(vm):
    a.comment("---- KV finalize (aux wave 3)")
    a(f"""
s_cmp_lg_u32 s90, 3
s_cbranch_scc1 L_kvf_done
v_lshlrev_b32 v40, 4, v1
v_lshlrev_b32 v41, 2, v1
ds_read_b128 v[44:47], v40 offset:{SCR_D}
ds_read_b128 v[48:51], v40 offset:{SCR_D+1024}
ds_read_b128 v[52:55], v40 offset:{SCR_D+2048}
ds_read_b128 v[56:59], v40 offset:{SCR_D+3072}
ds_read_b32 v60, v41 offset:{SCR_G}
ds_read_b32 v61, v41 offset:{SCR_G+256}
ds_read_b32 v62, v41 offset:{SCR_G+512}
ds_read_b32 v63, v41 offset:{SCR_G+768}
s_lshl_b32 s48, {S_PB}, 1
s_lshr_b32 s49, s7, 1
s_add_u32 s48, s48, s49
s_lshr_b32 s49, s48, 4
s_lshl_b32 s49, s49, 15
s_and_b32 s51, s48, 15
s_lshl_b32 s51, s51, 10
s_add_u32 s49, s49, s51
s_and_b32 s50, s7, 1
v_and_b32 v42, 15, v1
v_bfe_u32 v43, v1, 4, 1
v_lshlrev_b32 v40, 4, v42
v_lshrrev_b32 v41, 5, v1
v_lshlrev_b32 v41, 3, v41
v_add_u32 v41, v41, v40
s_waitcnt lgkmcnt(4)
""")
    for r in range(4):
        a(f"v_add_f32 v{44+r}, v{44+r}, v{48+r}")
        a(f"v_add_f32 v{52+r}, v{52+r}, v{56+r}")
    for r in range(4):
        a(f"v_add_f32 v{44+r}, v{44+r}, v{52+r}")
    a(f"""
s_cmp_ge_u32 {S_HG}, 4
s_cbranch_scc1 L_kvf_V
s_lshl_b32 s51, s50, 8
s_add_u32 s49, s49, s51
v_lshlrev_b32 v43, 9, v43
v_add_u32 v43, v43, v41
s_mov_b32 s51, {f32(QSCALE)}
v_mul_f32 v44, s51, v44
v_mul_f32 v45, s51, v45
v_mul_f32 v46, s51, v46
v_mul_f32 v47, s51, v47
v_cvt_pk_bf16_f32 v48, v44, v45
v_cvt_pk_bf16_f32 v49, v46, v47
buffer_store_dwordx2 v[48:49], v43, {SRD_WS}, s49 offen sc1
v_mul_f32 v52, v44, v44
v_fmac_f32 v52, v45, v45
v_fmac_f32 v52, v46, v46
v_fmac_f32 v52, v47, v47
v_mov_b32 v53, v52
v_permlane32_swap_b32 v52, v53
v_add_f32 v52, v52, v53
v_mov_b32 v53, v52
v_permlane16_swap_b32 v52, v53
v_add_f32 v52, v52, v53
v_max_f32_dpp v52, v52, v52 row_ror:8 row_mask:0xf bank_mask:0xf
v_max_f32_dpp v52, v52, v52 row_ror:4 row_mask:0xf bank_mask:0xf
v_max_f32_dpp v52, v52, v52 row_ror:2 row_mask:0xf bank_mask:0xf
v_max_f32_dpp v52, v52, v52 row_ror:1 row_mask:0xf bank_mask:0xf
s_lshl_b32 s48, {S_PB}, 2
s_add_u32 s48, s48, s7
s_lshl_b32 s48, s48, 2
s_add_u32 s48, s48, {WS_KN}
v_mov_b32 v53, s48
s_mov_b64 exec, 1
buffer_store_dword v52, v53, {SRD_WS}, 0 offen sc1
s_mov_b64 exec, -1
s_branch L_kvf_done
L_kvf_V:
s_lshl_b32 s51, s50, 9
s_add_u32 s49, s49, s51
s_add_u32 s49, s49, 16384
v_lshlrev_b32 v43, 8, v43
v_add_u32 v43, v43, v41
v_cvt_pk_bf16_f32 v48, v44, v45
v_cvt_pk_bf16_f32 v49, v46, v47
buffer_store_dwordx2 v[48:49], v43, {SRD_WS}, s49 offen sc1
s_waitcnt lgkmcnt(0)
v_add_f32 v60, v60, v61
v_add_f32 v62, v62, v63
v_add_f32 v60, v60, v62
v_mul_f32 v60, {f32(-LOG2E)}, v60
v_exp_f32 v60, v60
v_add_f32 v60, 1.0, v60
v_rcp_f32 v60, v60
s_lshl_b32 s48, s7, 4
s_add_u32 s48, s48, {S_P0}
v_add_u32 v53, s48, v42
v_lshlrev_b32 v53, 2, v53
s_mov_b32 s49, {WS_G}
s_mov_b64 exec, 0xffff
buffer_store_dword v60, v53, {SRD_WS}, s49 offen sc1
s_mov_b64 exec, -1
L_kvf_done:
""")
    a.fence(2)

def a_attention():
    a.comment("---- A attention")
    a(f"""
v_and_b32 v10, 15, v1
v_lshrrev_b32 v11, 4, v1
s_mul_i32 s49, s90, 2560
s_lshr_b32 s55, {S_WAVE}, 2
s_lshl_b32 s51, s55, 10
s_add_u32 s49, s49, s51
s_add_u32 s50, s49, {L_T + 4*2560}
v_lshlrev_b32 v12, 6, v10
v_lshlrev_b32 v13, 4, v11
v_add3_u32 v2, v12, v13, s50
s_add_u32 s50, s49, {L_T + 512}
v_lshlrev_b32 v12, 5, v10
v_and_b32 v13, 1, v11
v_lshlrev_b32 v13, 4, v13
v_add3_u32 v3, v12, v13, s50
s_add_u32 s50, s49, {L_T + 8*2560}
v_bfe_u32 v12, v1, 2, 2
v_lshlrev_b32 v12, 6, v12
v_lshlrev_b32 v13, 8, v11
v_and_b32 v14, 3, v1
v_lshlrev_b32 v14, 3, v14
v_add3_u32 v4, v12, v13, v14
v_add_u32 v4, s50, v4
s_mov_b32 s60, 0x55555555
s_mov_b32 s61, 0xaaaaaaaa
s_mov_b32 s62, 0x55555555
s_mov_b32 s63, 0x55555555
s_mov_b32 s88, 0xaaaaaaaa
s_mov_b32 s89, 0xaaaaaaaa
""")
    KR = lambda u: 32 + 4 * u
    QR = lambda u: 40 + 4 * u
    VR = lambda u: 48 + 4 * u
    SR = lambda u: 56 + 4 * u
    PR = lambda u: 64 + 4 * u
    OR = lambda u: 72 + 4 * u
    LR = lambda u: 80 + 4 * u
    MX = lambda u: 88 + 2 * u
    for u in range(2):
        for i in range(4): a(f"v_mov_b32 v{QR(u)+i}, 0")
    for u in range(2):
        a(f"ds_read_b128 v[{KR(u)}:{KR(u)+3}], v2 offset:{u*512}")
    a("s_mov_b64 exec, s[60:61]")
    for u in range(2):
        a(f"ds_read_b128 v[{QR(u)}:{QR(u)+3}], v3 offset:{u*512}")
    a("s_mov_b64 exec, -1")
    for u in range(2):
        a(f"ds_read_b64_tr_b16 v[{VR(u)}:{VR(u)+1}], v4 offset:{u*512}")
        a(f"ds_read_b64_tr_b16 v[{VR(u)+2}:{VR(u)+3}], v4 offset:{u*512+32}")
    a(f"""
v_lshrrev_b32 v12, 1, v10
v_lshlrev_b32 v13, 2, v11
v_sub_u32 v14, v13, v12
v_mov_b32 v15, {f32(-1e30)}
s_add_u32 s50, {S_PB}, s55
s_cmp_eq_u32 s50, 0
s_cselect_b32 s50, 8, 0
""")
    for r in range(4):
        a(f"""
v_add_u32 v12, {r-1}, v14
v_add_u32 v5, {r}, v13
v_cmp_gt_u32 vcc, 8, v12
v_cmp_le_u32 s[56:57], s50, v5
v_cndmask_b32 v{16+r}, v15, 0, vcc
v_cndmask_b32 v{20+r}, v15, v{16+r}, s[56:57]
""")
    for i in range(4): a(f"v_mov_b32 v{24+i}, 0x3f803f80")
    for u in range(2):
        for i in range(4): a(f"v_mov_b32 v{PR(u)+i}, 0")
    a(f"""
s_lshl_b32 s50, s55, 5
s_add_u32 s50, s50, {S_P0}
v_add_u32 v5, s50, v10
v_lshlrev_b32 v5, 10, v5
s_lshl_b32 s50, {S_HG}, 7
s_lshl_b32 s51, s90, 5
s_add_u32 s50, s50, s51
s_add_u32 s50, s50, {WS_OA}
v_lshlrev_b32 v12, 3, v11
v_add3_u32 v5, v5, v12, s50
s_mov_b32 s51, {f32(QSCALE)}
s_waitcnt lgkmcnt(4)
""")
    for u in range(2):
        c = 20 if u == 0 else 16
        a(f"v_mfma_f32_16x16x32_bf16 v[{SR(u)}:{SR(u)+3}], v[{KR(u)}:{KR(u)+3}], v[{QR(u)}:{QR(u)+3}], v[{c}:{c+3}]")
    for u in range(2):
        s = SR(u); m = MX(u)
        a(f"v_max3_f32 v{m}, v{s}, v{s+1}, v{s+2}")
        a(f"v_max_f32 v{m}, v{m}, v{s+3}")
        a(f"v_mov_b32 v{m+1}, v{m}")
    for u in range(2):
        m = MX(u); a(f"v_permlane32_swap_b32 v{m}, v{m+1}")
    for u in range(2):
        m = MX(u); a(f"v_max_f32 v{m}, v{m}, v{m+1}"); a(f"v_mov_b32 v{m+1}, v{m}")
    for u in range(2):
        m = MX(u); a(f"v_permlane16_swap_b32 v{m}, v{m+1}")
    for u in range(2):
        m = MX(u); a(f"v_max_f32 v{m}, v{m}, v{m+1}"); a(f"v_mul_f32 v{m}, s51, v{m}")
    for u in range(2):
        s = SR(u); m = MX(u)
        for r in range(4): a(f"v_fma_f32 v{s+r}, v{s+r}, s51, -v{m}")
    for u in range(2):
        s = SR(u)
        for r in range(4): a(f"v_exp_f32 v{s+r}, v{s+r}")
    a("s_mov_b64 exec, s[62:63]")
    for u in range(2):
        s = SR(u); p = PR(u)
        a(f"v_cvt_pk_bf16_f32 v{p}, v{s}, v{s+1}"); a(f"v_cvt_pk_bf16_f32 v{p+1}, v{s+2}, v{s+3}")
    a("s_mov_b64 exec, s[88:89]")
    for u in range(2):
        s = SR(u); p = PR(u)
        a(f"v_cvt_pk_bf16_f32 v{p+2}, v{s}, v{s+1}"); a(f"v_cvt_pk_bf16_f32 v{p+3}, v{s+2}, v{s+3}")
    a("s_mov_b64 exec, -1")
    a("s_waitcnt lgkmcnt(0)")
    for u in range(2):
        a(f"v_mfma_f32_16x16x32_bf16 v[{LR(u)}:{LR(u)+3}], v[24:27], v[{PR(u)}:{PR(u)+3}], 0")
    for u in range(2):
        a(f"v_mfma_f32_16x16x32_bf16 v[{OR(u)}:{OR(u)+3}], v[{VR(u)}:{VR(u)+3}], v[{PR(u)}:{PR(u)+3}], 0")
    a("s_movk_i32 s50, 0x4000")
    for u in range(2):
        a(f"v_rcp_f32 v{LR(u)}, v{LR(u)}")
    for u in range(2):
        o = OR(u)
        for r in range(4): a(f"v_mul_f32 v{o+r}, v{o+r}, v{LR(u)}")
        a(f"v_cvt_pk_bf16_f32 v{o}, v{o}, v{o+1}"); a(f"v_cvt_pk_bf16_f32 v{o+1}, v{o+2}, v{o+3}")
        a(f"buffer_store_dwordx2 v[{o}:{o+1}], v5, {SRD_WS}, {'s50' if u else '0'} offen sc1")

def aux_phase1():
    a("L_aux:")
    a.fence(4)
    a(f"""
v_lshrrev_b32 v10, 3, v1
v_and_b32 v11, 7, v1
v_bfe_u32 v12, v1, 4, 1
v_lshlrev_b32 v12, 2, v12
v_xor_b32 v11, v11, v12
v_lshlrev_b32 v11, 4, v11
v_mul_lo_u32 v10, v10, s52
v_add3_u32 v5, v10, v11, s53
v_lshlrev_b32 v6, 4, v1
s_lshl_b32 s92, s90, 12
s_add_u32 s92, s92, {L_RING}
s_lshl_b32 s93, s52, 3
s_sub_u32 s94, 0, s93
s_lshl_b32 s96, s90, 12
""")
    aux_body()

def x_instr(vm, kb, rel, tag):
    a(f"s_add_u32 m0, {'s91' if rel == 4 else 's%d' % (64+rel)}, {kb*XBLK}")
    a(f"s_add_u32 s95, {'s99' if rel == 4 else 's%d' % (68+rel)}, {kb*256}")
    a(f"buffer_load_dwordx4 v2, {SRD_X}, s95 offen lds")
    vm.issue(tag)

def issue_w(vm, s):
    slot = s & 3
    for i in range(4):
        a(f"s_add_u32 m0, s92, {slot*16384 + i*1024}")
        a("s_add_u32 s94, s94, s93")
        a(f"buffer_load_dwordx4 v5, {SRD_W}, s94 offen lds")
        vm.issue(f"S{s}")

def aux_body():
    vm = VM(a)
    for kb in range(4):
        x_instr(vm, kb, 0, "KV")
        a(f"s_add_u32 m0, s96, {L_WK}")
        a("s_nop 0")
        a(f"buffer_load_dwordx4 v6, {SRD_WK}, s96 offen offset:{kb*1024} lds")
        vm.issue("KV")
    a(f"""
s_cmp_lg_u32 s90, 3
s_cbranch_scc1 L_aux_norst
s_lshl_b32 s48, s2, 7
s_add_u32 s48, s48, {WS_GO}
v_mov_b32 v8, s48
v_mov_b32 v10, 0
v_mov_b32 v11, 0
s_mov_b64 exec, 1
buffer_store_dwordx2 v[10:11], v8, {SRD_WS}, 0 offen sc1
s_mov_b64 exec, -1
L_aux_norst:
""")
    for rel in (1, 2, 3, 4): x_instr(vm, 0, rel, "S0")
    issue_w(vm, 0)
    a(f"""
v_and_b32 v12, 15, v1
v_lshrrev_b32 v13, 4, v1
v_xor_b32 v15, v12, v13
v_lshlrev_b32 v15, 4, v15
v_lshlrev_b32 v14, 8, v12
v_add_u32 v32, v14, v15
v_xor_b32 v33, 64, v32
v_xor_b32 v34, 128, v32
v_xor_b32 v35, 192, v32
v_bfe_u32 v12, v1, 2, 2
v_and_b32 v14, 3, v1
v_lshlrev_b32 v15, 3, v13
v_add_u32 v15, v15, v12
v_lshlrev_b32 v15, 7, v15
v_lshrrev_b32 v12, 1, v12
s_lshr_b32 s48, s90, 1
v_xor_b32 v12, s48, v12
v_lshlrev_b32 v12, 6, v12
v_lshlrev_b32 v14, 3, v14
v_add3_u32 v15, v15, v12, v14
s_and_b32 s48, s90, 1
s_lshl_b32 s48, s48, 5
s_add_u32 s48, s48, {L_RING + 4096}
v_add_u32 v10, s48, v15
v_add_u32 v11, 4096, v10
""")
    stamp(1)
    vm.wait("KV")
    stamp(3)
    a("s_barrier   ; B_kv")
    for s in (1, 2, 3): issue_w(vm, s)
    HX = lambda b: 72 + 12 * b
    def hreads(s):
        b = s & 1; slot = s & 3
        a(f"ds_read_b128 v[{HX(b)}:{HX(b)+3}], v{32+(s&3)} offset:{(s>>2)*XBLK}")
        for t in range(2):
            for half in range(2):
                r = HX(b) + 4 + 4 * t + 2 * half
                a(f"ds_read_b64_tr_b16 v[{r}:{r+1}], v{10+t} offset:{slot*16384 + half*512}")
    def hmfma(s):
        b = s & 1
        for t in range(2):
            w = HX(b) + 4 + 4 * t
            c = "0" if s == 0 else f"v[{64+4*t}:{67+4*t}]"
            a(f"v_mfma_f32_16x16x32_bf16 v[{64+4*t}:{67+4*t}], v[{w}:{w+3}], v[{HX(b)}:{HX(b)+3}], {c}")
    for s in range(16):
        vm.wait(f"S{s}")
        if s in (0, 4, 8, 12, 15): stamp(40 + s)
        a(f"s_barrier   ; B_{s}")
        hreads(s)
        if s > 0: hmfma(s - 1)
        if s == 4:
            a(f"""
s_cmp_lg_u32 s90, 3
s_cbranch_scc1 L_aux_noP
s_and_b32 s48, s2, 3
s_lshl_b32 s48, s48, 6
v_mov_b32 v12, s48
v_mov_b32 v36, 1
s_mov_b64 exec, 1
buffer_atomic_add v36, v12, {SRD_DBG}, 0 offen sc0 sc1
s_mov_b64 exec, -1
L_aux_noP:
""")
        if s == 7:
            a(f"""
s_cmp_lg_u32 s90, 3
s_cbranch_scc1 L_aux_noP2
v_readfirstlane_b32 s48, v36
s_cmp_lg_u32 s48, 63
s_cbranch_scc1 L_aux_noP2
v_mov_b32 v12, 4
v_mov_b32 v36, 1
s_mov_b64 exec, 1
buffer_atomic_add v36, v12, {SRD_DBG}, 0 offen sc0 sc1
s_mov_b64 exec, -1
s_waitcnt vmcnt(0)
v_readfirstlane_b32 s48, v36
s_cmp_lg_u32 s48, 3
s_cbranch_scc1 L_aux_noP2
""")
            broadcast("v12", "v13")
            a("L_aux_noP2:")
            a.fence(2)
        if 1 <= s < 9: x_instr(vm, 2 + ((s - 1) >> 2), 1 + ((s - 1) & 3), f"S{8 + ((s - 1) >> 2) * 4}")
        if s == 0: kv_final(vm)
        if 1 <= s and s + 3 < 16: issue_w(vm, s + 3)
        a("s_waitcnt lgkmcnt(0)")
    hmfma(15)
    a(f"""
v_and_b32 v12, 15, v1
v_lshlrev_b32 v12, 5, v12
v_bfe_u32 v13, v1, 4, 1
v_lshlrev_b32 v13, 4, v13
v_lshrrev_b32 v14, 5, v1
v_lshlrev_b32 v14, 3, v14
v_add3_u32 v12, v12, v13, v14
s_mul_i32 s48, s90, 2560
s_add_u32 s48, s48, {L_T + 4*2560}
v_add_u32 v12, s48, v12
v_cvt_pk_bf16_f32 v72, v64, v65
v_cvt_pk_bf16_f32 v73, v66, v67
v_cvt_pk_bf16_f32 v74, v68, v69
v_cvt_pk_bf16_f32 v75, v70, v71
ds_write_b64 v12, v[72:73]
ds_write_b64 v12, v[74:75] offset:{4*2560}
s_waitcnt lgkmcnt(0)
s_barrier   ; B_e
s_branch L_join1
""")


L_MISC = L_T
L_RED = 0
L_FLAG = 16384
L_OB = 65536
C_, SA, SB, O_, P_, KF, VF, ACCA = 32, 48, 64, 80, 96, 104, 112, 128
SPIN_MAX = 1 << 22

def poll_go():
    a(f"""
s_lshl_b32 s48, s2, 7
s_add_u32 s48, s48, {WS_GO}
v_mov_b32 v8, s48
s_mov_b32 s49, 0
L_poll_go:
buffer_load_dword v9, v8, {SRD_WS}, 0 offen sc1
s_add_u32 s49, s49, 1
s_waitcnt vmcnt(0)
v_readfirstlane_b32 s48, v9
s_cmp_ge_u32 s49, {SPIN_MAX}
s_cbranch_scc1 L_poll_go_done
s_cmp_eq_u32 s48, 1
s_cbranch_scc0 L_poll_go
L_poll_go_done:
""")

def kv_dma(vm, c, nw, tag):
    n = 32 // nw
    for i in range(n):
        a(f"s_add_u32 m0, s72, {c*32768}")
        a(f"s_add_u32 s95, s72, {WS_KV + c*32768}")
        a(f"buffer_load_dwordx4 v6, {SRD_WS}, s95 offen offset:{i*1024} sc1 lds") if i < 4 else None
        if i >= 4:
            a(f"buffer_load_dwordx4 v7, {SRD_WS}, s95 offen offset:{(i-4)*1024} sc1 lds")
        vm.issue(tag)

def wo_dma(srdw, half, dst):
    for i in range(4):
        a(f"s_add_u32 m0, s73, {dst + i*1024}")
        a(f"s_add_u32 s95, s74, {half*262144 + i*8192}")
        a(f"buffer_load_dwordx4 v10, {srdw}, s95 offen lds")

def phase2_start():
    vm = VM(a)
    a(f"""
s_cmp_lt_u32 {S_WAVE}, 4
s_cbranch_scc1 L_p2_noaux
""")
    stamp(33)
    poll_go()
    if "inv" in OPT: a("buffer_inv sc1\ns_waitcnt vmcnt(0)")
    if "slp" in OPT:
        for _ in range(40): a("s_sleep 127")
    stamp(34)
    a(f"""
v_lshlrev_b32 v6, 4, v1
s_lshl_b32 s72, s90, 13
v_lshlrev_b32 v8, 3, v1
s_mov_b32 s48, {WS_KN}
""")
    for c in range(3):
        for i in range(8):
            a(f"s_add_u32 m0, s72, {c*32768 + (i>>2)*4096}")
            a(f"s_add_u32 s95, s72, {WS_KV + c*32768 + (i>>2)*4096}")
            a(f"buffer_load_dwordx4 v6, {SRD_WS}, s95 offen offset:{(i&3)*1024} sc1 lds")
            vm.issue(f"C{c}")
        if c == 0:
            a(f"buffer_load_dwordx2 v[92:93], v8, {SRD_WS}, s48 offen sc1")
            vm.issue("C0")
    a("L_p2_noaux:")
    a.fence(2)
    a_attention()
    vm.issue("oA", 2)
    stamp(32)
    a(f"""
v_lshlrev_b32 v2, 4, v1
s_lshl_b32 s48, {S_WAVE}, 10
s_add_u32 s48, s48, {L_QB}
v_add_u32 v3, s48, v2
ds_read_b128 v[4:7], v3
v_and_b32 v8, 31, v1
v_lshrrev_b32 v9, 5, v1
v_lshlrev_b32 v3, 4, v8
v_lshlrev_b32 v9, 8, v9
v_add_u32 v3, v3, v9
v_add_u32 v3, 16384, v3
v_and_b32 v9, 27, v8
v_cmp_eq_u32 vcc, 16, v9
v_mov_b32 v9, 0x3f803f80
v_cndmask_b32 v{VF}, 0, v9, vcc
""")
    for i in range(1, 16): a(f"v_mov_b32 v{VF+i}, v{VF}")
    a(f"""
v_lshrrev_b32 v10, 3, v1
v_and_b32 v11, 7, v1
v_bfe_u32 v12, v1, 4, 1
v_lshlrev_b32 v12, 2, v12
v_xor_b32 v11, v11, v12
v_lshlrev_b32 v11, 4, v11
v_lshlrev_b32 v10, 10, v10
v_add_u32 v10, v10, v11
s_lshl_b32 s73, {S_WAVE}, 12
s_lshl_b32 s74, {S_WAVE}, 15
s_lshl_b32 s48, {S_HG}, 7
s_add_u32 s74, s74, s48
s_mov_b32 s76, 0x0000ffff
s_mov_b32 s77, 0x0000ffff
s_cmp_lt_u32 {S_WAVE}, 4
s_cbranch_scc1 L_p2_noaux2
""")
    if "w0" in OPT: a("s_waitcnt vmcnt(0)")
    else: vm.wait("C0")
    a(f"""
v_max_f32 v92, v92, v93
v_mov_b32 v93, v92
v_permlane32_swap_b32 v92, v93
v_max_f32 v92, v92, v93
v_mov_b32 v93, v92
v_permlane16_swap_b32 v92, v93
v_max_f32 v92, v92, v93
v_max_f32_dpp v92, v92, v92 row_ror:8 row_mask:0xf bank_mask:0xf
v_max_f32_dpp v92, v92, v92 row_ror:4 row_mask:0xf bank_mask:0xf
v_max_f32_dpp v92, v92, v92 row_ror:2 row_mask:0xf bank_mask:0xf
v_max_f32_dpp v92, v92, v92 row_ror:1 row_mask:0xf bank_mask:0xf
v_mov_b32 v93, {L_MISC + 30720}
ds_write_b32 v93, v92
L_p2_noaux2:
s_waitcnt lgkmcnt(0)
v_mov_b32 v12, 0
v_dot2_f32_bf16 v12, v4, v4, v12
v_dot2_f32_bf16 v12, v5, v5, v12
v_dot2_f32_bf16 v12, v6, v6, v12
v_dot2_f32_bf16 v12, v7, v7, v12
v_mov_b32 v13, v12
v_permlane32_swap_b32 v12, v13
v_add_f32 v12, v12, v13
v_mov_b32 v13, {L_MISC + 30720}
""")
    stamp(35)
    a("s_barrier   ; B_p2")
    stamp(36)
    if "dump" in OPT:
        a(f"""
v_lshlrev_b32 v144, 4, v1
s_lshl_b32 s48, {S_WAVE}, 12
v_add_u32 v144, s48, v144
s_lshl_b32 s49, s2, 16
s_add_u32 s49, s49, {WS_DBG}
ds_read_b128 v[148:151], v144
ds_read_b128 v[152:155], v144 offset:1024
ds_read_b128 v[156:159], v144 offset:2048
ds_read_b128 v[160:163], v144 offset:3072
s_waitcnt lgkmcnt(0)
buffer_store_dwordx4 v[148:151], v144, {SRD_WS}, s49 offen
buffer_store_dwordx4 v[152:155], v144, {SRD_WS}, s49 offen offset:1024
buffer_store_dwordx4 v[156:159], v144, {SRD_WS}, s49 offen offset:2048
buffer_store_dwordx4 v[160:163], v144, {SRD_WS}, s49 offen offset:3072
v_lshlrev_b32 v144, 4, v1
s_lshl_b32 s48, {S_WAVE}, 10
s_add_u32 s48, s48, 32768
v_add_u32 v144, s48, v144
buffer_store_dwordx4 v[4:7], v144, {SRD_WS}, s49 offen
s_waitcnt vmcnt(0)
""")
    a(f"""
ds_read_b32 v14, v13
ds_read_b128 v[{KF}:{KF+3}], v2
ds_read_b128 v[{KF+4}:{KF+7}], v2 offset:1024
s_mov_b64 exec, s[76:77]
ds_read_b128 v[{VF}:{VF+3}], v3
ds_read_b128 v[{VF+4}:{VF+7}], v3 offset:512
s_mov_b64 exec, -1
""")
    a(f"""
v_lshrrev_b32 v16, 3, v1
v_and_b32 v17, 7, v1
v_lshlrev_b32 v17, 4, v17
s_lshl_b32 s48, {S_WAVE}, 3
s_add_u32 s48, s48, {S_P0}
v_add_u32 v16, s48, v16
v_lshlrev_b32 v16, 10, v16
s_lshl_b32 s49, {S_HG}, 7
s_add_u32 s49, s49, {WS_OB}
v_add_u32 v16, v16, v17
v_mov_b32 v20, -1
v_mov_b32 v21, -1
v_mov_b32 v22, -1
v_mov_b32 v23, -1
buffer_store_dwordx4 v[20:23], v16, {SRD_WS}, s49 offen sc1
s_and_b32 s48, {S_WAVE}, 1
s_lshl_b32 s48, s48, 5
s_add_u32 s75, s48, {S_P0}
v_add_u32 v15, s75, v8
v_lshlrev_b32 v15, 2, v15
s_mov_b32 s48, {WS_G}
buffer_load_dword v9, v15, {SRD_WS}, s48 offen sc1
""")
    wo_dma(SRD_AWO, 0, L_SP)
    a(f"""
s_waitcnt lgkmcnt(4)
v_mul_f32 v12, v12, v14
v_sqrt_f32 v12, v12
v_sub_f32 v{C_}, 0, v12
""")
    for i in range(1, 16): a(f"v_mov_b32 v{C_+i}, v{C_}")
    a("s_waitcnt lgkmcnt(3)")
    a(f"v_mfma_f32_32x32x16_bf16 v[{SA}:{SA+15}], v[{KF}:{KF+3}], v[4:7], v[{C_}:{C_+15}]")
    a(f"ds_read_b128 v[{KF}:{KF+3}], v2 offset:2048")

def tile(t, first=False):
    S = SA if t % 2 == 0 else SB
    Sn = SB if t % 2 == 0 else SA
    def koff(x): return (x & 15) * 1024 + (x >> 4) * 32768
    kb = KF + 4 * ((t + 1) & 1)
    vb = VF + 8 * (t & 1)
    vbp = VF + 8 * ((t + 1) & 1)
    if first: a("s_waitcnt lgkmcnt(3)")
    a(f"v_mfma_f32_32x32x16_bf16 v[{Sn}:{Sn+15}], v[{kb}:{kb+3}], v[4:7], v[{C_}:{C_+15}]")
    a(f"ds_read_b128 v[{kb}:{kb+3}], v2 offset:{koff(t+3)}")
    for i in range(4): a(f"v_exp_f32 v{S+i}, v{S+i}")
    a("s_mov_b64 exec, s[76:77]")
    a(f"ds_read_b128 v[{vbp}:{vbp+3}], v3 offset:{koff(t+1)}")
    a(f"ds_read_b128 v[{vbp+4}:{vbp+7}], v3 offset:{koff(t+1)+512}")
    a("s_mov_b64 exec, -1")
    for i in range(4, 8): a(f"v_exp_f32 v{S+i}, v{S+i}")
    for i in range(4): a(f"v_cvt_pk_bf16_f32 v{P_+i}, v{S+2*i}, v{S+2*i+1}")
    a("s_waitcnt lgkmcnt(3)")
    for i in range(8, 10): a(f"v_exp_f32 v{S+i}, v{S+i}")
    c = "0" if first else f"v[{O_}:{O_+15}]"
    a(f"v_mfma_f32_32x32x16_bf16 v[{O_}:{O_+15}], v[{vb}:{vb+3}], v[{P_}:{P_+3}], {c}")
    for i in range(10, 16): a(f"v_exp_f32 v{S+i}, v{S+i}")
    for i in range(4, 8): a(f"v_cvt_pk_bf16_f32 v{P_+i}, v{S+2*i}, v{S+2*i+1}")
    a(f"v_mfma_f32_32x32x16_bf16 v[{O_}:{O_+15}], v[{vb+4}:{vb+7}], v[{P_+4}:{P_+7}], v[{O_}:{O_+15}]")

def apart(lbl):
    a.comment("---- A out-proj partial")
    a(f"""
s_lshl_b32 s48, {S_PB}, 0
v_and_b32 v144, 7, v1
""")
    a(f"""
v_lshrrev_b32 v145, 2, v144
v_and_b32 v146, 3, v144
v_lshlrev_b32 v146, 6, v146
s_lshr_b32 s48, {S_PB}, 3
s_lshl_b32 s48, s48, 1
s_and_b32 s49, {S_PB}, 7
s_lshl_b32 s49, s49, 3
s_add_u32 s48, s48, s49
v_add3_u32 v145, v145, v146, s48
v_lshlrev_b32 v145, 7, v145
s_mov_b32 s49, 0
s_mov_b32 s50, {WS_GO + 4}
L_ap_poll{lbl}:
buffer_load_dword v146, v145, {SRD_WS}, s50 offen sc1
s_add_u32 s49, s49, 1
s_waitcnt vmcnt(0)
v_cmp_ne_u32 vcc, 1, v146
s_cmp_ge_u32 s49, {SPIN_MAX}
s_cbranch_scc1 L_ap_go{lbl}
s_cbranch_vccnz L_ap_poll{lbl}
L_ap_go{lbl}:
v_add_u32 v144, s75, v8
v_lshlrev_b32 v144, 10, v144
v_lshrrev_b32 v145, 5, v1
v_lshlrev_b32 v145, 4, v145
s_lshr_b32 s48, {S_WAVE}, 2
s_lshl_b32 s48, s48, 9
s_add_u32 s48, s48, {WS_OA}
v_add_u32 v144, v144, v145
""")
    for kk in range(16):
        a(f"buffer_load_dwordx4 v[{180+4*kk}:{183+4*kk}], v144, {SRD_WS}, s48 offen offset:{kk*32} sc1")
    wo_frag_addr("v145", "s78")
    for g in range(2):
        for kk in range(8 * g, 8 * g + 8):
            for half in range(2):
                r = 148 + 4 * (kk & 7) + 2 * half
                a(f"ds_read_b64_tr_b16 v[{r}:{r+1}], v145 offset:{kk*2048 + half*1024}")
        a(f"s_waitcnt vmcnt({8 - 8*g}) lgkmcnt(0)")
        for kk in range(8 * g, 8 * g + 8):
            w = 148 + 4 * (kk & 7)
            c = "0" if kk == 0 else f"v[{ACCA}:{ACCA+15}]"
            a(f"v_mfma_f32_32x32x16_bf16 v[{ACCA}:{ACCA+15}], v[{w}:{w+3}], v[{180+4*kk}:{183+4*kk}], {c}")
    for i in range(16): a(f"v_mul_f32 v{ACCA+i}, v9, v{ACCA+i}")

def wo_frag_addr(vd, sbase):
    a(f"""
v_lshrrev_b32 v146, 4, v1
v_and_b32 v147, 1, v146
v_lshrrev_b32 v146, 1, v146
v_bfe_u32 {vd}, v1, 2, 2
v_lshlrev_b32 v146, 2, v146
v_add_u32 v146, v146, {vd}
v_lshlrev_b32 v146, 7, v146
v_lshrrev_b32 {vd}, 1, {vd}
s_bfe_u32 s49, {S_WAVE}, 0x10001
v_xor_b32 {vd}, s49, {vd}
v_lshlrev_b32 {vd}, 6, {vd}
v_lshlrev_b32 v147, 5, v147
v_add3_u32 {vd}, {vd}, v146, v147
v_and_b32 v146, 3, v1
v_lshlrev_b32 v146, 3, v146
v_add3_u32 {vd}, {vd}, v146, {sbase}
""")

def phase2_loop():
    NCH = 1 if "c1" in OPT else 2 if "c2" in OPT else 3 if "c3" in OPT else 4
    for c in range(NCH):
        for t in range(16):
            if t == 13 and c < 3:
                a("s_waitcnt vmcnt(0)")
                a(f"s_barrier   ; B_c{c+1}")
                if c == 0:
                    a(f"""
s_cmp_lg_u32 {S_WAVE}, 0
s_cbranch_scc1 L_nopub
s_lshl_b32 s48, s2, 7
s_add_u32 s48, s48, {WS_GO + 4}
v_mov_b32 v144, s48
v_mov_b32 v145, 1
s_mov_b64 exec, 1
buffer_store_dword v145, v144, {SRD_WS}, 0 offen sc1
s_mov_b64 exec, -1
L_nopub:
v_lshlrev_b32 v144, 4, v1
""")
                    for i in range(4):
                        a(f"s_add_u32 m0, s73, {3*32768}")
                        a(f"s_add_u32 s95, s73, {WS_KV + 3*32768}")
                        a(f"buffer_load_dwordx4 v144, {SRD_WS}, s95 offen offset:{i*1024} sc1 lds")
                if c == 1:
                    wo_dma(SRD_AWO, 1, 0)
                    a(f"""
s_cmp_ge_u32 {S_WAVE}, 4
s_cbranch_scc1 L_ap_skip0
s_mov_b32 s78, {L_SP}
""")
                    apart(0)
                    a("L_ap_skip0:")
                    a.fence(2)
                if c == 2:
                    wo_dma(SRD_BWO, 0, L_SP)
                    wo_dma(SRD_BWO, 1, 32768)
                    a(f"""
s_cmp_lt_u32 {S_WAVE}, 4
s_cbranch_scc1 L_ap_skip1
s_mov_b32 s78, 0
""")
                    apart(1)
                    a("L_ap_skip1:")
                    a.fence(2)
            tile(t, first=(c == 0 and t == 0))
        stamp(37 + c)
        if c < 3:
            a("v_add_u32 v2, 0x8000, v2")
            a("v_add_u32 v3, 0x8000, v3")

def fallback():
    a.comment("---- softmax safety check: l (v[O+8]) must be >= 2^-60, else redo with the true max (slow path from global K/V)")
    a.fence(12)
    a(f"""
s_mov_b32 s48, 0x21800000
v_cmp_nle_f32 vcc, s48, v{O_+8}
s_cbranch_vccz L_fb_done
v_lshlrev_b32 v2, 4, v1
v_and_b32 v3, 0x3fff, v3
v_mov_b32 v12, {f32(-3.0e38)}
s_mov_b32 s48, 0
L_fb1:
s_lshr_b32 s49, s48, 4
s_lshl_b32 s49, s49, 15
s_and_b32 s50, s48, 15
s_lshl_b32 s50, s50, 10
s_add_u32 s49, s49, s50
buffer_load_dwordx4 v[{KF}:{KF+3}], v2, {SRD_WS}, s49 offen sc1
s_waitcnt vmcnt(0)
v_mfma_f32_32x32x16_bf16 v[{SA}:{SA+15}], v[{KF}:{KF+3}], v[4:7], 0
""")
    for i in range(8): a(f"v_max3_f32 v12, v12, v{SA+2*i}, v{SA+2*i+1}")
    a(f"""
s_add_u32 s48, s48, 1
s_cmp_lt_u32 s48, 64
s_cbranch_scc1 L_fb1
v_mov_b32 v13, v12
v_permlane32_swap_b32 v12, v13
v_max_f32 v12, v12, v13
v_sub_f32 v{C_}, 0, v12
""")
    for i in range(1, 16): a(f"v_mov_b32 v{C_+i}, v{C_}")
    for i in range(16): a(f"v_mov_b32 v{O_+i}, 0")
    a(f"""
s_mov_b32 s48, 0
L_fb2:
s_lshr_b32 s49, s48, 4
s_lshl_b32 s49, s49, 15
s_and_b32 s50, s48, 15
s_lshl_b32 s50, s50, 10
s_add_u32 s49, s49, s50
s_add_u32 s50, s49, 16384
buffer_load_dwordx4 v[{KF}:{KF+3}], v2, {SRD_WS}, s49 offen sc1
s_mov_b64 exec, s[76:77]
buffer_load_dwordx4 v[{VF}:{VF+3}], v3, {SRD_WS}, s50 offen sc1
buffer_load_dwordx4 v[{VF+4}:{VF+7}], v3, {SRD_WS}, s50 offen offset:512 sc1
s_mov_b64 exec, -1
s_waitcnt vmcnt(0)
v_mfma_f32_32x32x16_bf16 v[{SA}:{SA+15}], v[{KF}:{KF+3}], v[4:7], v[{C_}:{C_+15}]
""")
    for i in range(16): a(f"v_exp_f32 v{SA+i}, v{SA+i}")
    for i in range(8): a(f"v_cvt_pk_bf16_f32 v{P_+i}, v{SA+2*i}, v{SA+2*i+1}")
    a(f"""
v_mfma_f32_32x32x16_bf16 v[{O_}:{O_+15}], v[{VF}:{VF+3}], v[{P_}:{P_+3}], v[{O_}:{O_+15}]
v_mfma_f32_32x32x16_bf16 v[{O_}:{O_+15}], v[{VF+4}:{VF+7}], v[{P_+4}:{P_+7}], v[{O_}:{O_+15}]
s_add_u32 s48, s48, 1
s_cmp_lt_u32 s48, 64
s_cbranch_scc1 L_fb2
""")
    a.fence(12)
    a("L_fb_done:")

def phase3():
    a.comment("---- normalise + publish oB'")
    a(f"""
v_rcp_f32 v12, v{O_+8}
v_sub_f32 v13, 1.0, v9
v_add_u32 v14, s75, v8
v_lshlrev_b32 v14, 10, v14
v_lshrrev_b32 v15, 5, v1
v_lshlrev_b32 v15, 4, v15
v_add_u32 v14, v14, v15
s_lshl_b32 s48, {S_HG}, 7
s_lshr_b32 s49, {S_WAVE}, 1
s_lshl_b32 s49, s49, 5
s_add_u32 s48, s48, s49
s_add_u32 s48, s48, {WS_OB}
v_mul_f32 v12, v12, v13
""")
    for i in range(8): a(f"v_mul_f32 v{O_+i}, v{O_+i}, v12")
    for i in range(4): a(f"v_cvt_pk_bf16_f32 v{P_+i}, v{O_+2*i}, v{O_+2*i+1}")
    a(f"buffer_store_dwordx4 v[{P_}:{P_+3}], v14, {SRD_WS}, s48 offen sc1")
    stamp(41)
    a(f"""
v_lshrrev_b32 v16, 4, v1
v_and_b32 v17, 15, v1
s_and_b32 s48, {S_WAVE}, 3
s_lshl_b32 s48, s48, 2
v_add_u32 v18, s48, v16
v_xor_b32 v17, v17, v18
v_lshlrev_b32 v17, 4, v17
v_lshlrev_b32 v16, 10, v16
v_add_u32 v16, v16, v17
s_lshl_b32 s79, {S_WAVE}, 10
s_add_u32 s80, s79, {L_OB}
s_lshl_b32 s81, {S_WAVE}, 2
s_add_u32 s81, s81, {S_P0}
s_lshl_b32 s81, s81, 10
s_add_u32 s81, s81, {WS_OB}
s_and_b32 s48, {S_WAVE}, 1
s_lshl_b32 s48, s48, 5
v_add_u32 v17, s48, v8
v_and_b32 v18, 15, v17
v_lshrrev_b32 v19, 5, v1
v_xor_b32 v18, v18, v19
v_lshlrev_b32 v18, 4, v18
v_lshlrev_b32 v17, 8, v17
s_lshr_b32 s48, {S_WAVE}, 2
s_lshl_b32 s48, s48, 15
s_add_u32 s48, s48, {L_OB}
v_add3_u32 v20, v17, v18, s48
""")
    for j in range(1, 8): a(f"v_xor_b32 v{20+j}, {32*j}, v20")
    a(f"""
s_mov_b32 s78, {L_SP}
s_cmp_ge_u32 {S_WAVE}, 4
s_cselect_b32 s78, 32768, s78
""")
    wo_frag_addr("v28", "s78")
    a(f"""
s_cmp_lg_u32 {S_WAVE}, 0
s_cbranch_scc1 L_t_nopoll
v_and_b32 v12, 1, v1
v_lshlrev_b32 v12, 5, v12
v_add_u32 v12, {S_P0}, v12
v_add_u32 v12, 31, v12
v_lshlrev_b32 v12, 10, v12
v_lshrrev_b32 v13, 1, v1
v_lshlrev_b32 v13, 5, v13
v_add3_u32 v12, v12, v13, 28
s_mov_b32 s48, {WS_OB}
s_mov_b32 s49, 0
v_lshlrev_b32 v14, 2, v1
v_mov_b32 v15, 0
L_t_poll:
buffer_load_dword v13, v12, {SRD_WS}, s48 offen sc1
s_add_u32 s49, s49, 1
s_waitcnt vmcnt(0)
v_cmp_eq_u32 vcc, -1, v13
s_cmp_ge_u32 s49, {SPIN_MAX}
s_cbranch_scc1 L_t_nopoll
s_cbranch_vccnz L_t_poll
L_t_nopoll:
s_waitcnt vmcnt(0) lgkmcnt(0)
s_mov_b32 s82, 0
""")
    stamp(42)
    a("s_barrier   ; B_5")
    stamp(43)
    a(f"""
s_cmp_lg_u32 {S_WAVE}, 0
s_cbranch_scc1 L_t_retry
ds_write_b32 v14, v15 offset:{L_FLAG}
L_t_retry:
""")
    for kb in range(4):
        for n in range(2):
            a(f"s_add_u32 m0, s80, {kb*16384 + n*8192}")
            a(f"s_add_u32 s95, s81, {n*32768 + kb*256}")
            a(f"buffer_load_dwordx4 v16, {SRD_WS}, s95 offen sc1 lds")
    for kk in range(16):
        for half in range(2):
            r = 144 + 4 * kk + 2 * half
            a(f"ds_read_b64_tr_b16 v[{r}:{r+1}], v28 offset:{kk*2048 + half*1024}")
        if kk == 6: a("s_waitcnt lgkmcnt(0)")
        if kk == 13: a("s_waitcnt lgkmcnt(0)")
    a("s_waitcnt vmcnt(0) lgkmcnt(0)")
    a("s_barrier   ; B_6")
    stamp(44)
    OF = lambda kk: 32 + 4 * kk
    ACC2 = 208
    for kk in range(8):
        a(f"ds_read_b128 v[{OF(kk)}:{OF(kk)+3}], v{20+(kk&7)} offset:{(kk>>3)*16384}")
    a("v_mov_b32 v12, 0")
    for kk in range(16):
        a(f"s_waitcnt lgkmcnt({min(7, 15-kk)})")
        c = f"v[{ACCA}:{ACCA+15}]" if kk == 0 else f"v[{ACC2}:{ACC2+15}]"
        a(f"v_mfma_f32_32x32x16_bf16 v[{ACC2}:{ACC2+15}], v[{144+4*kk}:{147+4*kk}], v[{OF(kk)}:{OF(kk)+3}], {c}")
        if kk + 8 < 16:
            a(f"ds_read_b128 v[{OF(kk+8)}:{OF(kk+8)+3}], v{20+(kk&7)} offset:16384")
        a(f"v_max3_u32 v12, v12, v{OF(kk)}, v{OF(kk)+1}")
        a(f"v_max3_u32 v12, v12, v{OF(kk)+2}, v{OF(kk)+3}")
    a(f"""
v_cmp_eq_u32 vcc, -1, v12
s_lshl_b32 s48, s82, 2
s_add_u32 s48, s48, {L_FLAG}
v_mov_b32 v13, s48
v_mov_b32 v14, 1
s_cbranch_vccz L_t_ok
ds_write_b32 v13, v14
L_t_ok:
v_lshlrev_b32 v15, 4, v1
s_and_b32 s48, {S_WAVE}, 3
s_lshl_b32 s48, s48, 12
v_add_u32 v15, s48, v15
s_cmp_lt_u32 {S_WAVE}, 4
s_cbranch_scc1 L_t_nowr
""")
    a.fence(12)
    for i in range(4):
        a(f"ds_write_b128 v15, v[{ACC2+4*i}:{ACC2+4*i+3}] offset:{L_RED + i*1024}")
    a("""
L_t_nowr:
s_waitcnt lgkmcnt(0)
s_barrier   ; B_7
ds_read_b32 v14, v13
""")
    for i in range(4):
        a(f"ds_read_b128 v[{32+4*i}:{35+4*i}], v15 offset:{L_RED + i*1024}")
    a(f"""
s_waitcnt lgkmcnt(4)
v_readfirstlane_b32 s48, v14
s_add_u32 s82, s82, 1
s_cmp_ge_u32 s82, 48
s_cbranch_scc1 L_t_fin
s_cmp_eq_u32 s48, 0
s_cbranch_scc1 L_t_fin
s_waitcnt lgkmcnt(0)
s_barrier
s_branch L_t_retry
L_t_fin:
s_cmp_ge_u32 {S_WAVE}, 4
s_cbranch_scc1 L_fin
v_add_u32 v14, s75, v8
v_lshlrev_b32 v14, 10, v14
v_lshrrev_b32 v15, 5, v1
v_lshlrev_b32 v15, 4, v15
v_add_u32 v14, v14, v15
s_lshl_b32 s48, {S_HG}, 7
s_bfe_u32 s49, {S_WAVE}, 0x10001
s_lshl_b32 s49, s49, 6
s_add_u32 s48, s48, s49
s_waitcnt lgkmcnt(0)
""")
    for i in range(16): a(f"v_add_f32 v{32+i}, v{32+i}, v{ACC2+i}")
    for i in range(8): a(f"v_cvt_pk_bf16_f32 v{48+i}, v{32+2*i}, v{32+2*i+1}")
    a("""
v_permlane32_swap_b32 v48, v50
v_permlane32_swap_b32 v49, v51
v_permlane32_swap_b32 v52, v54
v_permlane32_swap_b32 v53, v55
""")
    a(f"buffer_store_dwordx4 v[48:51], v14, {SRD_OUT}, s48 offen")
    a(f"buffer_store_dwordx4 v[52:55], v14, {SRD_OUT}, s48 offen offset:32")
    a("L_fin:")
    stamp(45)

def build():
    a.raw(open(__file__.replace("k.py", "header.txt")).read())
    a.raw(f"; @launch grid=(256,1,1) block=(512,1,1) lds={LDS_BYTES}")
    a.raw('.amdgcn_target "amdgcn-amd-amdhsa--gfx950"\n.text')
    a.raw(f".globl {NAME}_kernel\n.p2align 8\n.type {NAME}_kernel,@function\n{NAME}_kernel:")
    prologue()
    g_phase1()
    a("s_branch L_join1")
    aux_phase1()
    a("L_join1:")
    a.fence(8)
    phase2_start()
    phase2_loop()
    fallback()
    phase3()
    prof_dump()
    a("L_end:")
    a("s_endpgm")
    a.raw(f""".section .rodata,"a"
.p2align 6
.amdhsa_kernel {NAME}_kernel
  .amdhsa_next_free_vgpr 256
  .amdhsa_next_free_sgpr 102
  .amdhsa_accum_offset 256
  .amdhsa_group_segment_fixed_size 0
  .amdhsa_kernarg_size 96
  .amdhsa_user_sgpr_count 2
  .amdhsa_user_sgpr_kernarg_segment_ptr 1
  .amdhsa_system_sgpr_workgroup_id_x 1
.end_amdhsa_kernel""")
    open(sys.argv[1], "w").write(a.text())
    print("nops inserted:", a.nops, "lines:", len(a.lines))

build()
```

```python
import sys, struct, os
from dsl import Asm, VM

NAME = "gated_mix__sliding_local_dilated__grouped_kv_mqa__prompt"
WS_KV = 0x0
WS_G = 0x2C000
WS_FL = 0x24000
WS_OA = 0x100000
WS_OB = 0x300000
WS_PROF = 0x1C00000
WS_SIZE = 0x2000000
XBLK = 20480
L_RING = 81920
L_WK = 147456
L_T = 98304
L_QB = 147456
SCR_D = 3 * XBLK
SCR_G = 2 * XBLK
L_GO = 36864
L_KMAX = L_T + 30720
L_OAT = 131072
R0, R1, R2 = 65536, 98304, 131072
L_RED, L_FLAG, L_OB = 0, 16384, 65536
LDS_BYTES = 163840
LOG2E = 1.4426950408889634
QSCALE = 0.25 * LOG2E
SPIN_MAX = 1 << 15
def f32(x): return "0x%08x" % struct.unpack("<I", struct.pack("<f", x))[0]

PROF = len(sys.argv) > 2 and sys.argv[2] == "prof"
OPT = set(sys.argv[3:])

a = Asm()
S_WAVE, S_PB, S_HG, S_P0, S_U4, S_A = "s3", "s4", "s5", "s6", "s7", "s90"
SRD_X, SRD_W, SRD_WS, SRD_DBG, SRD_WK, SRD_GT, SRD_AWO, SRD_BWO, SRD_OUT = [f"s[{8+4*i}:{11+4*i}]" for i in range(9)]
vAK, vAQ, vAV, vAO = "v208", "v209", "v210", "v211"
CM, CM0, ONES, VF = 212, 216, 220, 224
vL16, vVA, vJ, vWOP = "v240", "v241", "v242", "v243"
STP, OFA = 244, 248
vWOF, vFLG = "v252", "v253"
AQR, APR = 192, 200
C_, SA, SB, O_, P_, KF, ACCA, BW, BO = 32, 48, 64, 80, 96, 104, 112, 128, 160

def stamp(i):
    if PROF:
        a(f"""s_memtime s[100:101]
s_waitcnt lgkmcnt(0)
v_writelane_b32 v255, s100, {i}""")
def prof_dump():
    if PROF:
        a(f"""v_lshlrev_b32 v254, 2, v1
s_lshl_b32 s100, s2, 3
s_add_u32 s100, s100, {S_WAVE}
s_lshl_b32 s100, s100, 8
s_add_u32 s100, s100, {WS_PROF}
buffer_store_dword v255, v254, {SRD_WS}, s100 offen
s_waitcnt vmcnt(0)""")

def srd(idx, plo, size):
    b = 8 + 4 * idx
    a(f"""s_mov_b32 s{b}, s{plo}
s_and_b32 s{b+1}, s{plo+1}, 0xffff
s_mov_b32 s{b+2}, {size}
s_mov_b32 s{b+3}, 0x00020000""")

MAP = os.environ.get("MAP", "1")
def mapcode():
    if MAP == "0":
        return f"""s_lshr_b32 s50, s48, 1
s_lshl_b32 s50, s50, 3
s_and_b32 s51, s49, 7
s_add_u32 {S_PB}, s50, s51
s_and_b32 s50, s48, 1
s_lshl_b32 s50, s50, 2
s_lshr_b32 s51, s49, 3
s_add_u32 {S_HG}, s50, s51
"""
    if MAP == "1":
        return f"""s_lshr_b32 s50, s48, 1
s_lshl_b32 s50, s50, 3
s_and_b32 s51, s49, 7
s_add_u32 {S_PB}, s50, s51
s_and_b32 s50, s48, 1
s_lshr_b32 s51, s49, 3
s_lshl_b32 s51, s51, 1
s_add_u32 {S_HG}, s50, s51
"""
    if MAP == "2":
        return f"""s_lshl_b32 s50, s48, 2
s_and_b32 s51, s49, 3
s_add_u32 {S_PB}, s50, s51
s_lshr_b32 {S_HG}, s49, 2
"""
def wgid_of():
    if MAP == "0":
        return f"""v_lshrrev_b32 v36, 2, v35
v_and_b32 v37, 3, v35
v_lshlrev_b32 v37, 6, v37
s_lshr_b32 s48, {S_PB}, 3
s_lshl_b32 s48, s48, 1
s_and_b32 s49, {S_PB}, 7
s_lshl_b32 s49, s49, 3
s_add_u32 s48, s48, s49
v_add3_u32 {vFLG}, v36, v37, s48
"""
    if MAP == "1":
        return f"""v_and_b32 v36, 1, v35
v_lshrrev_b32 v37, 1, v35
v_lshlrev_b32 v37, 6, v37
s_lshr_b32 s48, {S_PB}, 3
s_lshl_b32 s48, s48, 1
s_and_b32 s49, {S_PB}, 7
s_lshl_b32 s49, s49, 3
s_add_u32 s48, s48, s49
v_add3_u32 {vFLG}, v36, v37, s48
"""
    if MAP == "2":
        return f"""v_lshlrev_b32 v37, 5, v35
s_lshr_b32 s48, {S_PB}, 2
s_and_b32 s49, {S_PB}, 3
s_lshl_b32 s49, s49, 3
s_add_u32 s48, s48, s49
v_add_u32 {vFLG}, s48, v37
"""

def prologue():
    MAPCODE = mapcode()
    a(f"""
s_cmp_ge_u32 s2, 256
s_cbranch_scc1 L_end
s_load_dwordx16 s[64:79], s[0:1], 0
s_load_dwordx8 s[80:87], s[0:1], 64
v_and_b32 v1, 63, v0
v_lshrrev_b32 v2, 6, v0
s_and_b32 s48, s2, 7
s_lshr_b32 s49, s2, 3
v_readfirstlane_b32 {S_WAVE}, v2
{MAPCODE}s_lshl_b32 {S_P0}, {S_PB}, 6
s_lshl_b32 s88, {S_PB}, 3
s_add_u32 s88, s88, {S_HG}
s_and_b32 {S_A}, {S_WAVE}, 3
s_and_b32 {S_U4}, {S_HG}, 3
s_lshl_b32 s53, {S_A}, 10
s_mov_b32 s14, 1572864
s_mov_b32 s52, 3072
s_mov_b32 s15, 0x00020000
s_lshl_b32 s54, {S_HG}, 7
v_lshrrev_b32 v10, 4, v1
v_and_b32 v11, 15, v1
s_lshl_b32 s48, {S_A}, 2
v_add_u32 v12, s48, v10
v_xor_b32 v11, v11, v12
v_lshlrev_b32 v11, 4, v11
v_lshlrev_b32 v10, 10, v10
v_add_u32 v2, v10, v11
v_lshlrev_b32 {vL16}, 4, v1
s_sub_u32 s49, {S_P0}, 16
s_max_i32 s50, s49, 0
s_add_u32 s49, s49, s48
s_add_u32 s50, s50, s48
s_lshl_b32 s98, s49, 10
s_lshl_b32 s99, s50, 10
s_lshl_b32 s91, {S_A}, 10
""")
    for rel in range(4):
        a(f"""
s_add_u32 s48, {S_U4}, {rel}
s_and_b32 s48, s48, 3
s_add_u32 s48, s48, 1
s_lshl_b32 s49, s48, 12
s_add_u32 s{56+rel}, s49, s91
s_lshl_b32 s49, s48, 14
s_add_u32 s{60+rel}, s49, s98
""")
    a("s_waitcnt lgkmcnt(0)")
    srd(0, 64, 2048 * 1024)
    a(f"""
s_cmp_ge_u32 {S_HG}, 4
s_cselect_b32 s74, s76, s74
s_cselect_b32 s75, s77, s75
""")
    srd(4, 74, 16384)
    a(f"""
s_cmp_eq_u32 {S_A}, 3
s_cselect_b32 s12, s72, s66
s_cselect_b32 s13, s73, s67
s_cselect_b32 s14, 524288, s14
s_cselect_b32 s52, 1024, s52
s_cselect_b32 s53, 0, s53
s_and_b32 s13, s13, 0xffff
s_add_u32 s53, s53, s54
""")
    srd(2, 86, WS_SIZE)
    srd(3, 84, 256)
    srd(5, 80, 1024)
    srd(6, 68, 524288)
    srd(7, 78, 524288)
    srd(8, 82, 2048 * 1024)
    stamp(0)
    a(f"""
s_cmp_ge_u32 {S_WAVE}, 4
s_cbranch_scc1 L_aux
""")

def x_instr(vm, kb, rel, tag):
    a(f"s_add_u32 m0, {'s91' if rel == 4 else 's%d' % (56+rel)}, {kb*XBLK}")
    a(f"s_add_u32 s95, {'s99' if rel == 4 else 's%d' % (60+rel)}, {kb*256}")
    a(f"buffer_load_dwordx4 v2, {SRD_X}, s95 offen lds")
    if vm: vm.issue(tag)

def setup_persistent():
    a.comment("---- persistent setup")
    a(f"""
v_and_b32 v32, 15, v1
v_lshrrev_b32 v33, 4, v1
s_mul_i32 s49, {S_A}, 2560
s_lshr_b32 s55, {S_WAVE}, 2
s_lshl_b32 s51, s55, 10
s_add_u32 s49, s49, s51
s_add_u32 s50, s49, {L_T + 4*2560}
v_lshlrev_b32 v34, 6, v32
v_lshlrev_b32 v35, 4, v33
v_add3_u32 {vAK}, v34, v35, s50
s_add_u32 s50, s49, {L_T + 512}
v_lshlrev_b32 v34, 5, v32
v_and_b32 v35, 1, v33
v_lshlrev_b32 v35, 4, v35
v_add3_u32 {vAQ}, v34, v35, s50
s_add_u32 s50, s49, {L_T + 8*2560}
v_bfe_u32 v34, v1, 2, 2
v_lshlrev_b32 v34, 6, v34
v_lshlrev_b32 v35, 8, v33
v_and_b32 v36, 3, v1
v_lshlrev_b32 v36, 3, v36
v_add3_u32 {vAV}, v34, v35, v36
v_add_u32 {vAV}, s50, {vAV}
v_lshlrev_b32 v34, 7, v32
s_lshl_b32 s50, s55, 12
s_lshl_b32 s51, {S_A}, 5
s_add_u32 s50, s50, s51
s_add_u32 s50, s50, {L_OAT}
v_lshlrev_b32 v35, 3, v33
v_add3_u32 {vAO}, v34, v35, s50
v_lshrrev_b32 v34, 1, v32
v_lshlrev_b32 v35, 2, v33
v_sub_u32 v36, v35, v34
v_mov_b32 v37, {f32(-1e30)}
s_add_u32 s50, {S_PB}, s55
s_cmp_eq_u32 s50, 0
s_cselect_b32 s50, 8, 0
""")
    for r in range(4):
        a(f"""
v_add_u32 v34, {r-1}, v36
v_add_u32 v38, {r}, v35
v_cmp_gt_u32 vcc, 8, v34
v_cmp_le_u32 s[48:49], s50, v38
v_cndmask_b32 v{CM+r}, v37, 0, vcc
v_cndmask_b32 v{CM0+r}, v37, v{CM+r}, s[48:49]
""")
    for i in range(4): a(f"v_mov_b32 v{ONES+i}, 0x3f803f80")
    a(f"""
v_and_b32 {vJ}, 31, v1
v_lshrrev_b32 v34, 5, v1
v_lshlrev_b32 v35, 4, {vJ}
v_lshlrev_b32 v36, 8, v34
v_add_u32 v35, v35, v36
v_add_u32 {vVA}, 8192, v35
v_and_b32 v35, 27, {vJ}
v_cmp_eq_u32 vcc, 16, v35
v_cndmask_b32 v{VF}, 0, v{ONES}, vcc
""")
    for i in range(1, 16): a(f"v_mov_b32 v{VF+i}, v{VF}")
    a(f"""
v_lshrrev_b32 v35, 3, v1
v_and_b32 v36, 7, v1
v_bfe_u32 v37, v1, 4, 1
v_lshlrev_b32 v37, 2, v37
v_xor_b32 v36, v36, v37
v_lshlrev_b32 v36, 4, v36
v_lshlrev_b32 v35, 10, v35
v_add_u32 {vWOP}, v35, v36
""")
    for n4 in range(4):
        a(f"""
v_add_u32 v35, {4*n4}, v33
v_xor_b32 v36, v32, v35
v_lshlrev_b32 v35, 1, v35
v_lshrrev_b32 v37, 3, v36
v_add_u32 v35, v35, v37
v_lshlrev_b32 v35, 10, v35
v_and_b32 v36, 7, v36
v_lshlrev_b32 v36, 4, v36
v_add_u32 v{STP+n4}, v35, v36
""")
    a(f"""
s_and_b32 s48, {S_WAVE}, 1
s_lshl_b32 s48, s48, 5
s_add_u32 s75, s48, {S_P0}
v_add_u32 v35, s48, {vJ}
v_lshrrev_b32 v36, 1, v35
v_and_b32 v37, 1, v35
v_lshlrev_b32 v37, 3, v37
v_or_b32 v37, v37, v34
v_and_b32 v38, 15, v36
v_xor_b32 v37, v37, v38
v_lshlrev_b32 v37, 4, v37
v_lshlrev_b32 v36, 8, v36
v_add_u32 v{OFA}, v36, v37
v_xor_b32 v{OFA+1}, 32, v{OFA}
v_xor_b32 v{OFA+2}, 64, v{OFA}
v_xor_b32 v{OFA+3}, 96, v{OFA}
s_lshl_b32 s84, s75, 10
s_lshr_b32 s48, {S_WAVE}, 1
s_lshl_b32 s48, s48, 7
s_add_u32 s84, s84, s48
s_lshl_b32 s79, {S_WAVE}, 11
s_lshl_b32 s73, {S_WAVE}, 12
s_lshl_b32 s74, {S_WAVE}, 15
s_lshl_b32 s48, {S_HG}, 7
s_add_u32 s74, s74, s48
s_mov_b32 s76, 0x0000ffff
s_mov_b32 s77, 0x0000ffff
s_mov_b32 s64, 0x55555555
s_mov_b32 s65, 0xaaaaaaaa
s_mov_b32 s66, 0x55555555
s_mov_b32 s67, 0x55555555
s_mov_b32 s68, 0xaaaaaaaa
s_mov_b32 s69, 0xaaaaaaaa
v_and_b32 v35, 7, v1
s_lshl_b32 s48, {S_PB}, 3
v_add_u32 {vFLG}, s48, v35
v_lshlrev_b32 {vFLG}, 7, {vFLG}
v_and_b32 v36, 1, v33
v_lshrrev_b32 v37, 1, v33
v_bfe_u32 v38, v1, 2, 2
v_lshlrev_b32 v37, 2, v37
v_add_u32 v37, v37, v38
v_lshlrev_b32 v37, 7, v37
v_lshrrev_b32 v38, 1, v38
s_bfe_u32 s49, {S_WAVE}, 0x10001
v_xor_b32 v38, s49, v38
v_lshlrev_b32 v38, 6, v38
v_lshlrev_b32 v36, 5, v36
v_add3_u32 v38, v38, v37, v36
v_and_b32 v36, 3, v1
v_lshlrev_b32 v36, 3, v36
v_add_u32 {vWOF}, v38, v36
""")

def PF(lo, hi):
    if "nopf" in OPT: return
    mask = ((1 << (4*hi)) - 1) ^ ((1 << (4*lo)) - 1)
    a(f"""
s_mov_b32 s48, {mask & 0xffffffff}
s_mov_b32 s49, {mask >> 32}
s_mov_b64 exec, s[48:49]
buffer_load_dword v29, v28, {SRD_W}, s53 offen
""")
    if MAP == "2": a(f"buffer_load_dword v29, v28, {SRD_W}, s89 offen")
    a("s_mov_b64 exec, -1")
NPF = 0 if "nopf" in OPT else (2 if os.environ.get("MAP", "1") == "2" else 1)

def g_phase1():
    a.comment("==== G waves (0..3)")
    a(f"""
s_cmp_lt_u32 {S_HG}, 4
s_cbranch_scc1 L_g_nogate
v_lshrrev_b32 v7, 4, v1
v_lshlrev_b32 v7, 4, v7
s_lshl_b32 s50, {S_WAVE}, 8
s_mov_b32 s48, 0x00010001
s_mov_b32 s49, 0x00010001
s_mov_b64 exec, s[48:49]
""")
    for ks in range(4):
        a(f"buffer_load_dwordx4 v[{64+4*ks}:{67+4*ks}], v7, {SRD_GT}, s50 offen offset:{ks*64}")
    a(f"""
s_mov_b64 exec, -1
L_g_nogate:
v_lshrrev_b32 v4, 2, v1
v_lshlrev_b32 v4, 5, v4
v_and_b32 v3, 3, v1
s_and_b32 s48, {S_PB}, {3 if MAP == "2" else 7}
s_lshl_b32 s48, s48, {3 if MAP == "2" else 2}
v_add3_u32 v4, v4, v3, s48
v_mul_lo_u32 v28, v4, s52
s_lshl_b32 s89, s52, 2
s_add_u32 s89, s89, s53
""")
    a("v_mov_b32 v30, v2")
    PFM = os.environ.get("PFM", "0")
    def PFX(w):
        a(f"""
s_cmp_lg_u32 {S_WAVE}, {w}
s_cbranch_scc1 L_pfx{w}
s_lshr_b32 s48, {S_HG}, 1
s_lshl_b32 s48, s48, 4
s_add_u32 s48, s48, {S_P0}
v_bfe_u32 v3, v1, 1, 4
v_add_u32 v3, s48, v3
v_lshlrev_b32 v3, 10, v3
v_lshrrev_b32 v4, 5, v1
v_lshlrev_b32 v4, 8, v4
v_and_b32 v5, 1, v1
v_lshlrev_b32 v5, 7, v5
v_add3_u32 v3, v3, v4, v5
buffer_load_dword v29, v3, {SRD_X}, 0 offen offset:{w*512}
L_pfx{w}:
""")
    if PFM == "a": PFX(0); PF(0, 16); PFX(1)
    if PFM == "b": PFX(0); PF(0, 8)
    if PFM == "c": PFX(0); PF(0, 6)
    setup_persistent()
    a(f"""
v_lshrrev_b32 v11, 5, v1
v_add_u32 v12, 16, {vJ}
v_and_b32 v13, 15, v12
v_xor_b32 v13, v13, v11
v_lshlrev_b32 v13, 4, v13
v_lshlrev_b32 v12, 8, v12
v_add_u32 v16, v12, v13
v_xor_b32 v17, 32, v16
v_xor_b32 v18, 64, v16
v_xor_b32 v19, 96, v16
v_xor_b32 v20, 128, v16
v_xor_b32 v21, 160, v16
v_xor_b32 v22, 192, v16
v_xor_b32 v23, 224, v16
v_lshrrev_b32 v10, 4, v1
v_and_b32 v11, 1, v10
v_lshrrev_b32 v10, 1, v10
v_bfe_u32 v12, v1, 2, 2
v_and_b32 v13, 3, v1
v_lshlrev_b32 v14, 3, v10
v_add_u32 v14, v14, v12
v_lshlrev_b32 v14, 7, v14
v_lshrrev_b32 v15, 1, v12
v_lshlrev_b32 v15, 6, v15
v_lshlrev_b32 v11, 5, v11
v_lshlrev_b32 v13, 3, v13
v_add3_u32 v14, v14, v15, v11
v_add_u32 v14, v14, v13
s_lshl_b32 s48, {S_WAVE}, 12
s_add_u32 s48, s48, {L_RING}
v_add_u32 v6, s48, v14
v_xor_b32 v7, 64, v6
""")
    kv_partial()
    a(f"""
v_lshrrev_b32 v11, 5, v1
v_lshlrev_b32 v10, 5, {vJ}
v_lshlrev_b32 v11, 4, v11
s_mul_i32 s49, {S_WAVE}, 10240
s_add_u32 s49, s49, {L_T}
v_add3_u32 v8, v10, v11, s49
v_add_u32 v9, {L_QB - 512}, {vL16}
s_movk_i32 s50, 2560
s_cmp_eq_u32 {S_WAVE}, 3
s_cselect_b64 vcc, -1, 0
s_cselect_b32 s50, 2048, s50
v_cndmask_b32 v8, v8, v9, vcc
v_add_u32 v9, s50, v8
v_add_u32 v10, s50, v9
v_add_u32 v11, s50, v10
v_mov_b32 v2, v30
v_and_b32 v3, 16, v1
v_lshlrev_b32 v3, 8, v3
v_add_u32 v3, 4096, v3
""")
    a(f"""
s_lshr_b32 s48, {S_WAVE}, 1
s_add_u32 s48, s48, 1
s_add_u32 s49, {S_WAVE}, 1
s_lshr_b32 s49, s49, 1
s_and_b32 s49, s49, 1
s_xor_b32 s49, s49, 1
s_sub_u32 s50, s48, {S_WAVE}
s_lshl_b32 s50, s50, 12
v_add_u32 v24, s50, v6
s_lshl_b32 s50, s49, 6
v_xor_b32 v24, s50, v24
s_lshl_b32 s48, s48, 2
s_lshl_b32 s49, s49, 1
s_add_u32 s48, s48, s49
s_mul_i32 s48, s48, 2560
s_add_u32 s48, s48, {L_T}
v_lshrrev_b32 v26, 5, v1
v_lshlrev_b32 v25, 5, {vJ}
v_lshlrev_b32 v26, 4, v26
v_add3_u32 v25, v25, v26, s48
""")
    XB = lambda buf, mt, ks2: 128 + 32 * buf + 4 * (2 * mt + ks2)
    WB = lambda buf, nt, ks2: 144 + 32 * buf + 4 * (2 * nt + ks2)
    ACC = lambda nt, mt: 64 + 16 * (2 * nt + mt)
    def reads(s):
        buf = s & 1; slot = s & 3; out = []
        for ks2 in range(2):
            k16 = 2 * s + ks2
            for nt in range(2):
                r = WB(buf, nt, ks2)
                for half in range(2):
                    off = slot * 16384 + (16 * ks2 + 4 * half) * 128
                    out.append(f"ds_read_b64_tr_b16 v[{r+2*half}:{r+2*half+1}], v{6+nt} offset:{off}")
            for mt in range(2):
                off = ((k16 >> 3) & 1) * XBLK + mt * 8192
                r = XB(buf, mt, ks2)
                out.append(f"ds_read_b128 v[{r}:{r+3}], v{16+(k16&7)} offset:{off}")
        return out
    def mf(s, ks2, nt, mt):
        buf = s & 1
        d = ACC(nt, mt); w = WB(buf, nt, ks2); x = XB(buf, mt, ks2)
        c = "0" if (s == 0 and ks2 == 0) else f"v[{d}:{d+15}]"
        return f"v_mfma_f32_32x32x16_bf16 v[{d}:{d+15}], v[{w}:{w+3}], v[{x}:{x+3}], {c}"
    HXB = lambda buf, ks2: 192 + 8 * buf + 4 * ks2
    HWB = lambda buf, ks2: 48 + 8 * buf + 4 * ks2
    HACC = 32
    def hreads(s):
        buf = s & 1; slot = s & 3; out = []
        for ks2 in range(2):
            k16 = 2 * s + ks2
            out.append(f"v_sub_u32 v{4+ks2}, v{16+(k16&7)}, v3")
            out.append(f"ds_read_b128 v[{HXB(buf,ks2)}:{HXB(buf,ks2)+3}], v{4+ks2} offset:{((k16 >> 3) & 1) * XBLK}")
            for half in range(2):
                r = HWB(buf, ks2) + 2 * half
                out.append(f"ds_read_b64_tr_b16 v[{r}:{r+1}], v24 offset:{slot * 16384 + (16 * ks2 + 4 * half) * 128}")
        return out
    def hmf(s, ks2):
        buf = s & 1; d = HACC; w = HWB(buf, ks2); x = HXB(buf, ks2)
        c = "0" if (s == 0 and ks2 == 0) else f"v[{d}:{d+15}]"
        return f"v_mfma_f32_32x32x16_bf16 v[{d}:{d+15}], v[{w}:{w+3}], v[{x}:{x+3}], {c}"
    vg = VM(a)
    xsched = {0: [(1, 1), (1, 2)], 1: [(1, 3), (1, 4)]}
    for i in range(8): xsched[2 + i] = [(2 + (i >> 2), 1 + (i & 3))]
    for s in range(16):
        if s == 4: vg.wait("X1")
        if s == 8: vg.wait("X2")
        if s == 12: vg.wait("X3")
        a(f"s_barrier   ; B_{s}")
        if s in (0, 4, 8, 12, 15): stamp(8 + s)
        if s == 8:
            for i in range(8): a(f"v_add_u32 v{16+i}, {2*XBLK}, v{16+i}")
        R = reads(s) + hreads(s)
        M = ([mf(s - 1, ks2, nt, mt) for ks2 in range(2) for nt in range(2) for mt in range(2)] + [hmf(s - 1, 0), hmf(s - 1, 1)]) if s > 0 else []
        while R or M:
            if M: a(M.pop(0))
            for _ in range(3):
                if R: a(R.pop(0))
        for (kb, rel) in xsched.get(s, []): x_instr(vg, kb, rel, f"X{kb}")
        if PFM == "0":
            if s == 0: PF(4, 8); vg.issue("pf", NPF)
            if s == 2: PF(8, 12); vg.issue("pf", NPF)
            if s == 5: PF(12, 16); vg.issue("pf", NPF)
        if PFM == "b" and s == 0: PF(8, 16); vg.issue("pf", NPF); a("v_mov_b32 v31, v3"); PFX(1); a("v_mov_b32 v3, v31")
        if PFM == "c" and s == 0: PF(6, 11); vg.issue("pf", NPF); a("v_mov_b32 v31, v3"); PFX(1); a("v_mov_b32 v3, v31")
        if PFM == "c" and s == 3: PF(11, 16); vg.issue("pf", NPF)
        if s == 3:
            a(f"""
s_cmp_lg_u32 {S_WAVE}, 0
s_cbranch_scc1 L_g_noarr
s_and_b32 s48, s2, 3
s_lshl_b32 s48, s48, 6
v_mov_b32 v12, s48
v_mov_b32 v13, 1
s_mov_b64 exec, 1
buffer_atomic_add v13, v12, {SRD_DBG}, 0 offen sc1
s_mov_b64 exec, -1
L_g_noarr:
""")
        a("s_waitcnt lgkmcnt(0)")
    tiles = [(nt, mt) for nt in range(2) for mt in range(2)]
    def pack(n):
        nt, mt = tiles[n]; d = ACC(nt, mt)
        for hh in range(2):
            p = 128 + 4 * (2 * n + hh)
            for e in range(4):
                a(f"v_cvt_pk_bf16_f32 v{p+e}, v{d+8*hh+2*e}, v{d+8*hh+2*e+1}")
            a(f"ds_write_b128 v{8+2*nt+hh}, v[{p}:{p+3}] offset:{mt*1024 + 512}")
    a(hmf(15, 0)); a(hmf(15, 1))
    for n, (nt, mt) in enumerate(tiles):
        a(mf(15, 0, nt, mt)); a(mf(15, 1, nt, mt))
        if n == 1:
            a("s_mov_b64 exec, s[76:77]")
            for hh in range(2):
                p = 48 + 4 * hh
                for e in range(4):
                    a(f"v_cvt_pk_bf16_f32 v{p+e}, v{HACC+8*hh+2*e}, v{HACC+8*hh+2*e+1}")
                a(f"ds_write_b128 v25, v[{p}:{p+3}] offset:{hh*2560}")
            a("s_mov_b64 exec, -1")
        if n >= 2: pack(n - 2)
    pack(2); pack(3)
    for i in range(16): a(f"v_mov_b32 v{AQR+i}, 0")
    a("s_waitcnt lgkmcnt(0)")
    stamp(30)
    a("s_barrier   ; B_e")
    stamp(31)

def kv_partial():
    a.comment("---- KV partial: G wave j handles k-block j of rows 16+16*u4+i")
    a(f"""
s_lshl_b32 s48, {S_U4}, 4
s_add_u32 s48, s48, 16
v_and_b32 v12, 15, v1
v_lshrrev_b32 v13, 4, v1
v_add_u32 v14, s48, v12
v_lshlrev_b32 v14, 8, v14
v_xor_b32 v15, v12, v13
v_lshlrev_b32 v15, 4, v15
s_mul_i32 s49, {S_WAVE}, {XBLK}
v_add3_u32 v2, v15, v14, s49
v_xor_b32 v3, 64, v2
v_xor_b32 v4, 128, v2
v_xor_b32 v5, 192, v2
v_bfe_u32 v14, v1, 2, 2
v_lshlrev_b32 v15, 3, v13
v_add_u32 v15, v15, v14
v_lshlrev_b32 v15, 5, v15
v_and_b32 v14, 3, v1
v_lshlrev_b32 v14, 3, v14
s_lshl_b32 s49, {S_WAVE}, 12
s_add_u32 s49, s49, {L_WK}
v_add3_u32 v8, v15, v14, s49
s_lshl_b32 s49, {S_WAVE}, 10
s_add_u32 s49, s49, {SCR_D}
v_add_u32 v9, s49, {vL16}
v_lshlrev_b32 v10, 2, v1
s_lshl_b32 s49, {S_WAVE}, 8
s_add_u32 s49, s49, {SCR_G}
v_add_u32 v10, s49, v10
""")
    stamp(3)
    a("s_waitcnt vmcnt(%d)" % (0 if os.environ.get("PFM", "0") == "0" else NPF))
    a("s_barrier   ; B_kv")
    stamp(4)
    for ks in range(4):
        a(f"ds_read_b128 v[{192+4*ks}:{195+4*ks}], v{2+ks}")
        for half in range(2):
            a(f"ds_read_b64_tr_b16 v[{128+4*ks+2*half}:{129+4*ks+2*half}], v8 offset:{ks*1024 + half*128}")
    a(f"s_cmp_ge_u32 {S_HG}, 4")
    a("s_cbranch_scc1 L_kv_V")
    for isV in (False, True):
        for ks in range(4):
            a(f"s_waitcnt lgkmcnt({3*(3-ks)})")
            w = f"v[{128+4*ks}:{131+4*ks}]"; x = f"v[{192+4*ks}:{195+4*ks}]"
            c0 = "0" if ks == 0 else "v[24:27]"; c1 = "0" if ks == 0 else "v[32:35]"
            if isV:
                a(f"v_mfma_f32_16x16x32_bf16 v[32:35], v[{64+4*ks}:{67+4*ks}], {x}, {c1}")
                a(f"v_mfma_f32_16x16x32_bf16 v[24:27], {x}, {w}, {c0}")
            else:
                a(f"v_mfma_f32_16x16x32_bf16 v[24:27], {w}, {x}, {c0}")
        if isV:
            a("ds_write_b32 v10, v32")
        else:
            a("s_branch L_kv_done")
            a("L_kv_V:")
    a("L_kv_done:")
    a.fence(8)
    a("ds_write_b128 v9, v[24:27]")
    a("s_waitcnt lgkmcnt(0)")
    stamp(5)

def kv_final():
    a.comment("---- KV finalize (aux wave 3)")
    a(f"""
s_cmp_lg_u32 {S_A}, 3
s_cbranch_scc1 L_kvf_done
v_lshlrev_b32 v41, 2, v1
ds_read_b128 v[44:47], {vL16} offset:{SCR_D}
ds_read_b128 v[48:51], {vL16} offset:{SCR_D+1024}
ds_read_b128 v[52:55], {vL16} offset:{SCR_D+2048}
ds_read_b128 v[56:59], {vL16} offset:{SCR_D+3072}
ds_read_b32 v60, v41 offset:{SCR_G}
ds_read_b32 v61, v41 offset:{SCR_G+256}
ds_read_b32 v62, v41 offset:{SCR_G+512}
ds_read_b32 v63, v41 offset:{SCR_G+768}
s_lshl_b32 s48, {S_PB}, 1
s_lshr_b32 s49, {S_U4}, 1
s_add_u32 s48, s48, s49
s_lshr_b32 s49, s48, 3
s_lshl_b32 s49, s49, 14
s_and_b32 s51, s48, 7
s_lshl_b32 s51, s51, 10
s_add_u32 s49, s49, s51
s_and_b32 s50, {S_U4}, 1
v_and_b32 v42, 15, v1
v_bfe_u32 v43, v1, 4, 1
v_lshlrev_b32 v40, 4, v42
v_lshrrev_b32 v41, 5, v1
v_lshlrev_b32 v41, 3, v41
v_add_u32 v41, v41, v40
s_waitcnt lgkmcnt(4)
""")
    for r in range(4):
        a(f"v_add_f32 v{44+r}, v{44+r}, v{48+r}")
        a(f"v_add_f32 v{52+r}, v{52+r}, v{56+r}")
    for r in range(4):
        a(f"v_add_f32 v{44+r}, v{44+r}, v{52+r}")
    a(f"""
s_cmp_ge_u32 {S_HG}, 4
s_cbranch_scc1 L_kvf_V
s_lshl_b32 s51, s50, 8
s_add_u32 s49, s49, s51
v_lshlrev_b32 v43, 9, v43
v_add_u32 v43, v43, v41
s_mov_b32 s51, {f32(QSCALE)}
v_mul_f32 v44, s51, v44
v_mul_f32 v45, s51, v45
v_mul_f32 v46, s51, v46
v_mul_f32 v47, s51, v47
v_cvt_pk_bf16_f32 v48, v44, v45
v_cvt_pk_bf16_f32 v49, v46, v47
buffer_store_dwordx2 v[48:49], v43, {SRD_WS}, s49 offen sc1
v_mul_f32 v52, v44, v44
v_fmac_f32 v52, v45, v45
v_fmac_f32 v52, v46, v46
v_fmac_f32 v52, v47, v47
v_mov_b32 v53, v52
v_permlane32_swap_b32 v52, v53
v_add_f32 v52, v52, v53
v_mov_b32 v53, v52
v_permlane16_swap_b32 v52, v53
v_add_f32 v52, v52, v53
v_max_f32_dpp v52, v52, v52 row_ror:8 row_mask:0xf bank_mask:0xf
v_max_f32_dpp v52, v52, v52 row_ror:4 row_mask:0xf bank_mask:0xf
v_max_f32_dpp v52, v52, v52 row_ror:2 row_mask:0xf bank_mask:0xf
v_max_f32_dpp v52, v52, v52 row_ror:1 row_mask:0xf bank_mask:0xf
s_lshl_b32 s48, s88, 7
s_add_u32 s48, s48, {WS_FL + 12}
v_mov_b32 v53, s48
s_mov_b64 exec, 1
buffer_store_dword v52, v53, {SRD_WS}, 0 offen sc1
s_mov_b64 exec, -1
s_branch L_kvf_done
L_kvf_V:
s_lshl_b32 s51, s50, 9
s_add_u32 s49, s49, s51
s_add_u32 s49, s49, 8192
v_lshlrev_b32 v43, 8, v43
v_add_u32 v43, v43, v41
v_cvt_pk_bf16_f32 v48, v44, v45
v_cvt_pk_bf16_f32 v49, v46, v47
buffer_store_dwordx2 v[48:49], v43, {SRD_WS}, s49 offen sc1
s_waitcnt lgkmcnt(0)
v_add_f32 v60, v60, v61
v_add_f32 v62, v62, v63
v_add_f32 v60, v60, v62
v_mul_f32 v60, {f32(-LOG2E)}, v60
v_exp_f32 v60, v60
v_add_f32 v60, 1.0, v60
v_rcp_f32 v60, v60
s_lshl_b32 s48, {S_PB}, 2
s_add_u32 s48, s48, {S_U4}
s_lshl_b32 s48, s48, 7
v_lshlrev_b32 v53, 2, v42
s_add_u32 s49, s48, {WS_G}
s_mov_b64 exec, 0xffff
buffer_store_dword v60, v53, {SRD_WS}, s49 offen sc1
s_mov_b64 exec, -1
L_kvf_done:
""")
    a.fence(2)

def c0_dma():
    a(f"""
s_lshl_b32 s72, {S_A}, 13
v_lshrrev_b32 v8, 2, v1
v_lshlrev_b32 v8, 3, v8
v_and_b32 v9, 3, v1
v_add_u32 v8, v8, v9
v_lshlrev_b32 v8, 7, v8
s_lshl_b32 s48, {S_A}, 14
s_and_b32 s48, s48, 0x4000
s_add_u32 s48, s48, {WS_FL + 12}
""")
    for i in range(8):
        a(f"s_add_u32 m0, s72, {(i>>2)*4096}")
        a(f"s_add_u32 s95, s72, {WS_KV + (i>>2)*4096}")
        a(f"buffer_load_dwordx4 {vL16}, {SRD_WS}, s95 offen offset:{(i&3)*1024} sc1 lds")
    a(f"buffer_load_dword v96, v8, {SRD_WS}, s48 offen sc1")

def issue_w(vm, s):
    slot = s & 3
    for i in range(4):
        a(f"s_add_u32 m0, s92, {slot*16384 + i*1024}")
        a("s_add_u32 s94, s94, s93")
        a(f"buffer_load_dwordx4 v5, {SRD_W}, s94 offen lds")
        vm.issue(f"S{s}")

def aux_phase1():
    a("L_aux:")
    a.fence(4)
    vm = VM(a)
    a(f"s_lshl_b32 s96, {S_A}, 12")
    for kb in range(4):
        x_instr(vm, kb, 0, "KV")
        a(f"s_add_u32 m0, s96, {L_WK}")
        a("s_nop 0")
        a(f"buffer_load_dwordx4 {vL16}, {SRD_WK}, s96 offen offset:{kb*1024} lds")
        vm.issue("KV")
    a(f"""
v_lshrrev_b32 v10, 3, v1
v_and_b32 v11, 7, v1
v_bfe_u32 v12, v1, 4, 1
v_lshlrev_b32 v12, 2, v12
v_xor_b32 v11, v11, v12
v_lshlrev_b32 v11, 4, v11
v_mul_lo_u32 v10, v10, s52
v_add3_u32 v5, v10, v11, s53
s_lshl_b32 s92, {S_A}, 12
s_add_u32 s92, s92, {L_RING}
s_lshl_b32 s93, s52, 3
s_sub_u32 s94, 0, s93
""")
    for rel in (1, 2, 3, 4): x_instr(vm, 0, rel, "S0")
    issue_w(vm, 0)
    W1E = os.environ.get("W1E", "0") == "1"
    if W1E: issue_w(vm, 1)
    a(f"""
s_cmp_lg_u32 {S_A}, 3
s_cbranch_scc1 L_aux_norst
s_lshl_b32 s48, s88, 7
s_add_u32 s48, s48, {WS_FL}
v_mov_b32 v8, s48
v_mov_b32 v10, 0
v_mov_b32 v11, 0
s_mov_b64 exec, 1
buffer_store_dwordx2 v[10:11], v8, {SRD_WS}, 0 offen offset:4 sc1
s_mov_b64 exec, -1
L_aux_norst:
""")
    setup_persistent()
    for i in range(16): a(f"v_mov_b32 v{AQR+i}, 0")
    a(f"""
v_and_b32 v37, 3, v1
v_lshlrev_b32 v37, 6, v37
v_mov_b32 v38, {L_GO}
""")
    stamp(1)
    vm.wait("KV")
    stamp(3)
    a("s_barrier   ; B_kv")
    if not W1E: issue_w(vm, 1); issue_w(vm, 2)
    for s in range(16):
        if s >= 14:
            n = 4 * (15 - s)
            a(f"""
s_cmp_eq_u32 s83, 1
s_cbranch_scc1 L_aux_w{s}a
s_waitcnt vmcnt({n})
L_aux_w{s}a:
s_waitcnt vmcnt({n + 9})
""")
        else:
            vm.wait(f"S{s}")
        if s == 13:
            a(f"""
s_cmp_lg_u32 {S_A}, 0
s_cbranch_scc1 L_aux_nogo
v_cmp_ne_u32 vcc, 64, v9
s_cmp_eq_u64 vcc, 0
s_cselect_b32 s48, 1, 0
v_mov_b32 v9, s48
ds_write_b32 v38, v9
s_waitcnt lgkmcnt(0)
L_aux_nogo:
""")
        if s in (4, 8, 12, 15): stamp(40 + s)
        a(f"s_barrier   ; B_{s}")
        if s == 10:
            a(f"""
s_cmp_lg_u32 {S_A}, 0
s_cbranch_scc1 L_aux_nopoll
buffer_load_dword v9, v37, {SRD_DBG}, 0 offen sc1
L_aux_nopoll:
""")
        if s == 0:
            if W1E: issue_w(vm, 2)
            kv_final(); issue_w(vm, 3)
        if 1 <= s and s + 3 < 16: issue_w(vm, s + 3)
        if s == 13:
            a(f"""
ds_read_b32 v9, v38
s_waitcnt lgkmcnt(0)
v_readfirstlane_b32 s83, v9
s_cmp_eq_u32 s83, 1
s_cbranch_scc0 L_aux_noearly
""")
            c0_dma()
            a("L_aux_noearly:")
    a(f"""
s_cmp_eq_u32 s83, 1
s_cbranch_scc1 L_aux_have
s_mov_b32 s49, 0
L_poll_go:
buffer_load_dword v9, v37, {SRD_DBG}, 0 offen sc1
s_add_u32 s49, s49, 1
s_waitcnt vmcnt(0)
v_cmp_ne_u32 vcc, 64, v9
s_cmp_ge_u32 s49, {SPIN_MAX}
s_cbranch_scc1 L_poll_go_done
s_cbranch_vccz L_poll_go_done
s_sleep 4
s_branch L_poll_go
L_poll_go_done:
""")
    stamp(34)
    c0_dma()
    a(f"""
L_aux_have:
s_waitcnt vmcnt(0)
v_mov_b32 v97, v96
v_permlane32_swap_b32 v96, v97
v_max_f32 v96, v96, v97
v_mov_b32 v97, v96
v_permlane16_swap_b32 v96, v97
v_max_f32 v96, v96, v97
v_max_f32_dpp v96, v96, v96 row_ror:8 row_mask:0xf bank_mask:0xf
v_max_f32_dpp v96, v96, v96 row_ror:4 row_mask:0xf bank_mask:0xf
v_max_f32_dpp v96, v96, v96 row_ror:2 row_mask:0xf bank_mask:0xf
v_max_f32_dpp v96, v96, v96 row_ror:1 row_mask:0xf bank_mask:0xf
s_and_b32 s48, {S_A}, 1
s_lshl_b32 s48, s48, 2
s_add_u32 s48, s48, {L_KMAX}
v_mov_b32 v97, s48
ds_write_b32 v97, v96
s_waitcnt lgkmcnt(0)
""")
    stamp(30)
    a("s_barrier   ; B_e")

def phase2_start():
    a(f"""
v_and_b32 v28, 3, v1
v_lshlrev_b32 v28, 11, v28
v_bfe_u32 v29, v1, 2, 3
s_lshl_b32 s48, {S_WAVE}, 3
s_and_b32 s49, s48, 31
v_add_u32 v29, s49, v29
v_and_b32 v30, 32, v1
v_add_u32 v29, v29, v30
v_lshlrev_b32 v29, 4, v29
s_lshr_b32 s49, {S_WAVE}, 2
s_lshl_b32 s49, s49, 10
s_add_u32 s49, s49, {L_QB}
v_add3_u32 v30, v28, v29, s49
v_mov_b32 v13, {L_KMAX}
ds_read_b128 v[4:7], v30
ds_read_b64 v[14:15], v13
ds_read_b128 v[{KF}:{KF+3}], {vL16}
ds_read_b128 v[{KF+4}:{KF+7}], {vL16} offset:1024
s_mov_b64 exec, s[76:77]
ds_read_b128 v[{VF}:{VF+3}], {vVA}
ds_read_b128 v[{VF+4}:{VF+7}], {vVA} offset:512
s_mov_b64 exec, -1
v_mov_b32 v12, 0
s_waitcnt lgkmcnt(4)
v_dot2_f32_bf16 v12, v4, v4, v12
v_dot2_f32_bf16 v12, v5, v5, v12
v_dot2_f32_bf16 v12, v6, v6, v12
v_dot2_f32_bf16 v12, v7, v7, v12
v_max_f32 v14, v14, v15
v_mov_b32 v13, v12
v_permlane32_swap_b32 v12, v13
v_add_f32 v12, v12, v13
v_mul_f32 v12, v12, v14
v_sqrt_f32 v12, v12
v_sub_f32 v{C_}, 0, v12
""")
    for i in range(1, 16): a(f"v_mov_b32 v{C_+i}, v{C_}")
    a("s_waitcnt lgkmcnt(3)")
    a(f"v_mfma_f32_32x32x16_bf16 v[{SA}:{SA+15}], v[{KF}:{KF+3}], v[4:7], v[{C_}:{C_+15}]")
    a(f"ds_read_b128 v[{KF}:{KF+3}], {vL16} offset:2048")
    stamp(36)

AKR = lambda u: 128 + 4 * u
AVR = lambda u: 136 + 4 * u
ASR = lambda u: 144 + 4 * u
AOR = lambda u: 152 + 4 * u
ALR = lambda u: 160 + 4 * u
AMX = lambda u: 168 + 2 * u
def aatt(step):
    QR = lambda u: AQR + 4 * u
    PR = lambda u: APR + 4 * u
    if step == 0:
        for u in range(2):
            a(f"ds_read_b128 v[{AKR(u)}:{AKR(u)+3}], {vAK} offset:{u*512}")
        a("s_mov_b64 exec, s[64:65]")
        for u in range(2):
            a(f"ds_read_b128 v[{QR(u)}:{QR(u)+3}], {vAQ} offset:{u*512}")
        a("s_mov_b64 exec, -1")
        for u in range(2):
            a(f"ds_read_b64_tr_b16 v[{AVR(u)}:{AVR(u)+1}], {vAV} offset:{u*512}")
            a(f"ds_read_b64_tr_b16 v[{AVR(u)+2}:{AVR(u)+3}], {vAV} offset:{u*512+32}")
    if step == 1:
        for u in range(2):
            c = CM0 if u == 0 else CM
            a(f"v_mfma_f32_16x16x32_bf16 v[{ASR(u)}:{ASR(u)+3}], v[{AKR(u)}:{AKR(u)+3}], v[{QR(u)}:{QR(u)+3}], v[{c}:{c+3}]")
    if step == 2:
        a(f"s_mov_b32 s51, {f32(QSCALE)}")
        for u in range(2):
            s = ASR(u); m = AMX(u)
            a(f"v_max3_f32 v{m}, v{s}, v{s+1}, v{s+2}")
            a(f"v_max_f32 v{m}, v{m}, v{s+3}")
            a(f"v_mov_b32 v{m+1}, v{m}")
        for u in range(2):
            m = AMX(u); a(f"v_permlane32_swap_b32 v{m}, v{m+1}")
        for u in range(2):
            m = AMX(u); a(f"v_max_f32 v{m}, v{m}, v{m+1}"); a(f"v_mov_b32 v{m+1}, v{m}")
        for u in range(2):
            m = AMX(u); a(f"v_permlane16_swap_b32 v{m}, v{m+1}")
        for u in range(2):
            m = AMX(u); a(f"v_max_f32 v{m}, v{m}, v{m+1}"); a(f"v_mul_f32 v{m}, s51, v{m}")
        for u in range(2):
            s = ASR(u); m = AMX(u)
            for r in range(4): a(f"v_fma_f32 v{s+r}, v{s+r}, s51, -v{m}")
        for u in range(2):
            s = ASR(u)
            for r in range(4): a(f"v_exp_f32 v{s+r}, v{s+r}")
        a("s_mov_b64 exec, s[66:67]")
        for u in range(2):
            s = ASR(u); p = PR(u)
            a(f"v_cvt_pk_bf16_f32 v{p}, v{s}, v{s+1}"); a(f"v_cvt_pk_bf16_f32 v{p+1}, v{s+2}, v{s+3}")
        a("s_mov_b64 exec, s[68:69]")
        for u in range(2):
            s = ASR(u); p = PR(u)
            a(f"v_cvt_pk_bf16_f32 v{p+2}, v{s}, v{s+1}"); a(f"v_cvt_pk_bf16_f32 v{p+3}, v{s+2}, v{s+3}")
        a("s_mov_b64 exec, -1")
        for u in range(2):
            a(f"v_mfma_f32_16x16x32_bf16 v[{ALR(u)}:{ALR(u)+3}], v[{ONES}:{ONES+3}], v[{PR(u)}:{PR(u)+3}], 0")
        for u in range(2):
            a(f"v_mfma_f32_16x16x32_bf16 v[{AOR(u)}:{AOR(u)+3}], v[{AVR(u)}:{AVR(u)+3}], v[{PR(u)}:{PR(u)+3}], 0")
    if step == 3:
        for u in range(2):
            a(f"v_rcp_f32 v{ALR(u)}, v{ALR(u)}")
        for u in range(2):
            o = AOR(u)
            for r in range(4): a(f"v_mul_f32 v{o+r}, v{o+r}, v{ALR(u)}")
            a(f"v_cvt_pk_bf16_f32 v{o}, v{o}, v{o+1}"); a(f"v_cvt_pk_bf16_f32 v{o+1}, v{o+2}, v{o+3}")
            a(f"ds_write_b64 {vAO}, v[{o}:{o+1}] offset:{u*2048}")

def kv_dma(sc):
    for i in range(2):
        a(f"s_add_u32 m0, s79, {(sc&3)*16384}")
        a(f"s_add_u32 s95, s79, {WS_KV + sc*16384}")
        a(f"buffer_load_dwordx4 {vL16}, {SRD_WS}, s95 offen offset:{i*1024} sc1 lds")
def oa_dma(half, dst):
    for n in range(4):
        a(f"s_add_u32 m0, s73, {dst + n*1024}")
        a(f"s_add_u32 s95, s84, {WS_OA + half*512}")
        a(f"buffer_load_dwordx4 v{STP+n}, {SRD_WS}, s95 offen sc1 lds")
def wo_dma(srdw, half, dst):
    for i in range(4):
        a(f"s_add_u32 m0, s73, {dst + i*1024}")
        a(f"s_add_u32 s95, s74, {half*262144 + i*8192}")
        a(f"buffer_load_dwordx4 {vWOP}, {srdw}, s95 offen lds")
def markers_gate():
    a(f"""
v_lshrrev_b32 v24, 3, v1
v_and_b32 v25, 7, v1
v_lshlrev_b32 v25, 4, v25
s_lshl_b32 s48, {S_WAVE}, 3
s_add_u32 s48, s48, {S_P0}
v_add_u32 v24, s48, v24
v_lshlrev_b32 v24, 10, v24
s_lshl_b32 s49, {S_HG}, 7
s_add_u32 s49, s49, {WS_OB}
v_add_u32 v24, v24, v25
v_mov_b32 v28, -1
v_mov_b32 v29, -1
v_mov_b32 v30, -1
v_mov_b32 v31, -1
buffer_store_dwordx4 v[28:31], v24, {SRD_WS}, s49 offen sc1
v_lshrrev_b32 v24, 4, {vJ}
v_lshlrev_b32 v24, 7, v24
v_and_b32 v25, 15, v1
v_lshlrev_b32 v25, 2, v25
v_add_u32 v15, v24, v25
s_lshl_b32 s48, s75, 3
s_add_u32 s48, s48, {WS_G}
buffer_load_dword v9, v15, {SRD_WS}, s48 offen sc1
v_bfe_u32 v24, v1, 2, 3
s_and_b32 s48, {S_WAVE}, 1
s_lshl_b32 s48, s48, 3
v_add_u32 v24, s48, v24
v_lshlrev_b32 v24, 2, v24
s_lshr_b32 s48, {S_WAVE}, 1
s_lshl_b32 s49, {S_PB}, 2
s_add_u32 s48, s48, s49
s_lshl_b32 s48, s48, 7
s_add_u32 s48, s48, {WS_G}
buffer_load_dword v10, v24, {SRD_WS}, s48 offen sc1
""")

def pv1(t):
    vb = VF + 8 * (t & 1)
    a(f"v_mfma_f32_32x32x16_bf16 v[{O_}:{O_+15}], v[{vb+4}:{vb+7}], v[{P_+4}:{P_+7}], v[{O_}:{O_+15}]")

def tile(t, bg=(), bgwait=False):
    first = t == 0
    S = SA if t % 2 == 0 else SB
    Sn = SB if t % 2 == 0 else SA
    def koff(x): return ((x >> 3) & 3) * 16384 + (x & 7) * 1024
    kb = KF + 4 * ((t + 1) & 1)
    vb = VF + 8 * (t & 1)
    vbp = VF + 8 * ((t + 1) & 1)
    if first: a("s_waitcnt lgkmcnt(3)")
    E = lambda i: a(f"v_exp_f32 v{S+i}, v{S+i}")
    Cv = lambda i: a(f"v_cvt_pk_bf16_f32 v{P_+i}, v{S+2*i}, v{S+2*i+1}")
    n = [0]
    def vloads():
        if t + 1 < 64:
            a("s_mov_b64 exec, s[76:77]")
            a(f"ds_read_b128 v[{vbp}:{vbp+3}], {vVA} offset:{koff(t+1)}")
            a(f"ds_read_b128 v[{vbp+4}:{vbp+7}], {vVA} offset:{koff(t+1)+512}")
            a("s_mov_b64 exec, -1")
            n[0] += 2
    def pv0():
        c = "0" if first else f"v[{O_}:{O_+15}]"
        a(f"v_mfma_f32_32x32x16_bf16 v[{O_}:{O_+15}], v[{vb}:{vb+3}], v[{P_}:{P_+3}], {c}")
    if t + 1 < 64: a(f"v_mfma_f32_32x32x16_bf16 v[{Sn}:{Sn+15}], v[{kb}:{kb+3}], v[4:7], v[{C_}:{C_+15}]")
    if t + 3 < 64: a(f"ds_read_b128 v[{kb}:{kb+3}], {vL16} offset:{koff(t+3)}"); n[0] += 1
    if bg:
        for i in range(4): E(i)
        pv1(t - 1)
        vloads()
        for i in range(4, 8): E(i)
        if bgwait: a(f"s_waitcnt lgkmcnt({n[0]})")
        bg[0]()
        for i in range(4): Cv(i)
        for i in range(8, 10): E(i)
        a(f"s_waitcnt lgkmcnt({n[0]})")
        pv0()
        for i in range(10, 14): E(i)
        bg[1]()
        for i in range(14, 16): E(i)
        for i in range(4, 8): Cv(i)
    else:
        for i in range(6): E(i)
        if not first: pv1(t - 1)
        vloads()
        for i in range(6, 8): E(i)
        for i in range(4): Cv(i)
        for i in range(8, 11): E(i)
        a(f"s_waitcnt lgkmcnt({n[0]})")
        pv0()
        for i in range(11, 16): E(i)
        for i in range(4, 8): Cv(i)

def ap_flag_issue():
    a(f"s_mov_b32 s50, {WS_FL + 4}")
    a(f"buffer_load_dword v25, {vFLG}, {SRD_WS}, s50 offen sc1")
def ap_flag_check(h):
    a(f"""
s_mov_b32 s49, 0
s_mov_b32 s50, {WS_FL + 4}
s_branch L_ap_chk{h}
L_ap_poll{h}:
buffer_load_dword v25, {vFLG}, {SRD_WS}, s50 offen sc1
s_add_u32 s49, s49, 1
s_waitcnt vmcnt(0)
L_ap_chk{h}:
v_cmp_ne_u32 vcc, 1, v25
s_cmp_ge_u32 s49, {SPIN_MAX}
s_cbranch_scc1 L_ap_go{h}
s_cbranch_vccnz L_ap_poll{h}
L_ap_go{h}:
""")
def phase2_loop():
    def bw_frags():
        a(f"""
s_mov_b32 s78, {R0}
s_cmp_ge_u32 {S_WAVE}, 4
s_cselect_b32 s78, {R2}, s78
v_add_u32 v16, s78, {vWOF}
""")
    def bw_reads(lo, hi):
        for kk in range(lo, hi):
            for half in range(2):
                r = BW + 4 * kk + 2 * half
                a(f"ds_read_b64_tr_b16 v[{r}:{r+1}], v16 offset:{kk*2048 + half*1024}")
    def publish():
        a(f"""
s_cmp_lg_u32 {S_WAVE}, 0
s_cbranch_scc1 L_nopub
s_lshl_b32 s48, s88, 7
s_add_u32 s48, s48, {WS_FL + 4}
v_mov_b32 v16, s48
v_mov_b32 v17, 1
s_mov_b64 exec, 1
buffer_store_dword v17, v16, {SRD_WS}, 0 offen sc1
s_mov_b64 exec, -1
L_nopub:
""")
    def oa_read():
        a(f"""
s_lshl_b32 s48, {S_WAVE}, 10
s_add_u32 s48, s48, {L_OAT}
v_add_u32 v16, s48, {vL16}
ds_read_b128 v[20:23], v16
""")
    def oa_store():
        a(f"""
v_lshrrev_b32 v24, 3, v1
v_and_b32 v25, 7, v1
v_lshlrev_b32 v25, 4, v25
v_lshlrev_b32 v24, 10, v24
v_add_u32 v24, v24, v25
s_lshl_b32 s48, {S_WAVE}, 3
s_add_u32 s48, s48, {S_P0}
s_lshl_b32 s48, s48, 10
s_lshl_b32 s49, {S_HG}, 7
s_add_u32 s48, s48, s49
s_add_u32 s48, s48, {WS_OA}
buffer_store_dwordx4 v[20:23], v24, {SRD_WS}, s48 offen sc1
""")
    STG = 3
    sn = [
        (1, lambda h: (kv_dma(2), aatt(0))),
        (2, lambda h: aatt(1)),
        (3, lambda h: aatt(2)),
        (4, lambda h: (aatt(3), kv_dma(3))),
        (6, lambda h: markers_gate()),
        (7, lambda h: wo_dma(SRD_BWO, 0, R0)),
        (13, lambda h: (oa_read(), kv_dma(4))),
        (14, lambda h: oa_store()),
        (21, lambda h: (publish() if h == 0 else None, kv_dma(5))),
        (22, lambda h: wo_dma(SRD_BWO, 1, R2)),
        (29, lambda h: kv_dma(6)),
        (30, lambda h: (bw_frags(), bw_reads(0, 6))),
        (31, lambda h: bw_reads(6, 11)),
        (32, lambda h: bw_reads(11, 16)),
        (33, lambda h: ap_flag_issue()),
        (37, lambda h: (ap_flag_check(h), kv_dma(7))),
        (38, lambda h: oa_dma(0, R1)),
        (39, lambda h: wo_dma(SRD_AWO, 0, R0)),
        (45, lambda h: wo_dma(SRD_AWO, 1, R2)),
        (53, lambda h: oa_dma(1, 0)),
    ]
    PRIO = [int(c) for c in os.environ.get("PRIO", "33322110")]
    if "roll" in OPT or "unroll" in OPT:
        tile(0)
        for t in range(1, 8): tile(t)
        stamp(37)
        if "roll" in OPT:
            a("s_mov_b32 s86, 0")
            a(".p2align 6")
            a("L_roll:")
        for rep in range(1 if "roll" in OPT else 6):
            for t in range(8, 16):
                ph = (t - 5) % 8
                if "bar" in OPT and t % 8 == 5: a("s_barrier")
                if "prio" in OPT and PRIO[ph] != PRIO[(ph - 1) % 8]: a(f"s_setprio {PRIO[ph]}")
                tile(t)
        if "roll" in OPT:
            a("s_add_u32 s86, s86, 1\ns_cmp_lt_u32 s86, 6\ns_cbranch_scc1 L_roll")
        stamp(40)
        a("s_setprio 0")
        a.fence(2)
        pv1(63)
        return
    nsn = 0
    for t in range(64):
        if t % 8 == 5 and t > 8:
            a("s_waitcnt vmcnt(0) lgkmcnt(0)" if t in (13, 21, 37) else "s_waitcnt vmcnt(0)")
            if "pb" in OPT: stamp(46 + t // 8)
            a(f"s_barrier   ; b{t//8+1}")
            if "pb" in OPT: stamp(55 + t // 8)
        ph = (t - 5) % 8
        if t == 0 or PRIO[ph] != PRIO[(ph - 1) % 8]:
            a(f"s_setprio {PRIO[ph]}")
        f0 = [f for (tt, f) in sn if tt == t]
        f1 = [f for (tt, f) in sn if tt + STG == t]
        if f0:
            nsn += 1; L = f"L_sn{nsn}"
            a(f"s_cmp_ge_u32 {S_WAVE}, 4\ns_cbranch_scc1 {L}")
            for f in f0: f(0)
            a(f"{L}:")
        if f1:
            nsn += 1; L = f"L_sn{nsn}"
            a(f"s_cmp_lt_u32 {S_WAVE}, 4\ns_cbranch_scc1 {L}")
            for f in f1: f(1)
            a(f"{L}:")
        tile(t)
        if t % 16 == 15: stamp(37 + t // 16)
    a("s_setprio 0")
    a.fence(2)
    pv1(63)

def fallback():
    a.comment("---- softmax safety check: l must be >= 2^-60, else redo this tile with the true max (slow path, K/V from global)")
    a.fence(12)
    a(f"""
s_mov_b32 s48, 0x21800000
v_cmp_nle_f32 vcc, s48, v{O_+8}
s_cbranch_vccz L_fb_done
v_and_b32 v3, 0x1fff, {vVA}
v_mov_b32 v12, {f32(-3.0e38)}
s_mov_b32 s48, 0
L_fb1:
s_lshr_b32 s49, s48, 3
s_lshl_b32 s49, s49, 14
s_and_b32 s50, s48, 7
s_lshl_b32 s50, s50, 10
s_add_u32 s49, s49, s50
buffer_load_dwordx4 v[{KF}:{KF+3}], {vL16}, {SRD_WS}, s49 offen sc1
s_waitcnt vmcnt(0)
v_mfma_f32_32x32x16_bf16 v[{SA}:{SA+15}], v[{KF}:{KF+3}], v[4:7], 0
""")
    for i in range(8): a(f"v_max3_f32 v12, v12, v{SA+2*i}, v{SA+2*i+1}")
    a(f"""
s_add_u32 s48, s48, 1
s_cmp_lt_u32 s48, 64
s_cbranch_scc1 L_fb1
v_mov_b32 v13, v12
v_permlane32_swap_b32 v12, v13
v_max_f32 v12, v12, v13
v_sub_f32 v{C_}, 0, v12
""")
    for i in range(1, 16): a(f"v_mov_b32 v{C_+i}, v{C_}")
    for i in range(16): a(f"v_mov_b32 v{O_+i}, 0")
    a(f"""
s_mov_b32 s48, 0
L_fb2:
s_lshr_b32 s49, s48, 3
s_lshl_b32 s49, s49, 14
s_and_b32 s50, s48, 7
s_lshl_b32 s50, s50, 10
s_add_u32 s49, s49, s50
s_add_u32 s50, s49, 8192
buffer_load_dwordx4 v[{KF}:{KF+3}], {vL16}, {SRD_WS}, s49 offen sc1
s_mov_b64 exec, s[76:77]
buffer_load_dwordx4 v[{VF}:{VF+3}], v3, {SRD_WS}, s50 offen sc1
buffer_load_dwordx4 v[{VF+4}:{VF+7}], v3, {SRD_WS}, s50 offen offset:512 sc1
s_mov_b64 exec, -1
s_waitcnt vmcnt(0)
v_mfma_f32_32x32x16_bf16 v[{SA}:{SA+15}], v[{KF}:{KF+3}], v[4:7], v[{C_}:{C_+15}]
""")
    for i in range(16): a(f"v_exp_f32 v{SA+i}, v{SA+i}")
    for i in range(8): a(f"v_cvt_pk_bf16_f32 v{P_+i}, v{SA+2*i}, v{SA+2*i+1}")
    a(f"""
v_mfma_f32_32x32x16_bf16 v[{O_}:{O_+15}], v[{VF}:{VF+3}], v[{P_}:{P_+3}], v[{O_}:{O_+15}]
v_mfma_f32_32x32x16_bf16 v[{O_}:{O_+15}], v[{VF+4}:{VF+7}], v[{P_+4}:{P_+7}], v[{O_}:{O_+15}]
s_add_u32 s48, s48, 1
s_cmp_lt_u32 s48, 64
s_cbranch_scc1 L_fb2
""")
    a.fence(12)
    a("L_fb_done:")

def phase3():
    a.comment("---- normalise + publish oB'")
    a(f"""
v_rcp_f32 v12, v{O_+8}
v_sub_f32 v13, 1.0, v10
v_add_u32 v14, s75, {vJ}
v_lshlrev_b32 v14, 10, v14
v_lshrrev_b32 v15, 5, v1
v_lshlrev_b32 v15, 4, v15
v_add_u32 v24, v14, v15
v_bfe_u32 v14, v1, 2, 3
v_lshlrev_b32 v14, 10, v14
v_and_b32 v11, 3, v1
v_lshlrev_b32 v11, 5, v11
v_add3_u32 v11, v11, v14, v15
s_lshl_b32 s48, {S_WAVE}, 3
s_add_u32 s48, s48, {S_P0}
s_lshl_b32 s48, s48, 10
s_lshl_b32 s49, {S_HG}, 7
s_add_u32 s48, s48, s49
s_add_u32 s48, s48, {WS_OB}
v_mul_f32 v12, v12, v13
""")
    for i in range(8): a(f"v_mul_f32 v{O_+i}, v{O_+i}, v12")
    for i in range(4): a(f"v_cvt_pk_bf16_f32 v{P_+i}, v{O_+2*i}, v{O_+2*i+1}")
    a(f"buffer_store_dwordx4 v[{P_}:{P_+3}], v11, {SRD_WS}, s48 offen {os.environ.get('TST', 'sc1')}")
    stamp(41)
    a(f"""
s_lshr_b32 s48, {S_WAVE}, 2
s_lshl_b32 s48, s48, 14
s_add_u32 s49, s48, {R0}
v_add_u32 v16, s49, {vWOF}
s_add_u32 s49, s48, {R1}
v_add_u32 v17, s49, v{OFA}
v_add_u32 v18, s49, v{OFA+1}
v_add_u32 v19, s49, v{OFA+2}
v_add_u32 v20, s49, v{OFA+3}
v_add_u32 v26, {R2 - R0}, v16
v_add_u32 v27, s48, v{OFA}
v_add_u32 v28, s48, v{OFA+1}
v_add_u32 v29, s48, v{OFA+2}
v_add_u32 v30, s48, v{OFA+3}
""")
    def grd(g):
        base = 32 + 32 * (g & 1); y = g >> 1
        for j in range(4):
            kk = 4 * (g & 1) + j
            for half in range(2):
                r = base + 4 * j + 2 * half
                a(f"ds_read_b64_tr_b16 v[{r}:{r+1}], v{26 if y else 16} offset:{kk*2048 + half*1024}")
            a(f"ds_read_b128 v[{base+16+4*j}:{base+19+4*j}], v{(27 if y else 17)+j} offset:{(kk>>2)*8192}")
    def gmf(g):
        base = 32 + 32 * (g & 1)
        for j in range(4):
            c = "0" if (g == 0 and j == 0) else f"v[{ACCA}:{ACCA+15}]"
            a(f"v_mfma_f32_32x32x16_bf16 v[{ACCA}:{ACCA+15}], v[{base+4*j}:{base+3+4*j}], v[{base+16+4*j}:{base+19+4*j}], {c}")
    grd(0)
    for g in range(4):
        if g + 1 < 4:
            grd(g + 1); a("s_waitcnt lgkmcnt(12)")
        else:
            a("s_waitcnt lgkmcnt(0)")
        gmf(g)
    a(f"""
s_lshl_b32 s80, {S_WAVE}, 13
s_add_u32 s80, s80, {L_OB}
s_lshl_b32 s81, {S_P0}, 10
s_lshl_b32 s48, {S_WAVE}, 7
s_add_u32 s81, s81, s48
s_add_u32 s81, s81, {WS_OB}
s_lshr_b32 s48, {S_WAVE}, 2
s_lshl_b32 s48, s48, 15
s_add_u32 s48, s48, {L_OB}
v_add_u32 v20, s48, v{OFA}
v_add_u32 v21, s48, v{OFA+1}
v_add_u32 v22, s48, v{OFA+2}
v_add_u32 v23, s48, v{OFA+3}
s_and_b32 s48, {S_WAVE}, 3
s_lshl_b32 s48, s48, 12
v_add_u32 v25, s48, {vL16}
v_add_u32 v14, s80, {vL16}
s_lshl_b32 s85, {S_HG}, 7
s_bfe_u32 s49, {S_WAVE}, 0x10001
s_lshl_b32 s49, s49, 6
s_add_u32 s85, s85, s49
s_mov_b32 s49, 0
""")
    stamp(42)
    a("s_barrier")
    a("s_branch L_t_first")
    a("L_t_retry:")
    a(f"s_sleep {int(os.environ.get('TSLEEP', '4'))}")
    a("L_t_first:")
    for n in range(8):
        a(f"s_add_u32 m0, s80, {n*1024}")
        a(f"s_add_u32 s95, s81, {(n>>2)*32768}")
        a(f"buffer_load_dwordx4 v{STP+(n&3)}, {SRD_WS}, s95 offen {os.environ.get('TLD', 'sc1')} lds")
    a(f"""
s_cmp_lg_u32 s49, 0
s_cbranch_scc1 L_t_noscale
""")
    for i in range(16): a(f"v_mul_f32 v{ACCA+i}, v9, v{ACCA+i}")
    a(f"""
L_t_noscale:
s_add_u32 s49, s49, 1
s_waitcnt vmcnt(0)
""")
    for n in range(8):
        a(f"ds_read_b128 v[{32+4*n}:{35+4*n}], v14 offset:{n*1024}")
    for n in range(8):
        a(f"s_waitcnt lgkmcnt({7-n})")
        if n == 0: a("v_max_u32 v12, v32, v33")
        else: a(f"v_max3_u32 v12, v12, v{32+4*n}, v{33+4*n}")
        a(f"v_max3_u32 v12, v12, v{34+4*n}, v{35+4*n}")
    a(f"""
v_cmp_eq_u32 vcc, -1, v12
s_cmp_ge_u32 s49, {SPIN_MAX // 4}
s_cbranch_scc1 L_t_go
s_cbranch_vccnz L_t_retry
L_t_go:
""")
    stamp(43)
    a("s_barrier   ; B_6")
    stamp(44)
    OF = lambda kk: 32 + 4 * kk
    ACC2 = ACCA
    for kk in range(8):
        a(f"ds_read_b128 v[{OF(kk)}:{OF(kk)+3}], v{20+(kk&3)} offset:{(kk>>2)*8192}")
    for kk in range(16):
        a(f"s_waitcnt lgkmcnt({min(7, 15-kk)})")
        a(f"v_mfma_f32_32x32x16_bf16 v[{ACC2}:{ACC2+15}], v[{BW+4*kk}:{BW+3+4*kk}], v[{OF(kk)}:{OF(kk)+3}], v[{ACC2}:{ACC2+15}]")
        if kk + 8 < 16:
            a(f"ds_read_b128 v[{OF(kk+8)}:{OF(kk+8)+3}], v{20+(kk&3)} offset:{((kk+8)>>2)*8192}")
    a(f"""
s_cmp_lt_u32 {S_WAVE}, 4
s_cbranch_scc1 L_t_nowr
""")
    for i in range(4):
        a(f"ds_write_b128 v25, v[{ACC2+4*i}:{ACC2+4*i+3}] offset:{L_RED + i*1024}")
    a("""
s_waitcnt lgkmcnt(0)
s_barrier   ; B_7
s_branch L_fin
L_t_nowr:
s_nop 4
s_barrier   ; B_7
""")
    for i in range(4):
        a(f"ds_read_b128 v[{32+4*i}:{35+4*i}], v25 offset:{L_RED + i*1024}")
    a("s_waitcnt lgkmcnt(0)")
    for i in range(16): a(f"v_add_f32 v{32+i}, v{32+i}, v{ACC2+i}")
    for i in range(8): a(f"v_cvt_pk_bf16_f32 v{48+i}, v{32+2*i}, v{32+2*i+1}")
    a("""
v_permlane32_swap_b32 v48, v50
v_permlane32_swap_b32 v49, v51
v_permlane32_swap_b32 v52, v54
v_permlane32_swap_b32 v53, v55
""")
    a(f"buffer_store_dwordx4 v[48:51], v24, {SRD_OUT}, s85 offen")
    a(f"buffer_store_dwordx4 v[52:55], v24, {SRD_OUT}, s85 offen offset:32")
    a("L_fin:")
    stamp(45)

def build():
    here = os.path.dirname(os.path.abspath(__file__))
    a.raw(open(os.path.join(here, "header.txt")).read())
    a.raw(f"; @launch grid=(256,1,1) block=(512,1,1) lds={LDS_BYTES}")
    a.raw('.amdgcn_target "amdgcn-amd-amdhsa--gfx950"\n.text')
    a.raw(f".globl {NAME}_kernel\n.p2align 8\n.type {NAME}_kernel,@function\n{NAME}_kernel:")
    prologue()
    g_phase1()
    a("s_branch L_join1")
    aux_phase1()
    a("L_join1:")
    a.fence(4)
    phase2_start()
    phase2_loop()
    fallback()
    phase3()
    prof_dump()
    a("L_end:")
    a("s_endpgm")
    a.raw(f""".section .rodata,"a"
.p2align 6
.amdhsa_kernel {NAME}_kernel
  .amdhsa_next_free_vgpr 256
  .amdhsa_next_free_sgpr 102
  .amdhsa_accum_offset 256
  .amdhsa_group_segment_fixed_size 0
  .amdhsa_kernarg_size 96
  .amdhsa_user_sgpr_count 2
  .amdhsa_user_sgpr_kernarg_segment_ptr 1
  .amdhsa_system_sgpr_workgroup_id_x 1
.end_amdhsa_kernel""")
    open(sys.argv[1], "w").write(a.text())
    print("nops inserted:", a.nops, "lines:", len(a.lines))

build()
```

```python
import sys, struct, os
from dsl import Asm, VM

NAME = "gated_mix__sliding_local_dilated__grouped_kv_mqa__prompt"
WS_KV = 0x0
WS_G = 0x2C000
WS_FL = 0x24000
WS_OA = 0x100000
WS_OB = 0x300000
WS_PROF = 0x1C00000
WS_SIZE = 0x2000000
XBLK = 20480
L_RING = 81920
L_WK = 147456
L_T = 98304
L_QB = 147456
SCR_D = 3 * XBLK
SCR_G = 2 * XBLK
L_GO = 36864
L_KMAX = L_T + 30720
L_OAT = 131072
R0, R1, R2 = 65536, 98304, 131072
L_RED, L_FLAG, L_OB = 0, 16384, 65536
LDS_BYTES = 163840
LOG2E = 1.4426950408889634
QSCALE = 0.25 * LOG2E
SPIN_MAX = 1 << 15
def f32(x): return "0x%08x" % struct.unpack("<I", struct.pack("<f", x))[0]

PROF = len(sys.argv) > 2 and sys.argv[2] == "prof"
OPT = set(sys.argv[3:]) | {"nopf"}

a = Asm()
S_WAVE, S_PB, S_HG, S_P0, S_U4, S_A = "s3", "s4", "s5", "s6", "s7", "s90"
SRD_X, SRD_W, SRD_WS, SRD_DBG, SRD_WK, SRD_GT, SRD_AWO, SRD_BWO, SRD_OUT = [f"s[{8+4*i}:{11+4*i}]" for i in range(9)]
vAK, vAQ, vAV, vAO = "v208", "v209", "v210", "v211"
CM, CM0, ONES, VF = 212, 216, 220, 224
vL16, vVA, vJ, vWOP = "v240", "v241", "v242", "v243"
STP, OFA = 244, 248
vWOF, vFLG = "v252", "v253"
AQR, APR = 192, 200
C_, SA, SB, O_, P_, KF, ACCA, BW, BO = 32, 48, 64, 80, 96, 104, 112, 128, 160

def stamp(i):
    if PROF:
        a(f"""s_memtime s[100:101]
s_waitcnt lgkmcnt(0)
v_writelane_b32 v255, s100, {i}""")
def prof_dump():
    if PROF:
        a(f"""v_lshlrev_b32 v254, 2, v1
s_lshl_b32 s100, s2, 3
s_add_u32 s100, s100, {S_WAVE}
s_lshl_b32 s100, s100, 8
s_add_u32 s100, s100, {WS_PROF}
buffer_store_dword v255, v254, {SRD_WS}, s100 offen
s_waitcnt vmcnt(0)""")

def srd(idx, plo, size):
    b = 8 + 4 * idx
    a(f"""s_mov_b32 s{b}, s{plo}
s_and_b32 s{b+1}, s{plo+1}, 0xffff
s_mov_b32 s{b+2}, {size}
s_mov_b32 s{b+3}, 0x00020000""")

MAP = os.environ.get("MAP", "1")
ROT = os.environ.get("ROT", "4")

def mapcode():
    if MAP == "0":
        return f"""s_lshr_b32 s50, s48, 1
s_lshl_b32 s50, s50, 3
s_and_b32 s51, s49, 7
s_add_u32 {S_PB}, s50, s51
s_and_b32 s50, s48, 1
s_lshl_b32 s50, s50, 2
s_lshr_b32 s51, s49, 3
s_add_u32 {S_HG}, s50, s51
"""
    if MAP == "1":
        return f"""s_lshr_b32 s50, s48, 1
s_lshl_b32 s50, s50, 3
s_and_b32 s51, s49, 7
s_add_u32 {S_PB}, s50, s51
s_and_b32 s50, s48, 1
s_lshr_b32 s51, s49, 3
s_lshl_b32 s51, s51, 1
s_add_u32 {S_HG}, s50, s51
"""
    if MAP == "2":
        return f"""s_lshl_b32 s50, s48, 2
s_and_b32 s51, s49, 3
s_add_u32 {S_PB}, s50, s51
s_lshr_b32 {S_HG}, s49, 2
"""
def wgid_of():
    if MAP == "0":
        return f"""v_lshrrev_b32 v36, 2, v35
v_and_b32 v37, 3, v35
v_lshlrev_b32 v37, 6, v37
s_lshr_b32 s48, {S_PB}, 3
s_lshl_b32 s48, s48, 1
s_and_b32 s49, {S_PB}, 7
s_lshl_b32 s49, s49, 3
s_add_u32 s48, s48, s49
v_add3_u32 {vFLG}, v36, v37, s48
"""
    if MAP == "1":
        return f"""v_and_b32 v36, 1, v35
v_lshrrev_b32 v37, 1, v35
v_lshlrev_b32 v37, 6, v37
s_lshr_b32 s48, {S_PB}, 3
s_lshl_b32 s48, s48, 1
s_and_b32 s49, {S_PB}, 7
s_lshl_b32 s49, s49, 3
s_add_u32 s48, s48, s49
v_add3_u32 {vFLG}, v36, v37, s48
"""
    if MAP == "2":
        return f"""v_lshlrev_b32 v37, 5, v35
s_lshr_b32 s48, {S_PB}, 2
s_and_b32 s49, {S_PB}, 3
s_lshl_b32 s49, s49, 3
s_add_u32 s48, s48, s49
v_add_u32 {vFLG}, s48, v37
"""

def prologue():
    MAPCODE = mapcode()
    a(f"""
s_cmp_ge_u32 s2, 256
s_cbranch_scc1 L_end
s_load_dwordx16 s[64:79], s[0:1], 0
s_load_dwordx8 s[80:87], s[0:1], 64
v_and_b32 v1, 63, v0
v_lshrrev_b32 v2, 6, v0
s_and_b32 s48, s2, 7
s_lshr_b32 s49, s2, 3
v_readfirstlane_b32 {S_WAVE}, v2
{MAPCODE}s_lshl_b32 {S_P0}, {S_PB}, 6
s_lshl_b32 s88, {S_PB}, 3
s_add_u32 s88, s88, {S_HG}
s_and_b32 {S_A}, {S_WAVE}, 3
s_and_b32 {S_U4}, {S_HG}, 3
s_lshl_b32 s53, {S_A}, 10
s_mov_b32 s14, 1572864
s_mov_b32 s52, 3072
s_mov_b32 s15, 0x00020000
s_lshl_b32 s54, {S_HG}, 7
v_lshrrev_b32 v10, 4, v1
v_and_b32 v11, 15, v1
s_lshl_b32 s48, {S_A}, 2
v_add_u32 v12, s48, v10
v_xor_b32 v11, v11, v12
v_lshlrev_b32 v11, 4, v11
v_lshlrev_b32 v10, 10, v10
v_add_u32 v2, v10, v11
v_lshlrev_b32 {vL16}, 4, v1
s_sub_u32 s49, {S_P0}, 16
s_max_i32 s50, s49, 0
s_add_u32 s49, s49, s48
s_add_u32 s50, s50, s48
s_lshl_b32 s98, s49, 10
s_lshl_b32 s99, s50, 10
s_lshl_b32 s91, {S_A}, 10
""")
    for rel in range(4):
        a(f"""
s_add_u32 s48, {S_U4}, {rel}
s_and_b32 s48, s48, 3
s_add_u32 s48, s48, 1
s_lshl_b32 s49, s48, 12
s_add_u32 s{56+rel}, s49, s91
s_lshl_b32 s49, s48, 14
s_add_u32 s{60+rel}, s49, s98
""")
    a(f"""
s_lshr_b32 s97, {S_HG}, 1
s_add_u32 s97, s97, {S_PB}
s_and_b32 s97, s97, {dict(zip('0124', (0, 1, 1, 3)))[ROT]}
s_lshl_b32 s97, s97, {1 if ROT == '2' else 0}
""")
    for g in range(4):
        a(f"""
s_add_u32 s48, s97, {g}
s_and_b32 s48, s48, 3
s_lshl_b32 s{44+g}, s48, 8
""")
    a("s_waitcnt lgkmcnt(0)")
    srd(0, 64, 2048 * 1024)
    a(f"""
s_cmp_ge_u32 {S_HG}, 4
s_cselect_b32 s74, s76, s74
s_cselect_b32 s75, s77, s75
""")
    srd(4, 74, 16384)
    a(f"""
s_cmp_eq_u32 {S_A}, 3
s_cselect_b32 s12, s72, s66
s_cselect_b32 s13, s73, s67
s_cselect_b32 s14, 524288, s14
s_cselect_b32 s52, 1024, s52
s_cselect_b32 s53, 0, s53
s_and_b32 s13, s13, 0xffff
s_add_u32 s53, s53, s54
""")
    srd(2, 86, WS_SIZE)
    srd(3, 84, 256)
    srd(5, 80, 1024)
    srd(6, 68, 524288)
    srd(7, 78, 524288)
    srd(8, 82, 2048 * 1024)
    stamp(0)
    a(f"""
s_cmp_ge_u32 {S_WAVE}, 4
s_cbranch_scc1 L_aux
""")

def x_instr(vm, kb, rel, tag):
    a(f"s_add_u32 m0, {'s91' if rel == 4 else 's%d' % (56+rel)}, {kb*XBLK}")
    a(f"s_add_u32 s95, {'s99' if rel == 4 else 's%d' % (60+rel)}, s{44+kb}")
    a(f"buffer_load_dwordx4 v2, {SRD_X}, s95 offen lds")
    if vm: vm.issue(tag)

def setup_persistent():
    a.comment("---- persistent setup")
    a(f"""
v_and_b32 v32, 15, v1
v_lshrrev_b32 v33, 4, v1
s_mul_i32 s49, {S_A}, 2560
s_lshr_b32 s55, {S_WAVE}, 2
s_lshl_b32 s51, s55, 10
s_add_u32 s49, s49, s51
s_add_u32 s50, s49, {L_T + 4*2560}
v_lshlrev_b32 v34, 6, v32
v_lshlrev_b32 v35, 4, v33
v_add3_u32 {vAK}, v34, v35, s50
s_add_u32 s50, s49, {L_T + 512}
v_lshlrev_b32 v34, 5, v32
v_and_b32 v35, 1, v33
v_lshlrev_b32 v35, 4, v35
v_add3_u32 {vAQ}, v34, v35, s50
s_add_u32 s50, s49, {L_T + 8*2560}
v_bfe_u32 v34, v1, 2, 2
v_lshlrev_b32 v34, 6, v34
v_lshlrev_b32 v35, 8, v33
v_and_b32 v36, 3, v1
v_lshlrev_b32 v36, 3, v36
v_add3_u32 {vAV}, v34, v35, v36
v_add_u32 {vAV}, s50, {vAV}
v_lshlrev_b32 v34, 7, v32
s_lshl_b32 s50, s55, 12
s_lshl_b32 s51, {S_A}, 5
s_add_u32 s50, s50, s51
s_add_u32 s50, s50, {L_OAT}
v_lshlrev_b32 v35, 3, v33
v_add3_u32 {vAO}, v34, v35, s50
v_lshrrev_b32 v34, 1, v32
v_lshlrev_b32 v35, 2, v33
v_sub_u32 v36, v35, v34
v_mov_b32 v37, {f32(-1e30)}
s_add_u32 s50, {S_PB}, s55
s_cmp_eq_u32 s50, 0
s_cselect_b32 s50, 8, 0
""")
    for r in range(4):
        a(f"""
v_add_u32 v34, {r-1}, v36
v_add_u32 v38, {r}, v35
v_cmp_gt_u32 vcc, 8, v34
v_cmp_le_u32 s[48:49], s50, v38
v_cndmask_b32 v{CM+r}, v37, 0, vcc
v_cndmask_b32 v{CM0+r}, v37, v{CM+r}, s[48:49]
""")
    for i in range(4): a(f"v_mov_b32 v{ONES+i}, 0x3f803f80")
    a(f"""
v_and_b32 {vJ}, 31, v1
v_lshrrev_b32 v34, 5, v1
v_lshlrev_b32 v35, 4, {vJ}
v_lshlrev_b32 v36, 8, v34
v_add_u32 v35, v35, v36
v_add_u32 {vVA}, 8192, v35
v_and_b32 v35, 27, {vJ}
v_cmp_eq_u32 vcc, 16, v35
v_cndmask_b32 v{VF}, 0, v{ONES}, vcc
""")
    for i in range(1, 16): a(f"v_mov_b32 v{VF+i}, v{VF}")
    a(f"""
v_lshrrev_b32 v35, 3, v1
v_and_b32 v36, 7, v1
v_bfe_u32 v37, v1, 4, 1
v_lshlrev_b32 v37, 2, v37
v_xor_b32 v36, v36, v37
v_lshlrev_b32 v36, 4, v36
v_lshlrev_b32 v35, 10, v35
v_add_u32 {vWOP}, v35, v36
""")
    for n4 in range(4):
        a(f"""
v_add_u32 v35, {4*n4}, v33
v_xor_b32 v36, v32, v35
v_lshlrev_b32 v35, 1, v35
v_lshrrev_b32 v37, 3, v36
v_add_u32 v35, v35, v37
v_lshlrev_b32 v35, 10, v35
v_and_b32 v36, 7, v36
v_lshlrev_b32 v36, 4, v36
v_add_u32 v{STP+n4}, v35, v36
""")
    a(f"""
s_and_b32 s48, {S_WAVE}, 1
s_lshl_b32 s48, s48, 5
s_add_u32 s75, s48, {S_P0}
v_add_u32 v35, s48, {vJ}
v_lshrrev_b32 v36, 1, v35
v_and_b32 v37, 1, v35
v_lshlrev_b32 v37, 3, v37
v_or_b32 v37, v37, v34
v_and_b32 v38, 15, v36
v_xor_b32 v37, v37, v38
v_lshlrev_b32 v37, 4, v37
v_lshlrev_b32 v36, 8, v36
v_add_u32 v{OFA}, v36, v37
v_xor_b32 v{OFA+1}, 32, v{OFA}
v_xor_b32 v{OFA+2}, 64, v{OFA}
v_xor_b32 v{OFA+3}, 96, v{OFA}
s_lshl_b32 s84, s75, 10
s_lshr_b32 s48, {S_WAVE}, 1
s_lshl_b32 s48, s48, 7
s_add_u32 s84, s84, s48
s_lshl_b32 s79, {S_WAVE}, 11
s_lshl_b32 s73, {S_WAVE}, 12
s_lshl_b32 s74, {S_WAVE}, 15
s_lshl_b32 s48, {S_HG}, 7
s_add_u32 s74, s74, s48
s_mov_b32 s76, 0x0000ffff
s_mov_b32 s77, 0x0000ffff
s_mov_b32 s64, 0x55555555
s_mov_b32 s65, 0xaaaaaaaa
s_mov_b32 s66, 0x55555555
s_mov_b32 s67, 0x55555555
s_mov_b32 s68, 0xaaaaaaaa
s_mov_b32 s69, 0xaaaaaaaa
v_and_b32 v35, 7, v1
s_lshl_b32 s48, {S_PB}, 3
v_add_u32 {vFLG}, s48, v35
v_lshlrev_b32 {vFLG}, 7, {vFLG}
v_and_b32 v36, 1, v33
v_lshrrev_b32 v37, 1, v33
v_bfe_u32 v38, v1, 2, 2
v_lshlrev_b32 v37, 2, v37
v_add_u32 v37, v37, v38
v_lshlrev_b32 v37, 7, v37
v_lshrrev_b32 v38, 1, v38
s_bfe_u32 s49, {S_WAVE}, 0x10001
v_xor_b32 v38, s49, v38
v_lshlrev_b32 v38, 6, v38
v_lshlrev_b32 v36, 5, v36
v_add3_u32 v38, v38, v37, v36
v_and_b32 v36, 3, v1
v_lshlrev_b32 v36, 3, v36
v_add_u32 {vWOF}, v38, v36
""")

def PF(lo, hi):
    if "nopf" in OPT: return
    mask = ((1 << (4*hi)) - 1) ^ ((1 << (4*lo)) - 1)
    a(f"""
s_mov_b32 s48, {mask & 0xffffffff}
s_mov_b32 s49, {mask >> 32}
s_mov_b64 exec, s[48:49]
buffer_load_dword v29, v28, {SRD_W}, s53 offen
""")
    if MAP == "2": a(f"buffer_load_dword v29, v28, {SRD_W}, s89 offen")
    a("s_mov_b64 exec, -1")
NPF = 0 if "nopf" in OPT else (2 if os.environ.get("MAP", "1") == "2" else 1)

def g_phase1():
    a.comment("==== G waves (0..3)")
    a(f"""
s_cmp_lt_u32 {S_HG}, 4
s_cbranch_scc1 L_g_nogate
v_lshrrev_b32 v7, 4, v1
v_lshlrev_b32 v7, 4, v7
s_add_u32 s50, {S_WAVE}, s97
s_and_b32 s50, s50, 3
s_lshl_b32 s50, s50, 8
s_mov_b32 s48, 0x00010001
s_mov_b32 s49, 0x00010001
s_mov_b64 exec, s[48:49]
""")
    for ks in range(4):
        a(f"buffer_load_dwordx4 v[{64+4*ks}:{67+4*ks}], v7, {SRD_GT}, s50 offen offset:{ks*64}")
    a(f"""
s_mov_b64 exec, -1
L_g_nogate:
v_lshrrev_b32 v4, 2, v1
s_lshl_b32 s48, s97, 2
v_add_u32 v4, s48, v4
v_and_b32 v4, 15, v4
v_lshlrev_b32 v4, 5, v4
v_and_b32 v3, 3, v1
s_and_b32 s48, {S_PB}, {3 if MAP == "2" else 7}
s_lshl_b32 s48, s48, {3 if MAP == "2" else 2}
v_add3_u32 v4, v4, v3, s48
v_mul_lo_u32 v28, v4, s52
s_lshl_b32 s89, s52, 2
s_add_u32 s89, s89, s53
""")
    a("v_mov_b32 v30, v2")
    PFM = os.environ.get("PFM", "0")
    def PFX(w):
        a(f"""
s_cmp_lg_u32 {S_WAVE}, {w}
s_cbranch_scc1 L_pfx{w}
s_lshr_b32 s48, {S_HG}, 1
s_lshl_b32 s48, s48, 4
s_add_u32 s48, s48, {S_P0}
v_bfe_u32 v3, v1, 1, 4
v_add_u32 v3, s48, v3
v_lshlrev_b32 v3, 10, v3
v_lshrrev_b32 v4, 5, v1
v_lshlrev_b32 v4, 8, v4
v_and_b32 v5, 1, v1
v_lshlrev_b32 v5, 7, v5
v_add3_u32 v3, v3, v4, v5
buffer_load_dword v29, v3, {SRD_X}, 0 offen offset:{w*512}
L_pfx{w}:
""")
    if PFM == "a": PFX(0); PF(0, 16); PFX(1)
    if PFM == "b": PFX(0); PF(0, 8)
    if PFM == "c": PFX(0); PF(0, 6)
    setup_persistent()
    a(f"""
v_lshrrev_b32 v11, 5, v1
v_add_u32 v12, 16, {vJ}
v_and_b32 v13, 15, v12
v_xor_b32 v13, v13, v11
v_lshlrev_b32 v13, 4, v13
v_lshlrev_b32 v12, 8, v12
v_add_u32 v16, v12, v13
v_xor_b32 v17, 32, v16
v_xor_b32 v18, 64, v16
v_xor_b32 v19, 96, v16
v_xor_b32 v20, 128, v16
v_xor_b32 v21, 160, v16
v_xor_b32 v22, 192, v16
v_xor_b32 v23, 224, v16
v_lshrrev_b32 v10, 4, v1
v_and_b32 v11, 1, v10
v_lshrrev_b32 v10, 1, v10
v_bfe_u32 v12, v1, 2, 2
v_and_b32 v13, 3, v1
v_lshlrev_b32 v14, 3, v10
v_add_u32 v14, v14, v12
v_lshlrev_b32 v14, 7, v14
v_lshrrev_b32 v15, 1, v12
v_lshlrev_b32 v15, 6, v15
v_lshlrev_b32 v11, 5, v11
v_lshlrev_b32 v13, 3, v13
v_add3_u32 v14, v14, v15, v11
v_add_u32 v14, v14, v13
s_lshl_b32 s48, {S_WAVE}, 12
s_add_u32 s48, s48, {L_RING}
v_add_u32 v6, s48, v14
v_xor_b32 v7, 64, v6
""")
    kv_partial()
    a(f"""
v_lshrrev_b32 v11, 5, v1
v_lshlrev_b32 v10, 5, {vJ}
v_lshlrev_b32 v11, 4, v11
s_mul_i32 s49, {S_WAVE}, 10240
s_add_u32 s49, s49, {L_T}
v_add3_u32 v8, v10, v11, s49
v_add_u32 v9, {L_QB - 512}, {vL16}
s_movk_i32 s50, 2560
s_cmp_eq_u32 {S_WAVE}, 3
s_cselect_b64 vcc, -1, 0
s_cselect_b32 s50, 2048, s50
v_cndmask_b32 v8, v8, v9, vcc
v_add_u32 v9, s50, v8
v_add_u32 v10, s50, v9
v_add_u32 v11, s50, v10
v_mov_b32 v2, v30
v_and_b32 v3, 16, v1
v_lshlrev_b32 v3, 8, v3
v_add_u32 v3, 4096, v3
""")
    a(f"""
s_lshr_b32 s48, {S_WAVE}, 1
s_add_u32 s48, s48, 1
s_add_u32 s49, {S_WAVE}, 1
s_lshr_b32 s49, s49, 1
s_and_b32 s49, s49, 1
s_xor_b32 s49, s49, 1
s_sub_u32 s50, s48, {S_WAVE}
s_lshl_b32 s50, s50, 12
v_add_u32 v24, s50, v6
s_lshl_b32 s50, s49, 6
v_xor_b32 v24, s50, v24
s_lshl_b32 s48, s48, 2
s_lshl_b32 s49, s49, 1
s_add_u32 s48, s48, s49
s_mul_i32 s48, s48, 2560
s_add_u32 s48, s48, {L_T}
v_lshrrev_b32 v26, 5, v1
v_lshlrev_b32 v25, 5, {vJ}
v_lshlrev_b32 v26, 4, v26
v_add3_u32 v25, v25, v26, s48
""")
    XB = lambda buf, mt, ks2: 128 + 32 * buf + 4 * (2 * mt + ks2)
    WB = lambda buf, nt, ks2: 144 + 32 * buf + 4 * (2 * nt + ks2)
    ACC = lambda nt, mt: 64 + 16 * (2 * nt + mt)
    def reads(s):
        buf = s & 1; slot = s & 3; out = []
        for ks2 in range(2):
            k16 = 2 * s + ks2
            for nt in range(2):
                r = WB(buf, nt, ks2)
                for half in range(2):
                    off = slot * 16384 + (16 * ks2 + 4 * half) * 128
                    out.append(f"ds_read_b64_tr_b16 v[{r+2*half}:{r+2*half+1}], v{6+nt} offset:{off}")
            for mt in range(2):
                off = ((k16 >> 3) & 1) * XBLK + mt * 8192
                r = XB(buf, mt, ks2)
                out.append(f"ds_read_b128 v[{r}:{r+3}], v{16+(k16&7)} offset:{off}")
        return out
    def mf(s, ks2, nt, mt):
        buf = s & 1
        d = ACC(nt, mt); w = WB(buf, nt, ks2); x = XB(buf, mt, ks2)
        c = "0" if (s == 0 and ks2 == 0) else f"v[{d}:{d+15}]"
        return f"v_mfma_f32_32x32x16_bf16 v[{d}:{d+15}], v[{w}:{w+3}], v[{x}:{x+3}], {c}"
    HXB = lambda buf, ks2: 192 + 8 * buf + 4 * ks2
    HWB = lambda buf, ks2: 48 + 8 * buf + 4 * ks2
    HACC = 32
    def hreads(s):
        buf = s & 1; slot = s & 3; out = []
        for ks2 in range(2):
            k16 = 2 * s + ks2
            out.append(f"v_sub_u32 v{4+ks2}, v{16+(k16&7)}, v3")
            out.append(f"ds_read_b128 v[{HXB(buf,ks2)}:{HXB(buf,ks2)+3}], v{4+ks2} offset:{((k16 >> 3) & 1) * XBLK}")
            for half in range(2):
                r = HWB(buf, ks2) + 2 * half
                out.append(f"ds_read_b64_tr_b16 v[{r}:{r+1}], v24 offset:{slot * 16384 + (16 * ks2 + 4 * half) * 128}")
        return out
    def hmf(s, ks2):
        buf = s & 1; d = HACC; w = HWB(buf, ks2); x = HXB(buf, ks2)
        c = "0" if (s == 0 and ks2 == 0) else f"v[{d}:{d+15}]"
        return f"v_mfma_f32_32x32x16_bf16 v[{d}:{d+15}], v[{w}:{w+3}], v[{x}:{x+3}], {c}"
    vg = VM(a)
    xsched = {0: [(1, 1), (1, 2)], 1: [(1, 3), (1, 4)]}
    for i in range(8): xsched[2 + i] = [(2 + (i >> 2), 1 + (i & 3))]
    for s in range(16):
        if s == 4: vg.wait("X1")
        if s == 8: vg.wait("X2")
        if s == 12: vg.wait("X3")
        a(f"s_barrier   ; B_{s}")
        if s in (0, 4, 8, 12, 15): stamp(8 + s)
        if s == 8:
            for i in range(8): a(f"v_add_u32 v{16+i}, {2*XBLK}, v{16+i}")
        R = reads(s) + hreads(s)
        M = ([mf(s - 1, ks2, nt, mt) for ks2 in range(2) for nt in range(2) for mt in range(2)] + [hmf(s - 1, 0), hmf(s - 1, 1)]) if s > 0 else []
        while R or M:
            if M: a(M.pop(0))
            for _ in range(3):
                if R: a(R.pop(0))
        for (kb, rel) in xsched.get(s, []): x_instr(vg, kb, rel, f"X{kb}")
        if PFM == "0":
            if s == 0: PF(4, 8); vg.issue("pf", NPF)
            if s == 2: PF(8, 12); vg.issue("pf", NPF)
            if s == 5: PF(12, 16); vg.issue("pf", NPF)
        if PFM == "b" and s == 0: PF(8, 16); vg.issue("pf", NPF); a("v_mov_b32 v31, v3"); PFX(1); a("v_mov_b32 v3, v31")
        if PFM == "c" and s == 0: PF(6, 11); vg.issue("pf", NPF); a("v_mov_b32 v31, v3"); PFX(1); a("v_mov_b32 v3, v31")
        if PFM == "c" and s == 3: PF(11, 16); vg.issue("pf", NPF)
        if s == 3:
            a(f"""
s_cmp_lg_u32 {S_WAVE}, 0
s_cbranch_scc1 L_g_noarr
s_and_b32 s48, s2, 3
s_lshl_b32 s48, s48, 6
v_mov_b32 v12, s48
v_mov_b32 v13, 1
s_mov_b64 exec, 1
buffer_atomic_add v13, v12, {SRD_DBG}, 0 offen sc1
s_mov_b64 exec, -1
L_g_noarr:
""")
        a("s_waitcnt lgkmcnt(0)")
    tiles = [(nt, mt) for nt in range(2) for mt in range(2)]
    def pack(n):
        nt, mt = tiles[n]; d = ACC(nt, mt)
        for hh in range(2):
            p = 128 + 4 * (2 * n + hh)
            for e in range(4):
                a(f"v_cvt_pk_bf16_f32 v{p+e}, v{d+8*hh+2*e}, v{d+8*hh+2*e+1}")
            a(f"ds_write_b128 v{8+2*nt+hh}, v[{p}:{p+3}] offset:{mt*1024 + 512}")
    a(hmf(15, 0)); a(hmf(15, 1))
    for n, (nt, mt) in enumerate(tiles):
        a(mf(15, 0, nt, mt)); a(mf(15, 1, nt, mt))
        if n == 1:
            a("s_mov_b64 exec, s[76:77]")
            for hh in range(2):
                p = 48 + 4 * hh
                for e in range(4):
                    a(f"v_cvt_pk_bf16_f32 v{p+e}, v{HACC+8*hh+2*e}, v{HACC+8*hh+2*e+1}")
                a(f"ds_write_b128 v25, v[{p}:{p+3}] offset:{hh*2560}")
            a("s_mov_b64 exec, -1")
        if n >= 2: pack(n - 2)
    pack(2); pack(3)
    for i in range(16): a(f"v_mov_b32 v{AQR+i}, 0")
    a("s_waitcnt lgkmcnt(0)")
    stamp(30)
    a("s_barrier   ; B_e")
    stamp(31)

def kv_partial():
    a.comment("---- KV partial: G wave j handles k-block j of rows 16+16*u4+i")
    a(f"""
s_lshl_b32 s48, {S_U4}, 4
s_add_u32 s48, s48, 16
v_and_b32 v12, 15, v1
v_lshrrev_b32 v13, 4, v1
v_add_u32 v14, s48, v12
v_lshlrev_b32 v14, 8, v14
v_xor_b32 v15, v12, v13
v_lshlrev_b32 v15, 4, v15
s_mul_i32 s49, {S_WAVE}, {XBLK}
v_add3_u32 v2, v15, v14, s49
v_xor_b32 v3, 64, v2
v_xor_b32 v4, 128, v2
v_xor_b32 v5, 192, v2
v_bfe_u32 v14, v1, 2, 2
v_lshlrev_b32 v15, 3, v13
v_add_u32 v15, v15, v14
v_lshlrev_b32 v15, 5, v15
v_and_b32 v14, 3, v1
v_lshlrev_b32 v14, 3, v14
s_add_u32 s49, {S_WAVE}, s97
s_and_b32 s49, s49, 3
s_lshl_b32 s49, s49, 12
s_add_u32 s49, s49, {L_WK}
v_add3_u32 v8, v15, v14, s49
s_lshl_b32 s49, {S_WAVE}, 10
s_add_u32 s49, s49, {SCR_D}
v_add_u32 v9, s49, {vL16}
v_lshlrev_b32 v10, 2, v1
s_lshl_b32 s49, {S_WAVE}, 8
s_add_u32 s49, s49, {SCR_G}
v_add_u32 v10, s49, v10
""")
    stamp(3)
    a("s_waitcnt vmcnt(%d)" % (0 if os.environ.get("PFM", "0") == "0" else NPF))
    a("s_barrier   ; B_kv")
    stamp(4)
    for ks in range(4):
        a(f"ds_read_b128 v[{192+4*ks}:{195+4*ks}], v{2+ks}")
        for half in range(2):
            a(f"ds_read_b64_tr_b16 v[{128+4*ks+2*half}:{129+4*ks+2*half}], v8 offset:{ks*1024 + half*128}")
    a(f"s_cmp_ge_u32 {S_HG}, 4")
    a("s_cbranch_scc1 L_kv_V")
    for isV in (False, True):
        for ks in range(4):
            a(f"s_waitcnt lgkmcnt({3*(3-ks)})")
            w = f"v[{128+4*ks}:{131+4*ks}]"; x = f"v[{192+4*ks}:{195+4*ks}]"
            c0 = "0" if ks == 0 else "v[24:27]"; c1 = "0" if ks == 0 else "v[32:35]"
            if isV:
                a(f"v_mfma_f32_16x16x32_bf16 v[32:35], v[{64+4*ks}:{67+4*ks}], {x}, {c1}")
                a(f"v_mfma_f32_16x16x32_bf16 v[24:27], {x}, {w}, {c0}")
            else:
                a(f"v_mfma_f32_16x16x32_bf16 v[24:27], {w}, {x}, {c0}")
        if isV:
            a("ds_write_b32 v10, v32")
        else:
            a("s_branch L_kv_done")
            a("L_kv_V:")
    a("L_kv_done:")
    a.fence(8)
    a("ds_write_b128 v9, v[24:27]")
    a("s_waitcnt lgkmcnt(0)")
    stamp(5)

def kv_final():
    a.comment("---- KV finalize (aux wave 3)")
    a(f"""
s_cmp_lg_u32 {S_A}, 3
s_cbranch_scc1 L_kvf_done
v_lshlrev_b32 v41, 2, v1
ds_read_b128 v[44:47], {vL16} offset:{SCR_D}
ds_read_b128 v[48:51], {vL16} offset:{SCR_D+1024}
ds_read_b128 v[52:55], {vL16} offset:{SCR_D+2048}
ds_read_b128 v[56:59], {vL16} offset:{SCR_D+3072}
ds_read_b32 v60, v41 offset:{SCR_G}
ds_read_b32 v61, v41 offset:{SCR_G+256}
ds_read_b32 v62, v41 offset:{SCR_G+512}
ds_read_b32 v63, v41 offset:{SCR_G+768}
s_lshl_b32 s48, {S_PB}, 1
s_lshr_b32 s49, {S_U4}, 1
s_add_u32 s48, s48, s49
s_lshr_b32 s49, s48, 3
s_lshl_b32 s49, s49, 14
s_and_b32 s51, s48, 7
s_lshl_b32 s51, s51, 10
s_add_u32 s49, s49, s51
s_and_b32 s50, {S_U4}, 1
v_and_b32 v42, 15, v1
v_bfe_u32 v43, v1, 4, 1
v_lshlrev_b32 v40, 4, v42
v_lshrrev_b32 v41, 5, v1
v_lshlrev_b32 v41, 3, v41
v_add_u32 v41, v41, v40
s_waitcnt lgkmcnt(4)
""")
    for r in range(4):
        a(f"v_add_f32 v{44+r}, v{44+r}, v{48+r}")
        a(f"v_add_f32 v{52+r}, v{52+r}, v{56+r}")
    for r in range(4):
        a(f"v_add_f32 v{44+r}, v{44+r}, v{52+r}")
    a(f"""
s_cmp_ge_u32 {S_HG}, 4
s_cbranch_scc1 L_kvf_V
s_lshl_b32 s51, s50, 8
s_add_u32 s49, s49, s51
v_lshlrev_b32 v43, 9, v43
v_add_u32 v43, v43, v41
s_mov_b32 s51, {f32(QSCALE)}
v_mul_f32 v44, s51, v44
v_mul_f32 v45, s51, v45
v_mul_f32 v46, s51, v46
v_mul_f32 v47, s51, v47
v_cvt_pk_bf16_f32 v48, v44, v45
v_cvt_pk_bf16_f32 v49, v46, v47
buffer_store_dwordx2 v[48:49], v43, {SRD_WS}, s49 offen sc1
v_mul_f32 v52, v44, v44
v_fmac_f32 v52, v45, v45
v_fmac_f32 v52, v46, v46
v_fmac_f32 v52, v47, v47
v_mov_b32 v53, v52
v_permlane32_swap_b32 v52, v53
v_add_f32 v52, v52, v53
v_mov_b32 v53, v52
v_permlane16_swap_b32 v52, v53
v_add_f32 v52, v52, v53
v_max_f32_dpp v52, v52, v52 row_ror:8 row_mask:0xf bank_mask:0xf
v_max_f32_dpp v52, v52, v52 row_ror:4 row_mask:0xf bank_mask:0xf
v_max_f32_dpp v52, v52, v52 row_ror:2 row_mask:0xf bank_mask:0xf
v_max_f32_dpp v52, v52, v52 row_ror:1 row_mask:0xf bank_mask:0xf
s_lshl_b32 s48, s88, 7
s_add_u32 s48, s48, {WS_FL + 12}
v_mov_b32 v53, s48
s_mov_b64 exec, 1
buffer_store_dword v52, v53, {SRD_WS}, 0 offen sc1
s_mov_b64 exec, -1
s_branch L_kvf_done
L_kvf_V:
s_lshl_b32 s51, s50, 9
s_add_u32 s49, s49, s51
s_add_u32 s49, s49, 8192
v_lshlrev_b32 v43, 8, v43
v_add_u32 v43, v43, v41
v_cvt_pk_bf16_f32 v48, v44, v45
v_cvt_pk_bf16_f32 v49, v46, v47
buffer_store_dwordx2 v[48:49], v43, {SRD_WS}, s49 offen sc1
s_waitcnt lgkmcnt(0)
v_add_f32 v60, v60, v61
v_add_f32 v62, v62, v63
v_add_f32 v60, v60, v62
v_mul_f32 v60, {f32(-LOG2E)}, v60
v_exp_f32 v60, v60
v_add_f32 v60, 1.0, v60
v_rcp_f32 v60, v60
s_lshl_b32 s48, {S_PB}, 2
s_add_u32 s48, s48, {S_U4}
s_lshl_b32 s48, s48, 7
v_lshlrev_b32 v53, 2, v42
s_add_u32 s49, s48, {WS_G}
s_mov_b64 exec, 0xffff
buffer_store_dword v60, v53, {SRD_WS}, s49 offen sc1
s_mov_b64 exec, -1
L_kvf_done:
""")
    a.fence(2)

def c0_dma():
    a(f"""
s_lshl_b32 s72, {S_A}, 13
v_lshrrev_b32 v8, 2, v1
v_lshlrev_b32 v8, 3, v8
v_and_b32 v9, 3, v1
v_add_u32 v8, v8, v9
v_lshlrev_b32 v8, 7, v8
s_lshl_b32 s48, {S_A}, 14
s_and_b32 s48, s48, 0x4000
s_add_u32 s48, s48, {WS_FL + 12}
""")
    for i in range(8):
        a(f"s_add_u32 m0, s72, {(i>>2)*4096}")
        a(f"s_add_u32 s95, s72, {WS_KV + (i>>2)*4096}")
        a(f"buffer_load_dwordx4 {vL16}, {SRD_WS}, s95 offen offset:{(i&3)*1024} sc1 lds")
    a(f"buffer_load_dword v96, v8, {SRD_WS}, s48 offen sc1")

def issue_w(vm, s):
    slot = s & 3
    if s % 4 == 0:
        a(f"s_lshr_b32 s94, s52, 1")
        a(f"s_mul_i32 s94, s94, s{44 + s // 4}")
        a("s_sub_u32 s94, s94, s93")
    for i in range(4):
        a(f"s_add_u32 m0, s92, {slot*16384 + i*1024}")
        a("s_add_u32 s94, s94, s93")
        a(f"buffer_load_dwordx4 v5, {SRD_W}, s94 offen lds")
        vm.issue(f"S{s}")

def aux_phase1():
    a("L_aux:")
    a.fence(4)
    vm = VM(a)
    a(f"s_lshl_b32 s96, {S_A}, 12")
    for kb in range(4):
        x_instr(vm, kb, 0, "KV")
        a(f"s_add_u32 m0, s96, {L_WK}")
        a("s_nop 0")
        a(f"buffer_load_dwordx4 {vL16}, {SRD_WK}, s96 offen offset:{kb*1024} lds")
        vm.issue("KV")
    a(f"""
v_lshrrev_b32 v10, 3, v1
v_and_b32 v11, 7, v1
v_bfe_u32 v12, v1, 4, 1
v_lshlrev_b32 v12, 2, v12
v_xor_b32 v11, v11, v12
v_lshlrev_b32 v11, 4, v11
v_mul_lo_u32 v10, v10, s52
v_add3_u32 v5, v10, v11, s53
s_lshl_b32 s92, {S_A}, 12
s_add_u32 s92, s92, {L_RING}
s_lshl_b32 s93, s52, 3
s_sub_u32 s94, 0, s93
""")
    for rel in (1, 2, 3, 4): x_instr(vm, 0, rel, "S0")
    issue_w(vm, 0)
    W1E = os.environ.get("W1E", "0") == "1"
    if W1E: issue_w(vm, 1)
    a(f"""
s_cmp_lg_u32 {S_A}, 3
s_cbranch_scc1 L_aux_norst
s_lshl_b32 s48, s88, 7
s_add_u32 s48, s48, {WS_FL}
v_mov_b32 v8, s48
v_mov_b32 v10, 0
v_mov_b32 v11, 0
s_mov_b64 exec, 1
buffer_store_dwordx2 v[10:11], v8, {SRD_WS}, 0 offen offset:4 sc1
s_mov_b64 exec, -1
L_aux_norst:
""")
    setup_persistent()
    for i in range(16): a(f"v_mov_b32 v{AQR+i}, 0")
    a(f"""
v_and_b32 v37, 3, v1
v_lshlrev_b32 v37, 6, v37
v_mov_b32 v38, {L_GO}
""")
    stamp(1)
    vm.wait("KV")
    stamp(3)
    a("s_barrier   ; B_kv")
    if not W1E: issue_w(vm, 1); issue_w(vm, 2)
    for s in range(16):
        if s >= 14:
            n = 4 * (15 - s)
            a(f"""
s_cmp_eq_u32 s83, 1
s_cbranch_scc1 L_aux_w{s}a
s_waitcnt vmcnt({n})
L_aux_w{s}a:
s_waitcnt vmcnt({n + 9})
""")
        else:
            vm.wait(f"S{s}")
        if s == 13:
            a(f"""
s_cmp_lg_u32 {S_A}, 0
s_cbranch_scc1 L_aux_nogo
v_cmp_ne_u32 vcc, 64, v9
s_cmp_eq_u64 vcc, 0
s_cselect_b32 s48, 1, 0
v_mov_b32 v9, s48
ds_write_b32 v38, v9
s_waitcnt lgkmcnt(0)
L_aux_nogo:
""")
        if s in (4, 8, 12, 15): stamp(40 + s)
        a(f"s_barrier   ; B_{s}")
        if s == 10:
            a(f"""
s_cmp_lg_u32 {S_A}, 0
s_cbranch_scc1 L_aux_nopoll
buffer_load_dword v9, v37, {SRD_DBG}, 0 offen sc1
L_aux_nopoll:
""")
        if s == 0:
            if W1E: issue_w(vm, 2)
            kv_final(); issue_w(vm, 3)
        if 1 <= s and s + 3 < 16: issue_w(vm, s + 3)
        if s == 13:
            a(f"""
ds_read_b32 v9, v38
s_waitcnt lgkmcnt(0)
v_readfirstlane_b32 s83, v9
s_cmp_eq_u32 s83, 1
s_cbranch_scc0 L_aux_noearly
""")
            c0_dma()
            a("L_aux_noearly:")
    a(f"""
s_cmp_eq_u32 s83, 1
s_cbranch_scc1 L_aux_have
s_mov_b32 s49, 0
L_poll_go:
buffer_load_dword v9, v37, {SRD_DBG}, 0 offen sc1
s_add_u32 s49, s49, 1
s_waitcnt vmcnt(0)
v_cmp_ne_u32 vcc, 64, v9
s_cmp_ge_u32 s49, {SPIN_MAX}
s_cbranch_scc1 L_poll_go_done
s_cbranch_vccz L_poll_go_done
s_sleep 4
s_branch L_poll_go
L_poll_go_done:
""")
    stamp(34)
    c0_dma()
    a(f"""
L_aux_have:
s_waitcnt vmcnt(0)
v_mov_b32 v97, v96
v_permlane32_swap_b32 v96, v97
v_max_f32 v96, v96, v97
v_mov_b32 v97, v96
v_permlane16_swap_b32 v96, v97
v_max_f32 v96, v96, v97
v_max_f32_dpp v96, v96, v96 row_ror:8 row_mask:0xf bank_mask:0xf
v_max_f32_dpp v96, v96, v96 row_ror:4 row_mask:0xf bank_mask:0xf
v_max_f32_dpp v96, v96, v96 row_ror:2 row_mask:0xf bank_mask:0xf
v_max_f32_dpp v96, v96, v96 row_ror:1 row_mask:0xf bank_mask:0xf
s_and_b32 s48, {S_A}, 1
s_lshl_b32 s48, s48, 2
s_add_u32 s48, s48, {L_KMAX}
v_mov_b32 v97, s48
ds_write_b32 v97, v96
s_waitcnt lgkmcnt(0)
""")
    stamp(30)
    a("s_barrier   ; B_e")

def phase2_start():
    a(f"""
v_and_b32 v28, 3, v1
v_lshlrev_b32 v28, 11, v28
v_bfe_u32 v29, v1, 2, 3
s_lshl_b32 s48, {S_WAVE}, 3
s_and_b32 s49, s48, 31
v_add_u32 v29, s49, v29
v_and_b32 v30, 32, v1
v_add_u32 v29, v29, v30
v_lshlrev_b32 v29, 4, v29
s_lshr_b32 s49, {S_WAVE}, 2
s_lshl_b32 s49, s49, 10
s_add_u32 s49, s49, {L_QB}
v_add3_u32 v30, v28, v29, s49
v_mov_b32 v13, {L_KMAX}
ds_read_b128 v[4:7], v30
ds_read_b64 v[14:15], v13
ds_read_b128 v[{KF}:{KF+3}], {vL16}
ds_read_b128 v[{KF+4}:{KF+7}], {vL16} offset:1024
s_mov_b64 exec, s[76:77]
ds_read_b128 v[{VF}:{VF+3}], {vVA}
ds_read_b128 v[{VF+4}:{VF+7}], {vVA} offset:512
s_mov_b64 exec, -1
v_mov_b32 v12, 0
s_waitcnt lgkmcnt(4)
v_dot2_f32_bf16 v12, v4, v4, v12
v_dot2_f32_bf16 v12, v5, v5, v12
v_dot2_f32_bf16 v12, v6, v6, v12
v_dot2_f32_bf16 v12, v7, v7, v12
v_max_f32 v14, v14, v15
v_mov_b32 v13, v12
v_permlane32_swap_b32 v12, v13
v_add_f32 v12, v12, v13
v_mul_f32 v12, v12, v14
v_sqrt_f32 v12, v12
v_sub_f32 v{C_}, 0, v12
""")
    for i in range(1, 16): a(f"v_mov_b32 v{C_+i}, v{C_}")
    a("s_waitcnt lgkmcnt(3)")
    a(f"v_mfma_f32_32x32x16_bf16 v[{SA}:{SA+15}], v[{KF}:{KF+3}], v[4:7], v[{C_}:{C_+15}]")
    a(f"ds_read_b128 v[{KF}:{KF+3}], {vL16} offset:2048")
    stamp(36)

AKR = lambda u: 128 + 4 * u
AVR = lambda u: 136 + 4 * u
ASR = lambda u: 144 + 4 * u
AOR = lambda u: 152 + 4 * u
ALR = lambda u: 160 + 4 * u
AMX = lambda u: 168 + 2 * u
def aatt(step):
    QR = lambda u: AQR + 4 * u
    PR = lambda u: APR + 4 * u
    if step == 0:
        for u in range(2):
            a(f"ds_read_b128 v[{AKR(u)}:{AKR(u)+3}], {vAK} offset:{u*512}")
        a("s_mov_b64 exec, s[64:65]")
        for u in range(2):
            a(f"ds_read_b128 v[{QR(u)}:{QR(u)+3}], {vAQ} offset:{u*512}")
        a("s_mov_b64 exec, -1")
        for u in range(2):
            a(f"ds_read_b64_tr_b16 v[{AVR(u)}:{AVR(u)+1}], {vAV} offset:{u*512}")
            a(f"ds_read_b64_tr_b16 v[{AVR(u)+2}:{AVR(u)+3}], {vAV} offset:{u*512+32}")
    if step == 1:
        for u in range(2):
            c = CM0 if u == 0 else CM
            a(f"v_mfma_f32_16x16x32_bf16 v[{ASR(u)}:{ASR(u)+3}], v[{AKR(u)}:{AKR(u)+3}], v[{QR(u)}:{QR(u)+3}], v[{c}:{c+3}]")
    if step == 2:
        a(f"s_mov_b32 s51, {f32(QSCALE)}")
        for u in range(2):
            s = ASR(u); m = AMX(u)
            a(f"v_max3_f32 v{m}, v{s}, v{s+1}, v{s+2}")
            a(f"v_max_f32 v{m}, v{m}, v{s+3}")
            a(f"v_mov_b32 v{m+1}, v{m}")
        for u in range(2):
            m = AMX(u); a(f"v_permlane32_swap_b32 v{m}, v{m+1}")
        for u in range(2):
            m = AMX(u); a(f"v_max_f32 v{m}, v{m}, v{m+1}"); a(f"v_mov_b32 v{m+1}, v{m}")
        for u in range(2):
            m = AMX(u); a(f"v_permlane16_swap_b32 v{m}, v{m+1}")
        for u in range(2):
            m = AMX(u); a(f"v_max_f32 v{m}, v{m}, v{m+1}"); a(f"v_mul_f32 v{m}, s51, v{m}")
        for u in range(2):
            s = ASR(u); m = AMX(u)
            for r in range(4): a(f"v_fma_f32 v{s+r}, v{s+r}, s51, -v{m}")
        for u in range(2):
            s = ASR(u)
            for r in range(4): a(f"v_exp_f32 v{s+r}, v{s+r}")
        a("s_mov_b64 exec, s[66:67]")
        for u in range(2):
            s = ASR(u); p = PR(u)
            a(f"v_cvt_pk_bf16_f32 v{p}, v{s}, v{s+1}"); a(f"v_cvt_pk_bf16_f32 v{p+1}, v{s+2}, v{s+3}")
        a("s_mov_b64 exec, s[68:69]")
        for u in range(2):
            s = ASR(u); p = PR(u)
            a(f"v_cvt_pk_bf16_f32 v{p+2}, v{s}, v{s+1}"); a(f"v_cvt_pk_bf16_f32 v{p+3}, v{s+2}, v{s+3}")
        a("s_mov_b64 exec, -1")
        for u in range(2):
            a(f"v_mfma_f32_16x16x32_bf16 v[{ALR(u)}:{ALR(u)+3}], v[{ONES}:{ONES+3}], v[{PR(u)}:{PR(u)+3}], 0")
        for u in range(2):
            a(f"v_mfma_f32_16x16x32_bf16 v[{AOR(u)}:{AOR(u)+3}], v[{AVR(u)}:{AVR(u)+3}], v[{PR(u)}:{PR(u)+3}], 0")
    if step == 3:
        for u in range(2):
            a(f"v_rcp_f32 v{ALR(u)}, v{ALR(u)}")
        for u in range(2):
            o = AOR(u)
            for r in range(4): a(f"v_mul_f32 v{o+r}, v{o+r}, v{ALR(u)}")
            a(f"v_cvt_pk_bf16_f32 v{o}, v{o}, v{o+1}"); a(f"v_cvt_pk_bf16_f32 v{o+1}, v{o+2}, v{o+3}")
            a(f"ds_write_b64 {vAO}, v[{o}:{o+1}] offset:{u*2048}")

def kv_dma(sc):
    for i in range(2):
        a(f"s_add_u32 m0, s79, {(sc&3)*16384}")
        a(f"s_add_u32 s95, s79, {WS_KV + sc*16384}")
        a(f"buffer_load_dwordx4 {vL16}, {SRD_WS}, s95 offen offset:{i*1024} sc1 lds")
def oa_dma(half, dst):
    for n in range(4):
        a(f"s_add_u32 m0, s73, {dst + n*1024}")
        a(f"s_add_u32 s95, s84, {WS_OA + half*512}")
        a(f"buffer_load_dwordx4 v{STP+n}, {SRD_WS}, s95 offen sc1 lds")
def wo_dma(srdw, half, dst):
    for i in range(4):
        a(f"s_add_u32 m0, s73, {dst + i*1024}")
        a(f"s_add_u32 s95, s74, {half*262144 + i*8192}")
        a(f"buffer_load_dwordx4 {vWOP}, {srdw}, s95 offen lds")
def markers_gate():
    a(f"""
v_lshrrev_b32 v24, 3, v1
v_and_b32 v25, 7, v1
v_lshlrev_b32 v25, 4, v25
s_lshl_b32 s48, {S_WAVE}, 3
s_add_u32 s48, s48, {S_P0}
v_add_u32 v24, s48, v24
v_lshlrev_b32 v24, 10, v24
s_lshl_b32 s49, {S_HG}, 7
s_add_u32 s49, s49, {WS_OB}
v_add_u32 v24, v24, v25
v_mov_b32 v28, -1
v_mov_b32 v29, -1
v_mov_b32 v30, -1
v_mov_b32 v31, -1
buffer_store_dwordx4 v[28:31], v24, {SRD_WS}, s49 offen sc1
v_lshrrev_b32 v24, 4, {vJ}
v_lshlrev_b32 v24, 7, v24
v_and_b32 v25, 15, v1
v_lshlrev_b32 v25, 2, v25
v_add_u32 v15, v24, v25
s_lshl_b32 s48, s75, 3
s_add_u32 s48, s48, {WS_G}
buffer_load_dword v9, v15, {SRD_WS}, s48 offen sc1
v_bfe_u32 v24, v1, 2, 3
s_and_b32 s48, {S_WAVE}, 1
s_lshl_b32 s48, s48, 3
v_add_u32 v24, s48, v24
v_lshlrev_b32 v24, 2, v24
s_lshr_b32 s48, {S_WAVE}, 1
s_lshl_b32 s49, {S_PB}, 2
s_add_u32 s48, s48, s49
s_lshl_b32 s48, s48, 7
s_add_u32 s48, s48, {WS_G}
buffer_load_dword v10, v24, {SRD_WS}, s48 offen sc1
""")

def pv1(t):
    vb = VF + 8 * (t & 1)
    a(f"v_mfma_f32_32x32x16_bf16 v[{O_}:{O_+15}], v[{vb+4}:{vb+7}], v[{P_+4}:{P_+7}], v[{O_}:{O_+15}]")

def tile(t, bg=(), bgwait=False):
    first = t == 0
    S = SA if t % 2 == 0 else SB
    Sn = SB if t % 2 == 0 else SA
    def koff(x): return ((x >> 3) & 3) * 16384 + (x & 7) * 1024
    kb = KF + 4 * ((t + 1) & 1)
    vb = VF + 8 * (t & 1)
    vbp = VF + 8 * ((t + 1) & 1)
    if first: a("s_waitcnt lgkmcnt(3)")
    E = lambda i: a(f"v_exp_f32 v{S+i}, v{S+i}")
    Cv = lambda i: a(f"v_cvt_pk_bf16_f32 v{P_+i}, v{S+2*i}, v{S+2*i+1}")
    n = [0]
    def vloads():
        if t + 1 < 64:
            a("s_mov_b64 exec, s[76:77]")
            a(f"ds_read_b128 v[{vbp}:{vbp+3}], {vVA} offset:{koff(t+1)}")
            a(f"ds_read_b128 v[{vbp+4}:{vbp+7}], {vVA} offset:{koff(t+1)+512}")
            a("s_mov_b64 exec, -1")
            n[0] += 2
    def pv0():
        c = "0" if first else f"v[{O_}:{O_+15}]"
        a(f"v_mfma_f32_32x32x16_bf16 v[{O_}:{O_+15}], v[{vb}:{vb+3}], v[{P_}:{P_+3}], {c}")
    if t + 1 < 64: a(f"v_mfma_f32_32x32x16_bf16 v[{Sn}:{Sn+15}], v[{kb}:{kb+3}], v[4:7], v[{C_}:{C_+15}]")
    if t + 3 < 64: a(f"ds_read_b128 v[{kb}:{kb+3}], {vL16} offset:{koff(t+3)}"); n[0] += 1
    if bg:
        for i in range(4): E(i)
        pv1(t - 1)
        vloads()
        for i in range(4, 8): E(i)
        if bgwait: a(f"s_waitcnt lgkmcnt({n[0]})")
        bg[0]()
        for i in range(4): Cv(i)
        for i in range(8, 10): E(i)
        a(f"s_waitcnt lgkmcnt({n[0]})")
        pv0()
        for i in range(10, 14): E(i)
        bg[1]()
        for i in range(14, 16): E(i)
        for i in range(4, 8): Cv(i)
    else:
        for i in range(6): E(i)
        if not first: pv1(t - 1)
        vloads()
        for i in range(6, 8): E(i)
        for i in range(4): Cv(i)
        for i in range(8, 11): E(i)
        a(f"s_waitcnt lgkmcnt({n[0]})")
        pv0()
        for i in range(11, 16): E(i)
        for i in range(4, 8): Cv(i)

def ap_flag_issue():
    a(f"s_mov_b32 s50, {WS_FL + 4}")
    a(f"buffer_load_dword v25, {vFLG}, {SRD_WS}, s50 offen sc1")
def ap_flag_check(h):
    a(f"""
s_mov_b32 s49, 0
s_mov_b32 s50, {WS_FL + 4}
s_branch L_ap_chk{h}
L_ap_poll{h}:
buffer_load_dword v25, {vFLG}, {SRD_WS}, s50 offen sc1
s_add_u32 s49, s49, 1
s_waitcnt vmcnt(0)
L_ap_chk{h}:
v_cmp_ne_u32 vcc, 1, v25
s_cmp_ge_u32 s49, {SPIN_MAX}
s_cbranch_scc1 L_ap_go{h}
s_cbranch_vccnz L_ap_poll{h}
L_ap_go{h}:
""")
def phase2_loop():
    def bw_frags():
        a(f"""
s_mov_b32 s78, {R0}
s_cmp_ge_u32 {S_WAVE}, 4
s_cselect_b32 s78, {R2}, s78
v_add_u32 v16, s78, {vWOF}
""")
    def bw_reads(lo, hi):
        for kk in range(lo, hi):
            for half in range(2):
                r = BW + 4 * kk + 2 * half
                a(f"ds_read_b64_tr_b16 v[{r}:{r+1}], v16 offset:{kk*2048 + half*1024}")
    def publish():
        a(f"""
s_cmp_lg_u32 {S_WAVE}, 0
s_cbranch_scc1 L_nopub
s_lshl_b32 s48, s88, 7
s_add_u32 s48, s48, {WS_FL + 4}
v_mov_b32 v16, s48
v_mov_b32 v17, 1
s_mov_b64 exec, 1
buffer_store_dword v17, v16, {SRD_WS}, 0 offen sc1
s_mov_b64 exec, -1
L_nopub:
""")
    def oa_read():
        a(f"""
s_lshl_b32 s48, {S_WAVE}, 10
s_add_u32 s48, s48, {L_OAT}
v_add_u32 v16, s48, {vL16}
ds_read_b128 v[20:23], v16
""")
    def oa_store():
        a(f"""
v_lshrrev_b32 v24, 3, v1
v_and_b32 v25, 7, v1
v_lshlrev_b32 v25, 4, v25
v_lshlrev_b32 v24, 10, v24
v_add_u32 v24, v24, v25
s_lshl_b32 s48, {S_WAVE}, 3
s_add_u32 s48, s48, {S_P0}
s_lshl_b32 s48, s48, 10
s_lshl_b32 s49, {S_HG}, 7
s_add_u32 s48, s48, s49
s_add_u32 s48, s48, {WS_OA}
buffer_store_dwordx4 v[20:23], v24, {SRD_WS}, s48 offen sc1
""")
    STG = 3
    sn = [
        (1, lambda h: (kv_dma(2), aatt(0))),
        (2, lambda h: aatt(1)),
        (3, lambda h: aatt(2)),
        (4, lambda h: (aatt(3), kv_dma(3))),
        (6, lambda h: markers_gate()),
        (7, lambda h: wo_dma(SRD_BWO, 0, R0)),
        (13, lambda h: (oa_read(), kv_dma(4))),
        (14, lambda h: oa_store()),
        (21, lambda h: (publish() if h == 0 else None, kv_dma(5))),
        (22, lambda h: wo_dma(SRD_BWO, 1, R2)),
        (29, lambda h: kv_dma(6)),
        (30, lambda h: (bw_frags(), bw_reads(0, 6))),
        (31, lambda h: bw_reads(6, 11)),
        (32, lambda h: bw_reads(11, 16)),
        (33, lambda h: ap_flag_issue()),
        (37, lambda h: (ap_flag_check(h), kv_dma(7))),
        (38, lambda h: oa_dma(0, R1)),
        (39, lambda h: wo_dma(SRD_AWO, 0, R0)),
        (45, lambda h: wo_dma(SRD_AWO, 1, R2)),
        (53, lambda h: oa_dma(1, 0)),
    ]
    PRIO = [int(c) for c in os.environ.get("PRIO", "33322110")]
    if "roll" in OPT or "unroll" in OPT:
        tile(0)
        for t in range(1, 8): tile(t)
        stamp(37)
        if "roll" in OPT:
            a("s_mov_b32 s86, 0")
            a(".p2align 6")
            a("L_roll:")
        for rep in range(1 if "roll" in OPT else 6):
            for t in range(8, 16):
                ph = (t - 5) % 8
                if "bar" in OPT and t % 8 == 5: a("s_barrier")
                if "prio" in OPT and PRIO[ph] != PRIO[(ph - 1) % 8]: a(f"s_setprio {PRIO[ph]}")
                tile(t)
        if "roll" in OPT:
            a("s_add_u32 s86, s86, 1\ns_cmp_lt_u32 s86, 6\ns_cbranch_scc1 L_roll")
        stamp(40)
        a("s_setprio 0")
        a.fence(2)
        pv1(63)
        return
    nsn = 0
    for t in range(64):
        if t % 8 == 5 and t > 8:
            a("s_waitcnt vmcnt(0) lgkmcnt(0)" if t in (13, 21, 37) else "s_waitcnt vmcnt(0)")
            if "pb" in OPT: stamp(46 + t // 8)
            a(f"s_barrier   ; b{t//8+1}")
            if "pb" in OPT: stamp(55 + t // 8)
        ph = (t - 5) % 8
        if t == 0 or PRIO[ph] != PRIO[(ph - 1) % 8]:
            a(f"s_setprio {PRIO[ph]}")
        f0 = [f for (tt, f) in sn if tt == t]
        f1 = [f for (tt, f) in sn if tt + STG == t]
        if f0:
            nsn += 1; L = f"L_sn{nsn}"
            a(f"s_cmp_ge_u32 {S_WAVE}, 4\ns_cbranch_scc1 {L}")
            for f in f0: f(0)
            a(f"{L}:")
        if f1:
            nsn += 1; L = f"L_sn{nsn}"
            a(f"s_cmp_lt_u32 {S_WAVE}, 4\ns_cbranch_scc1 {L}")
            for f in f1: f(1)
            a(f"{L}:")
        tile(t)
        if t % 16 == 15: stamp(37 + t // 16)
    a("s_setprio 0")
    a.fence(2)
    pv1(63)

def fallback():
    a.comment("---- softmax safety check: l must be >= 2^-60, else redo this tile with the true max (slow path, K/V from global)")
    a.fence(12)
    a(f"""
s_mov_b32 s48, 0x21800000
v_cmp_nle_f32 vcc, s48, v{O_+8}
s_cbranch_vccz L_fb_done
v_and_b32 v3, 0x1fff, {vVA}
v_mov_b32 v12, {f32(-3.0e38)}
s_mov_b32 s48, 0
L_fb1:
s_lshr_b32 s49, s48, 3
s_lshl_b32 s49, s49, 14
s_and_b32 s50, s48, 7
s_lshl_b32 s50, s50, 10
s_add_u32 s49, s49, s50
buffer_load_dwordx4 v[{KF}:{KF+3}], {vL16}, {SRD_WS}, s49 offen sc1
s_waitcnt vmcnt(0)
v_mfma_f32_32x32x16_bf16 v[{SA}:{SA+15}], v[{KF}:{KF+3}], v[4:7], 0
""")
    for i in range(8): a(f"v_max3_f32 v12, v12, v{SA+2*i}, v{SA+2*i+1}")
    a(f"""
s_add_u32 s48, s48, 1
s_cmp_lt_u32 s48, 64
s_cbranch_scc1 L_fb1
v_mov_b32 v13, v12
v_permlane32_swap_b32 v12, v13
v_max_f32 v12, v12, v13
v_sub_f32 v{C_}, 0, v12
""")
    for i in range(1, 16): a(f"v_mov_b32 v{C_+i}, v{C_}")
    for i in range(16): a(f"v_mov_b32 v{O_+i}, 0")
    a(f"""
s_mov_b32 s48, 0
L_fb2:
s_lshr_b32 s49, s48, 3
s_lshl_b32 s49, s49, 14
s_and_b32 s50, s48, 7
s_lshl_b32 s50, s50, 10
s_add_u32 s49, s49, s50
s_add_u32 s50, s49, 8192
buffer_load_dwordx4 v[{KF}:{KF+3}], {vL16}, {SRD_WS}, s49 offen sc1
s_mov_b64 exec, s[76:77]
buffer_load_dwordx4 v[{VF}:{VF+3}], v3, {SRD_WS}, s50 offen sc1
buffer_load_dwordx4 v[{VF+4}:{VF+7}], v3, {SRD_WS}, s50 offen offset:512 sc1
s_mov_b64 exec, -1
s_waitcnt vmcnt(0)
v_mfma_f32_32x32x16_bf16 v[{SA}:{SA+15}], v[{KF}:{KF+3}], v[4:7], v[{C_}:{C_+15}]
""")
    for i in range(16): a(f"v_exp_f32 v{SA+i}, v{SA+i}")
    for i in range(8): a(f"v_cvt_pk_bf16_f32 v{P_+i}, v{SA+2*i}, v{SA+2*i+1}")
    a(f"""
v_mfma_f32_32x32x16_bf16 v[{O_}:{O_+15}], v[{VF}:{VF+3}], v[{P_}:{P_+3}], v[{O_}:{O_+15}]
v_mfma_f32_32x32x16_bf16 v[{O_}:{O_+15}], v[{VF+4}:{VF+7}], v[{P_+4}:{P_+7}], v[{O_}:{O_+15}]
s_add_u32 s48, s48, 1
s_cmp_lt_u32 s48, 64
s_cbranch_scc1 L_fb2
""")
    a.fence(12)
    a("L_fb_done:")

def phase3():
    a.comment("---- normalise + publish oB'")
    a(f"""
v_rcp_f32 v12, v{O_+8}
v_sub_f32 v13, 1.0, v10
v_add_u32 v14, s75, {vJ}
v_lshlrev_b32 v14, 10, v14
v_lshrrev_b32 v15, 5, v1
v_lshlrev_b32 v15, 4, v15
v_add_u32 v24, v14, v15
v_bfe_u32 v14, v1, 2, 3
v_lshlrev_b32 v14, 10, v14
v_and_b32 v11, 3, v1
v_lshlrev_b32 v11, 5, v11
v_add3_u32 v11, v11, v14, v15
s_lshl_b32 s48, {S_WAVE}, 3
s_add_u32 s48, s48, {S_P0}
s_lshl_b32 s48, s48, 10
s_lshl_b32 s49, {S_HG}, 7
s_add_u32 s48, s48, s49
s_add_u32 s48, s48, {WS_OB}
v_mul_f32 v12, v12, v13
""")
    for i in range(8): a(f"v_mul_f32 v{O_+i}, v{O_+i}, v12")
    for i in range(4): a(f"v_cvt_pk_bf16_f32 v{P_+i}, v{O_+2*i}, v{O_+2*i+1}")
    a(f"buffer_store_dwordx4 v[{P_}:{P_+3}], v11, {SRD_WS}, s48 offen {os.environ.get('TST', 'sc1')}")
    stamp(41)
    a(f"""
s_lshr_b32 s48, {S_WAVE}, 2
s_lshl_b32 s48, s48, 14
s_add_u32 s49, s48, {R0}
v_add_u32 v16, s49, {vWOF}
s_add_u32 s49, s48, {R1}
v_add_u32 v17, s49, v{OFA}
v_add_u32 v18, s49, v{OFA+1}
v_add_u32 v19, s49, v{OFA+2}
v_add_u32 v20, s49, v{OFA+3}
v_add_u32 v26, {R2 - R0}, v16
v_add_u32 v27, s48, v{OFA}
v_add_u32 v28, s48, v{OFA+1}
v_add_u32 v29, s48, v{OFA+2}
v_add_u32 v30, s48, v{OFA+3}
""")
    def grd(g):
        base = 32 + 32 * (g & 1); y = g >> 1
        for j in range(4):
            kk = 4 * (g & 1) + j
            for half in range(2):
                r = base + 4 * j + 2 * half
                a(f"ds_read_b64_tr_b16 v[{r}:{r+1}], v{26 if y else 16} offset:{kk*2048 + half*1024}")
            a(f"ds_read_b128 v[{base+16+4*j}:{base+19+4*j}], v{(27 if y else 17)+j} offset:{(kk>>2)*8192}")
    def gmf(g):
        base = 32 + 32 * (g & 1)
        for j in range(4):
            c = "0" if (g == 0 and j == 0) else f"v[{ACCA}:{ACCA+15}]"
            a(f"v_mfma_f32_32x32x16_bf16 v[{ACCA}:{ACCA+15}], v[{base+4*j}:{base+3+4*j}], v[{base+16+4*j}:{base+19+4*j}], {c}")
    grd(0)
    for g in range(4):
        if g + 1 < 4:
            grd(g + 1); a("s_waitcnt lgkmcnt(12)")
        else:
            a("s_waitcnt lgkmcnt(0)")
        gmf(g)
    a(f"""
s_lshl_b32 s80, {S_WAVE}, 13
s_add_u32 s80, s80, {L_OB}
s_lshl_b32 s81, {S_P0}, 10
s_lshl_b32 s48, {S_WAVE}, 7
s_add_u32 s81, s81, s48
s_add_u32 s81, s81, {WS_OB}
s_lshr_b32 s48, {S_WAVE}, 2
s_lshl_b32 s48, s48, 15
s_add_u32 s48, s48, {L_OB}
v_add_u32 v20, s48, v{OFA}
v_add_u32 v21, s48, v{OFA+1}
v_add_u32 v22, s48, v{OFA+2}
v_add_u32 v23, s48, v{OFA+3}
s_and_b32 s48, {S_WAVE}, 3
s_lshl_b32 s48, s48, 12
v_add_u32 v25, s48, {vL16}
v_add_u32 v14, s80, {vL16}
s_lshl_b32 s85, {S_HG}, 7
s_bfe_u32 s49, {S_WAVE}, 0x10001
s_lshl_b32 s49, s49, 6
s_add_u32 s85, s85, s49
s_mov_b32 s49, 0
""")
    stamp(42)
    a("s_barrier")
    a("s_branch L_t_first")
    a("L_t_retry:")
    a(f"s_sleep {int(os.environ.get('TSLEEP', '4'))}")
    a("L_t_first:")
    for n in range(8):
        a(f"s_add_u32 m0, s80, {n*1024}")
        a(f"s_add_u32 s95, s81, {(n>>2)*32768}")
        a(f"buffer_load_dwordx4 v{STP+(n&3)}, {SRD_WS}, s95 offen {os.environ.get('TLD', 'sc1')} lds")
    a(f"""
s_cmp_lg_u32 s49, 0
s_cbranch_scc1 L_t_noscale
""")
    for i in range(16): a(f"v_mul_f32 v{ACCA+i}, v9, v{ACCA+i}")
    a(f"""
L_t_noscale:
s_add_u32 s49, s49, 1
s_waitcnt vmcnt(0)
""")
    for n in range(8):
        a(f"ds_read_b128 v[{32+4*n}:{35+4*n}], v14 offset:{n*1024}")
    for n in range(8):
        a(f"s_waitcnt lgkmcnt({7-n})")
        if n == 0: a("v_max_u32 v12, v32, v33")
        else: a(f"v_max3_u32 v12, v12, v{32+4*n}, v{33+4*n}")
        a(f"v_max3_u32 v12, v12, v{34+4*n}, v{35+4*n}")
    a(f"""
v_cmp_eq_u32 vcc, -1, v12
s_cmp_ge_u32 s49, {SPIN_MAX // 4}
s_cbranch_scc1 L_t_go
s_cbranch_vccnz L_t_retry
L_t_go:
""")
    stamp(43)
    a("s_barrier   ; B_6")
    stamp(44)
    OF = lambda kk: 32 + 4 * kk
    ACC2 = ACCA
    for kk in range(8):
        a(f"ds_read_b128 v[{OF(kk)}:{OF(kk)+3}], v{20+(kk&3)} offset:{(kk>>2)*8192}")
    for kk in range(16):
        a(f"s_waitcnt lgkmcnt({min(7, 15-kk)})")
        a(f"v_mfma_f32_32x32x16_bf16 v[{ACC2}:{ACC2+15}], v[{BW+4*kk}:{BW+3+4*kk}], v[{OF(kk)}:{OF(kk)+3}], v[{ACC2}:{ACC2+15}]")
        if kk + 8 < 16:
            a(f"ds_read_b128 v[{OF(kk+8)}:{OF(kk+8)+3}], v{20+(kk&3)} offset:{((kk+8)>>2)*8192}")
    a(f"""
s_cmp_lt_u32 {S_WAVE}, 4
s_cbranch_scc1 L_t_nowr
""")
    for i in range(4):
        a(f"ds_write_b128 v25, v[{ACC2+4*i}:{ACC2+4*i+3}] offset:{L_RED + i*1024}")
    a("""
s_waitcnt lgkmcnt(0)
s_barrier   ; B_7
s_branch L_fin
L_t_nowr:
s_nop 4
s_barrier   ; B_7
""")
    for i in range(4):
        a(f"ds_read_b128 v[{32+4*i}:{35+4*i}], v25 offset:{L_RED + i*1024}")
    a("s_waitcnt lgkmcnt(0)")
    for i in range(16): a(f"v_add_f32 v{32+i}, v{32+i}, v{ACC2+i}")
    for i in range(8): a(f"v_cvt_pk_bf16_f32 v{48+i}, v{32+2*i}, v{32+2*i+1}")
    a("""
v_permlane32_swap_b32 v48, v50
v_permlane32_swap_b32 v49, v51
v_permlane32_swap_b32 v52, v54
v_permlane32_swap_b32 v53, v55
""")
    OST = os.environ.get("OST", "")
    a(f"buffer_store_dwordx4 v[48:51], v24, {SRD_OUT}, s85 offen {OST}")
    a(f"buffer_store_dwordx4 v[52:55], v24, {SRD_OUT}, s85 offen offset:32 {OST}")
    a("L_fin:")
    stamp(45)

def build():
    here = os.path.dirname(os.path.abspath(__file__))
    a.raw(open(os.path.join(here, "header.txt")).read())
    a.raw(f"; @launch grid=(256,1,1) block=(512,1,1) lds={LDS_BYTES}")
    a.raw('.amdgcn_target "amdgcn-amd-amdhsa--gfx950"\n.text')
    a.raw(f".globl {NAME}_kernel\n.p2align 8\n.type {NAME}_kernel,@function\n{NAME}_kernel:")
    prologue()
    g_phase1()
    a("s_branch L_join1")
    aux_phase1()
    a("L_join1:")
    a.fence(4)
    phase2_start()
    phase2_loop()
    fallback()
    phase3()
    prof_dump()
    a("L_end:")
    a("s_endpgm")
    a.raw(f""".section .rodata,"a"
.p2align 6
.amdhsa_kernel {NAME}_kernel
  .amdhsa_next_free_vgpr 256
  .amdhsa_next_free_sgpr 102
  .amdhsa_accum_offset 256
  .amdhsa_group_segment_fixed_size 0
  .amdhsa_kernarg_size 96
  .amdhsa_user_sgpr_count 2
  .amdhsa_user_sgpr_kernarg_segment_ptr 1
  .amdhsa_system_sgpr_workgroup_id_x 1
.end_amdhsa_kernel""")
    open(sys.argv[1], "w").write(a.text())
    print("nops inserted:", a.nops, "lines:", len(a.lines))

build()
```

```python
import sys, struct, os
from dsl import Asm, VM

NAME = "gated_mix__sliding_local_dilated__grouped_kv_mqa__prompt"
WS_KV = 0x0
WS_G = 0x2C000
WS_FL = 0x24000
WS_OA = 0x100000
WS_OB = 0x300000
WS_PROF = 0x1C00000
WS_SIZE = 0x2000000
XBLK = 20480
L_RING = 81920
L_WK = 147456
L_T = 98304
L_QB = 147456
SCR_D = 3 * XBLK
SCR_G = 2 * XBLK
L_GO = 36864
L_KMAX = L_T + 30720
L_OAT = 131072
R0, R1, R2 = 65536, 98304, 131072
L_RED, L_FLAG, L_OB = 0, 16384, 65536
LDS_BYTES = 163840
LOG2E = 1.4426950408889634
QSCALE = 0.25 * LOG2E
SPIN_MAX = 1 << 15
def f32(x): return "0x%08x" % struct.unpack("<I", struct.pack("<f", x))[0]

PROF = len(sys.argv) > 2 and sys.argv[2] == "prof"
OPT = set(sys.argv[3:]) | {"nopf"}

a = Asm()
S_WAVE, S_PB, S_HG, S_P0, S_U4, S_A = "s3", "s4", "s5", "s6", "s7", "s90"
SRD_X, SRD_W, SRD_WS, SRD_DBG, SRD_WK, SRD_GT, SRD_AWO, SRD_BWO, SRD_OUT = [f"s[{8+4*i}:{11+4*i}]" for i in range(9)]
vAK, vAQ, vAV, vAO = "v208", "v209", "v210", "v211"
CM, CM0, ONES, VF = 212, 216, 220, 224
vL16, vVA, vJ, vWOP = "v240", "v241", "v242", "v243"
STP, OFA = 244, 248
vWOF, vFLG = "v252", "v253"
AQR, APR = 192, 200
C_, SA, SB, O_, P_, KF, ACCA, BW, BO = 32, 48, 64, 80, 96, 104, 112, 128, 160

def stamp(i):
    if PROF:
        a(f"""s_memtime s[100:101]
s_waitcnt lgkmcnt(0)
v_writelane_b32 v255, s100, {i}""")
def prof_dump():
    if PROF:
        a(f"""v_lshlrev_b32 v254, 2, v1
s_lshl_b32 s100, s2, 3
s_add_u32 s100, s100, {S_WAVE}
s_lshl_b32 s100, s100, 8
s_add_u32 s100, s100, {WS_PROF}
buffer_store_dword v255, v254, {SRD_WS}, s100 offen
s_waitcnt vmcnt(0)""")

def srd(idx, plo, size):
    b = 8 + 4 * idx
    a(f"""s_mov_b32 s{b}, s{plo}
s_and_b32 s{b+1}, s{plo+1}, 0xffff
s_mov_b32 s{b+2}, {size}
s_mov_b32 s{b+3}, 0x00020000""")

MAP = os.environ.get("MAP", "1")
ROT = os.environ.get("ROT", "4")

def mapcode():
    if MAP == "0":
        return f"""s_lshr_b32 s50, s48, 1
s_lshl_b32 s50, s50, 3
s_and_b32 s51, s49, 7
s_add_u32 {S_PB}, s50, s51
s_and_b32 s50, s48, 1
s_lshl_b32 s50, s50, 2
s_lshr_b32 s51, s49, 3
s_add_u32 {S_HG}, s50, s51
"""
    if MAP == "1":
        return f"""s_lshr_b32 s50, s48, 1
s_lshl_b32 s50, s50, 3
s_and_b32 s51, s49, 7
s_add_u32 {S_PB}, s50, s51
s_and_b32 s50, s48, 1
s_lshr_b32 s51, s49, 3
s_lshl_b32 s51, s51, 1
s_add_u32 {S_HG}, s50, s51
"""
    if MAP == "2":
        return f"""s_lshl_b32 s50, s48, 2
s_and_b32 s51, s49, 3
s_add_u32 {S_PB}, s50, s51
s_lshr_b32 {S_HG}, s49, 2
"""
def wgid_of():
    if MAP == "0":
        return f"""v_lshrrev_b32 v36, 2, v35
v_and_b32 v37, 3, v35
v_lshlrev_b32 v37, 6, v37
s_lshr_b32 s48, {S_PB}, 3
s_lshl_b32 s48, s48, 1
s_and_b32 s49, {S_PB}, 7
s_lshl_b32 s49, s49, 3
s_add_u32 s48, s48, s49
v_add3_u32 {vFLG}, v36, v37, s48
"""
    if MAP == "1":
        return f"""v_and_b32 v36, 1, v35
v_lshrrev_b32 v37, 1, v35
v_lshlrev_b32 v37, 6, v37
s_lshr_b32 s48, {S_PB}, 3
s_lshl_b32 s48, s48, 1
s_and_b32 s49, {S_PB}, 7
s_lshl_b32 s49, s49, 3
s_add_u32 s48, s48, s49
v_add3_u32 {vFLG}, v36, v37, s48
"""
    if MAP == "2":
        return f"""v_lshlrev_b32 v37, 5, v35
s_lshr_b32 s48, {S_PB}, 2
s_and_b32 s49, {S_PB}, 3
s_lshl_b32 s49, s49, 3
s_add_u32 s48, s48, s49
v_add_u32 {vFLG}, s48, v37
"""

def prologue():
    MAPCODE = mapcode()
    a(f"""
s_cmp_ge_u32 s2, 256
s_cbranch_scc1 L_end
s_load_dwordx16 s[64:79], s[0:1], 0
s_load_dwordx8 s[80:87], s[0:1], 64
v_and_b32 v1, 63, v0
v_lshrrev_b32 v2, 6, v0
s_and_b32 s48, s2, 7
s_lshr_b32 s49, s2, 3
v_readfirstlane_b32 {S_WAVE}, v2
{MAPCODE}s_lshl_b32 {S_P0}, {S_PB}, 6
s_lshl_b32 s88, {S_PB}, 3
s_add_u32 s88, s88, {S_HG}
s_and_b32 {S_A}, {S_WAVE}, 3
s_and_b32 {S_U4}, {S_HG}, 3
s_lshl_b32 s53, {S_A}, 10
s_mov_b32 s14, 1572864
s_mov_b32 s52, 3072
s_mov_b32 s15, 0x00020000
s_lshl_b32 s54, {S_HG}, 7
v_lshrrev_b32 v10, 4, v1
v_and_b32 v11, 15, v1
s_lshl_b32 s48, {S_A}, 2
v_add_u32 v12, s48, v10
v_xor_b32 v11, v11, v12
v_lshlrev_b32 v11, 4, v11
v_lshlrev_b32 v10, 10, v10
v_add_u32 v2, v10, v11
v_lshlrev_b32 {vL16}, 4, v1
s_sub_u32 s49, {S_P0}, 16
s_max_i32 s50, s49, 0
s_add_u32 s49, s49, s48
s_add_u32 s50, s50, s48
s_lshl_b32 s98, s49, 10
s_lshl_b32 s99, s50, 10
s_lshl_b32 s91, {S_A}, 10
""")
    for rel in range(4):
        a(f"""
s_add_u32 s48, {S_U4}, {rel}
s_and_b32 s48, s48, 3
s_add_u32 s48, s48, 1
s_lshl_b32 s49, s48, 12
s_add_u32 s{56+rel}, s49, s91
s_lshl_b32 s49, s48, 14
s_add_u32 s{60+rel}, s49, s98
""")
    a(f"""
s_lshr_b32 s97, {S_HG}, 1
s_add_u32 s97, s97, {S_PB}
s_and_b32 s97, s97, {dict(zip('0124', (0, 1, 1, 3)))[ROT]}
s_lshl_b32 s97, s97, {1 if ROT == '2' else 0}
""")
    for g in range(4):
        a(f"""
s_add_u32 s48, s97, {g}
s_and_b32 s48, s48, 3
s_lshl_b32 s{44+g}, s48, 8
""")
    a("s_waitcnt lgkmcnt(0)")
    srd(0, 64, 2048 * 1024)
    a(f"""
s_cmp_ge_u32 {S_HG}, 4
s_cselect_b32 s74, s76, s74
s_cselect_b32 s75, s77, s75
""")
    srd(4, 74, 16384)
    a(f"""
s_cmp_eq_u32 {S_A}, 3
s_cselect_b32 s12, s72, s66
s_cselect_b32 s13, s73, s67
s_cselect_b32 s14, 524288, s14
s_cselect_b32 s52, 1024, s52
s_cselect_b32 s53, 0, s53
s_and_b32 s13, s13, 0xffff
s_add_u32 s53, s53, s54
""")
    srd(2, 86, WS_SIZE)
    srd(3, 84, 256)
    srd(5, 80, 1024)
    srd(6, 68, 524288)
    srd(7, 78, 524288)
    srd(8, 82, 2048 * 1024)
    stamp(0)
    if "hdbg" in OPT:
        a("""s_memrealtime s[70:71]
s_memtime s[100:101]
s_waitcnt lgkmcnt(0)
v_mov_b32 v254, s70
v_mov_b32 v255, s100""")
    a(f"""
s_cmp_ge_u32 {S_WAVE}, 4
s_cbranch_scc1 L_aux
""")

def x_instr(vm, kb, rel, tag):
    a(f"s_add_u32 m0, {'s91' if rel == 4 else 's%d' % (56+rel)}, {kb*XBLK}")
    a(f"s_add_u32 s95, {'s99' if rel == 4 else 's%d' % (60+rel)}, s{44+kb}")
    a(f"buffer_load_dwordx4 v2, {SRD_X}, s95 offen lds")
    if vm: vm.issue(tag)

def setup_persistent():
    a.comment("---- persistent setup")
    a(f"""
v_and_b32 v32, 15, v1
v_lshrrev_b32 v33, 4, v1
s_mul_i32 s49, {S_A}, 2560
s_lshr_b32 s55, {S_WAVE}, 2
s_lshl_b32 s51, s55, 10
s_add_u32 s49, s49, s51
s_add_u32 s50, s49, {L_T + 4*2560}
v_lshlrev_b32 v34, 6, v32
v_lshlrev_b32 v35, 4, v33
v_add3_u32 {vAK}, v34, v35, s50
s_add_u32 s50, s49, {L_T + 512}
v_lshlrev_b32 v34, 5, v32
v_and_b32 v35, 1, v33
v_lshlrev_b32 v35, 4, v35
v_add3_u32 {vAQ}, v34, v35, s50
s_add_u32 s50, s49, {L_T + 8*2560}
v_bfe_u32 v34, v1, 2, 2
v_lshlrev_b32 v34, 6, v34
v_lshlrev_b32 v35, 8, v33
v_and_b32 v36, 3, v1
v_lshlrev_b32 v36, 3, v36
v_add3_u32 {vAV}, v34, v35, v36
v_add_u32 {vAV}, s50, {vAV}
v_lshlrev_b32 v34, 7, v32
s_lshl_b32 s50, s55, 12
s_lshl_b32 s51, {S_A}, 5
s_add_u32 s50, s50, s51
s_add_u32 s50, s50, {L_OAT}
v_lshlrev_b32 v35, 3, v33
v_add3_u32 {vAO}, v34, v35, s50
v_lshrrev_b32 v34, 1, v32
v_lshlrev_b32 v35, 2, v33
v_sub_u32 v36, v35, v34
v_mov_b32 v37, {f32(-1e30)}
s_add_u32 s50, {S_PB}, s55
s_cmp_eq_u32 s50, 0
s_cselect_b32 s50, 8, 0
""")
    for r in range(4):
        a(f"""
v_add_u32 v34, {r-1}, v36
v_add_u32 v38, {r}, v35
v_cmp_gt_u32 vcc, 8, v34
v_cmp_le_u32 s[48:49], s50, v38
v_cndmask_b32 v{CM+r}, v37, 0, vcc
v_cndmask_b32 v{CM0+r}, v37, v{CM+r}, s[48:49]
""")
    for i in range(4): a(f"v_mov_b32 v{ONES+i}, 0x3f803f80")
    a(f"""
v_and_b32 {vJ}, 31, v1
v_lshrrev_b32 v34, 5, v1
v_lshlrev_b32 v35, 4, {vJ}
v_lshlrev_b32 v36, 8, v34
v_add_u32 v35, v35, v36
v_add_u32 {vVA}, 8192, v35
v_and_b32 v35, 27, {vJ}
v_cmp_eq_u32 vcc, 16, v35
v_cndmask_b32 v{VF}, 0, v{ONES}, vcc
""")
    for i in range(1, 16): a(f"v_mov_b32 v{VF+i}, v{VF}")
    a(f"""
v_lshrrev_b32 v35, 3, v1
v_and_b32 v36, 7, v1
v_bfe_u32 v37, v1, 4, 1
v_lshlrev_b32 v37, 2, v37
v_xor_b32 v36, v36, v37
v_lshlrev_b32 v36, 4, v36
v_lshlrev_b32 v35, 10, v35
v_add_u32 {vWOP}, v35, v36
""")
    for n4 in range(4):
        a(f"""
v_add_u32 v35, {4*n4}, v33
v_xor_b32 v36, v32, v35
v_lshlrev_b32 v35, 1, v35
v_lshrrev_b32 v37, 3, v36
v_add_u32 v35, v35, v37
v_lshlrev_b32 v35, 10, v35
v_and_b32 v36, 7, v36
v_lshlrev_b32 v36, 4, v36
v_add_u32 v{STP+n4}, v35, v36
""")
    a(f"""
s_and_b32 s48, {S_WAVE}, 1
s_lshl_b32 s48, s48, 5
s_add_u32 s75, s48, {S_P0}
v_add_u32 v35, s48, {vJ}
v_lshrrev_b32 v36, 1, v35
v_and_b32 v37, 1, v35
v_lshlrev_b32 v37, 3, v37
v_or_b32 v37, v37, v34
v_and_b32 v38, 15, v36
v_xor_b32 v37, v37, v38
v_lshlrev_b32 v37, 4, v37
v_lshlrev_b32 v36, 8, v36
v_add_u32 v{OFA}, v36, v37
v_xor_b32 v{OFA+1}, 32, v{OFA}
v_xor_b32 v{OFA+2}, 64, v{OFA}
v_xor_b32 v{OFA+3}, 96, v{OFA}
s_lshl_b32 s84, s75, 10
s_lshr_b32 s48, {S_WAVE}, 1
s_lshl_b32 s48, s48, 7
s_add_u32 s84, s84, s48
s_lshl_b32 s79, {S_WAVE}, 11
s_lshl_b32 s73, {S_WAVE}, 12
s_lshl_b32 s74, {S_WAVE}, 15
s_lshl_b32 s48, {S_HG}, 7
s_add_u32 s74, s74, s48
s_mov_b32 s76, 0x0000ffff
s_mov_b32 s77, 0x0000ffff
s_mov_b32 s64, 0x55555555
s_mov_b32 s65, 0xaaaaaaaa
s_mov_b32 s66, 0x55555555
s_mov_b32 s67, 0x55555555
s_mov_b32 s68, 0xaaaaaaaa
s_mov_b32 s69, 0xaaaaaaaa
v_and_b32 v35, 7, v1
s_lshl_b32 s48, {S_PB}, 3
v_add_u32 {vFLG}, s48, v35
v_lshlrev_b32 {vFLG}, 7, {vFLG}
v_and_b32 v36, 1, v33
v_lshrrev_b32 v37, 1, v33
v_bfe_u32 v38, v1, 2, 2
v_lshlrev_b32 v37, 2, v37
v_add_u32 v37, v37, v38
v_lshlrev_b32 v37, 7, v37
v_lshrrev_b32 v38, 1, v38
s_bfe_u32 s49, {S_WAVE}, 0x10001
v_xor_b32 v38, s49, v38
v_lshlrev_b32 v38, 6, v38
v_lshlrev_b32 v36, 5, v36
v_add3_u32 v38, v38, v37, v36
v_and_b32 v36, 3, v1
v_lshlrev_b32 v36, 3, v36
v_add_u32 {vWOF}, v38, v36
""")

def PF(lo, hi):
    if "nopf" in OPT: return
    mask = ((1 << (4*hi)) - 1) ^ ((1 << (4*lo)) - 1)
    a(f"""
s_mov_b32 s48, {mask & 0xffffffff}
s_mov_b32 s49, {mask >> 32}
s_mov_b64 exec, s[48:49]
buffer_load_dword v29, v28, {SRD_W}, s53 offen
""")
    if MAP == "2": a(f"buffer_load_dword v29, v28, {SRD_W}, s89 offen")
    a("s_mov_b64 exec, -1")
NPF = 0 if "nopf" in OPT else (2 if os.environ.get("MAP", "1") == "2" else 1)

def g_phase1():
    a.comment("==== G waves (0..3)")
    a(f"""
s_cmp_lt_u32 {S_HG}, 4
s_cbranch_scc1 L_g_nogate
v_lshrrev_b32 v7, 4, v1
v_lshlrev_b32 v7, 4, v7
s_add_u32 s50, {S_WAVE}, s97
s_and_b32 s50, s50, 3
s_lshl_b32 s50, s50, 8
s_mov_b32 s48, 0x00010001
s_mov_b32 s49, 0x00010001
s_mov_b64 exec, s[48:49]
""")
    for ks in range(4):
        a(f"buffer_load_dwordx4 v[{64+4*ks}:{67+4*ks}], v7, {SRD_GT}, s50 offen offset:{ks*64}")
    a(f"""
s_mov_b64 exec, -1
L_g_nogate:
v_lshrrev_b32 v4, 2, v1
s_lshl_b32 s48, s97, 2
v_add_u32 v4, s48, v4
v_and_b32 v4, 15, v4
v_lshlrev_b32 v4, 5, v4
v_and_b32 v3, 3, v1
s_and_b32 s48, {S_PB}, {3 if MAP == "2" else 7}
s_lshl_b32 s48, s48, {3 if MAP == "2" else 2}
v_add3_u32 v4, v4, v3, s48
v_mul_lo_u32 v28, v4, s52
s_lshl_b32 s89, s52, 2
s_add_u32 s89, s89, s53
""")
    a("v_mov_b32 v30, v2")
    PFM = os.environ.get("PFM", "0")
    def PFX(w):
        a(f"""
s_cmp_lg_u32 {S_WAVE}, {w}
s_cbranch_scc1 L_pfx{w}
s_lshr_b32 s48, {S_HG}, 1
s_lshl_b32 s48, s48, 4
s_add_u32 s48, s48, {S_P0}
v_bfe_u32 v3, v1, 1, 4
v_add_u32 v3, s48, v3
v_lshlrev_b32 v3, 10, v3
v_lshrrev_b32 v4, 5, v1
v_lshlrev_b32 v4, 8, v4
v_and_b32 v5, 1, v1
v_lshlrev_b32 v5, 7, v5
v_add3_u32 v3, v3, v4, v5
buffer_load_dword v29, v3, {SRD_X}, 0 offen offset:{w*512}
L_pfx{w}:
""")
    if PFM == "a": PFX(0); PF(0, 16); PFX(1)
    if PFM == "b": PFX(0); PF(0, 8)
    if PFM == "c": PFX(0); PF(0, 6)
    setup_persistent()
    a(f"""
v_lshrrev_b32 v11, 5, v1
v_add_u32 v12, 16, {vJ}
v_and_b32 v13, 15, v12
v_xor_b32 v13, v13, v11
v_lshlrev_b32 v13, 4, v13
v_lshlrev_b32 v12, 8, v12
v_add_u32 v16, v12, v13
v_xor_b32 v17, 32, v16
v_xor_b32 v18, 64, v16
v_xor_b32 v19, 96, v16
v_xor_b32 v20, 128, v16
v_xor_b32 v21, 160, v16
v_xor_b32 v22, 192, v16
v_xor_b32 v23, 224, v16
v_lshrrev_b32 v10, 4, v1
v_and_b32 v11, 1, v10
v_lshrrev_b32 v10, 1, v10
v_bfe_u32 v12, v1, 2, 2
v_and_b32 v13, 3, v1
v_lshlrev_b32 v14, 3, v10
v_add_u32 v14, v14, v12
v_lshlrev_b32 v14, 7, v14
v_lshrrev_b32 v15, 1, v12
v_lshlrev_b32 v15, 6, v15
v_lshlrev_b32 v11, 5, v11
v_lshlrev_b32 v13, 3, v13
v_add3_u32 v14, v14, v15, v11
v_add_u32 v14, v14, v13
s_lshl_b32 s48, {S_WAVE}, 12
s_add_u32 s48, s48, {L_RING}
v_add_u32 v6, s48, v14
v_xor_b32 v7, 64, v6
""")
    kv_partial()
    a(f"""
v_lshrrev_b32 v11, 5, v1
v_lshlrev_b32 v10, 5, {vJ}
v_lshlrev_b32 v11, 4, v11
s_mul_i32 s49, {S_WAVE}, 10240
s_add_u32 s49, s49, {L_T}
v_add3_u32 v8, v10, v11, s49
v_add_u32 v9, {L_QB - 512}, {vL16}
s_movk_i32 s50, 2560
s_cmp_eq_u32 {S_WAVE}, 3
s_cselect_b64 vcc, -1, 0
s_cselect_b32 s50, 2048, s50
v_cndmask_b32 v8, v8, v9, vcc
v_add_u32 v9, s50, v8
v_add_u32 v10, s50, v9
v_add_u32 v11, s50, v10
v_mov_b32 v2, v30
v_and_b32 v3, 16, v1
v_lshlrev_b32 v3, 8, v3
v_add_u32 v3, 4096, v3
""")
    a(f"""
s_lshr_b32 s48, {S_WAVE}, 1
s_add_u32 s48, s48, 1
s_add_u32 s49, {S_WAVE}, 1
s_lshr_b32 s49, s49, 1
s_and_b32 s49, s49, 1
s_xor_b32 s49, s49, 1
s_sub_u32 s50, s48, {S_WAVE}
s_lshl_b32 s50, s50, 12
v_add_u32 v24, s50, v6
s_lshl_b32 s50, s49, 6
v_xor_b32 v24, s50, v24
s_lshl_b32 s48, s48, 2
s_lshl_b32 s49, s49, 1
s_add_u32 s48, s48, s49
s_mul_i32 s48, s48, 2560
s_add_u32 s48, s48, {L_T}
v_lshrrev_b32 v26, 5, v1
v_lshlrev_b32 v25, 5, {vJ}
v_lshlrev_b32 v26, 4, v26
v_add3_u32 v25, v25, v26, s48
""")
    XB = lambda buf, mt, ks2: 128 + 32 * buf + 4 * (2 * mt + ks2)
    WB = lambda buf, nt, ks2: 144 + 32 * buf + 4 * (2 * nt + ks2)
    ACC = lambda nt, mt: 64 + 16 * (2 * nt + mt)
    def reads(s):
        buf = s & 1; slot = s & 3; out = []
        for ks2 in range(2):
            k16 = 2 * s + ks2
            for nt in range(2):
                r = WB(buf, nt, ks2)
                for half in range(2):
                    off = slot * 16384 + (16 * ks2 + 4 * half) * 128
                    out.append(f"ds_read_b64_tr_b16 v[{r+2*half}:{r+2*half+1}], v{6+nt} offset:{off}")
            for mt in range(2):
                off = ((k16 >> 3) & 1) * XBLK + mt * 8192
                r = XB(buf, mt, ks2)
                out.append(f"ds_read_b128 v[{r}:{r+3}], v{16+(k16&7)} offset:{off}")
        return out
    def mf(s, ks2, nt, mt):
        buf = s & 1
        d = ACC(nt, mt); w = WB(buf, nt, ks2); x = XB(buf, mt, ks2)
        c = "0" if (s == 0 and ks2 == 0) else f"v[{d}:{d+15}]"
        return f"v_mfma_f32_32x32x16_bf16 v[{d}:{d+15}], v[{w}:{w+3}], v[{x}:{x+3}], {c}"
    HXB = lambda buf, ks2: 192 + 8 * buf + 4 * ks2
    HWB = lambda buf, ks2: 48 + 8 * buf + 4 * ks2
    HACC = 32
    def hreads(s):
        buf = s & 1; slot = s & 3; out = []
        for ks2 in range(2):
            k16 = 2 * s + ks2
            out.append(f"v_sub_u32 v{4+ks2}, v{16+(k16&7)}, v3")
            out.append(f"ds_read_b128 v[{HXB(buf,ks2)}:{HXB(buf,ks2)+3}], v{4+ks2} offset:{((k16 >> 3) & 1) * XBLK}")
            for half in range(2):
                r = HWB(buf, ks2) + 2 * half
                out.append(f"ds_read_b64_tr_b16 v[{r}:{r+1}], v24 offset:{slot * 16384 + (16 * ks2 + 4 * half) * 128}")
        return out
    def hmf(s, ks2):
        buf = s & 1; d = HACC; w = HWB(buf, ks2); x = HXB(buf, ks2)
        c = "0" if (s == 0 and ks2 == 0) else f"v[{d}:{d+15}]"
        return f"v_mfma_f32_32x32x16_bf16 v[{d}:{d+15}], v[{w}:{w+3}], v[{x}:{x+3}], {c}"
    vg = VM(a)
    xsched = {0: [(1, 1), (1, 2)], 1: [(1, 3), (1, 4)]}
    for i in range(8): xsched[2 + i] = [(2 + (i >> 2), 1 + (i & 3))]
    for s in range(16):
        if s == 4: vg.wait("X1")
        if s == 8: vg.wait("X2")
        if s == 12: vg.wait("X3")
        a(f"s_barrier   ; B_{s}")
        if s in (0, 4, 8, 12, 15): stamp(8 + s)
        if s == 8:
            for i in range(8): a(f"v_add_u32 v{16+i}, {2*XBLK}, v{16+i}")
        R = reads(s) + hreads(s)
        M = ([mf(s - 1, ks2, nt, mt) for ks2 in range(2) for nt in range(2) for mt in range(2)] + [hmf(s - 1, 0), hmf(s - 1, 1)]) if s > 0 else []
        while R or M:
            if M: a(M.pop(0))
            for _ in range(3):
                if R: a(R.pop(0))
        for (kb, rel) in xsched.get(s, []): x_instr(vg, kb, rel, f"X{kb}")
        if PFM == "0":
            if s == 0: PF(4, 8); vg.issue("pf", NPF)
            if s == 2: PF(8, 12); vg.issue("pf", NPF)
            if s == 5: PF(12, 16); vg.issue("pf", NPF)
        if PFM == "b" and s == 0: PF(8, 16); vg.issue("pf", NPF); a("v_mov_b32 v31, v3"); PFX(1); a("v_mov_b32 v3, v31")
        if PFM == "c" and s == 0: PF(6, 11); vg.issue("pf", NPF); a("v_mov_b32 v31, v3"); PFX(1); a("v_mov_b32 v3, v31")
        if PFM == "c" and s == 3: PF(11, 16); vg.issue("pf", NPF)
        if s == 3:
            a(f"""
s_cmp_lg_u32 {S_WAVE}, 0
s_cbranch_scc1 L_g_noarr
s_and_b32 s48, s2, 3
s_lshl_b32 s48, s48, 6
v_mov_b32 v12, s48
v_mov_b32 v13, 1
s_mov_b64 exec, 1
buffer_atomic_add v13, v12, {SRD_DBG}, 0 offen sc1
s_mov_b64 exec, -1
L_g_noarr:
""")
        a("s_waitcnt lgkmcnt(0)")
    tiles = [(nt, mt) for nt in range(2) for mt in range(2)]
    def pack(n):
        nt, mt = tiles[n]; d = ACC(nt, mt)
        for hh in range(2):
            p = 128 + 4 * (2 * n + hh)
            for e in range(4):
                a(f"v_cvt_pk_bf16_f32 v{p+e}, v{d+8*hh+2*e}, v{d+8*hh+2*e+1}")
            a(f"ds_write_b128 v{8+2*nt+hh}, v[{p}:{p+3}] offset:{mt*1024 + 512}")
    a(hmf(15, 0)); a(hmf(15, 1))
    for n, (nt, mt) in enumerate(tiles):
        a(mf(15, 0, nt, mt)); a(mf(15, 1, nt, mt))
        if n == 1:
            a("s_mov_b64 exec, s[76:77]")
            for hh in range(2):
                p = 48 + 4 * hh
                for e in range(4):
                    a(f"v_cvt_pk_bf16_f32 v{p+e}, v{HACC+8*hh+2*e}, v{HACC+8*hh+2*e+1}")
                a(f"ds_write_b128 v25, v[{p}:{p+3}] offset:{hh*2560}")
            a("s_mov_b64 exec, -1")
        if n >= 2: pack(n - 2)
    pack(2); pack(3)
    for i in range(16): a(f"v_mov_b32 v{AQR+i}, 0")
    a("s_waitcnt lgkmcnt(0)")
    stamp(30)
    a("s_barrier   ; B_e")
    stamp(31)

def kv_partial():
    a.comment("---- KV partial: G wave j handles k-block j of rows 16+16*u4+i")
    a(f"""
s_lshl_b32 s48, {S_U4}, 4
s_add_u32 s48, s48, 16
v_and_b32 v12, 15, v1
v_lshrrev_b32 v13, 4, v1
v_add_u32 v14, s48, v12
v_lshlrev_b32 v14, 8, v14
v_xor_b32 v15, v12, v13
v_lshlrev_b32 v15, 4, v15
s_mul_i32 s49, {S_WAVE}, {XBLK}
v_add3_u32 v2, v15, v14, s49
v_xor_b32 v3, 64, v2
v_xor_b32 v4, 128, v2
v_xor_b32 v5, 192, v2
v_bfe_u32 v14, v1, 2, 2
v_lshlrev_b32 v15, 3, v13
v_add_u32 v15, v15, v14
v_lshlrev_b32 v15, 5, v15
v_and_b32 v14, 3, v1
v_lshlrev_b32 v14, 3, v14
s_add_u32 s49, {S_WAVE}, s97
s_and_b32 s49, s49, 3
s_lshl_b32 s49, s49, 12
s_add_u32 s49, s49, {L_WK}
v_add3_u32 v8, v15, v14, s49
s_lshl_b32 s49, {S_WAVE}, 10
s_add_u32 s49, s49, {SCR_D}
v_add_u32 v9, s49, {vL16}
v_lshlrev_b32 v10, 2, v1
s_lshl_b32 s49, {S_WAVE}, 8
s_add_u32 s49, s49, {SCR_G}
v_add_u32 v10, s49, v10
""")
    stamp(3)
    a("s_waitcnt vmcnt(%d)" % (0 if os.environ.get("PFM", "0") == "0" else NPF))
    a("s_barrier   ; B_kv")
    stamp(4)
    for ks in range(4):
        a(f"ds_read_b128 v[{192+4*ks}:{195+4*ks}], v{2+ks}")
        for half in range(2):
            a(f"ds_read_b64_tr_b16 v[{128+4*ks+2*half}:{129+4*ks+2*half}], v8 offset:{ks*1024 + half*128}")
    a(f"s_cmp_ge_u32 {S_HG}, 4")
    a("s_cbranch_scc1 L_kv_V")
    for isV in (False, True):
        for ks in range(4):
            a(f"s_waitcnt lgkmcnt({3*(3-ks)})")
            w = f"v[{128+4*ks}:{131+4*ks}]"; x = f"v[{192+4*ks}:{195+4*ks}]"
            c0 = "0" if ks == 0 else "v[24:27]"; c1 = "0" if ks == 0 else "v[32:35]"
            if isV:
                a(f"v_mfma_f32_16x16x32_bf16 v[32:35], v[{64+4*ks}:{67+4*ks}], {x}, {c1}")
                a(f"v_mfma_f32_16x16x32_bf16 v[24:27], {x}, {w}, {c0}")
            else:
                a(f"v_mfma_f32_16x16x32_bf16 v[24:27], {w}, {x}, {c0}")
        if isV:
            a("ds_write_b32 v10, v32")
        else:
            a("s_branch L_kv_done")
            a("L_kv_V:")
    a("L_kv_done:")
    a.fence(8)
    a("ds_write_b128 v9, v[24:27]")
    a("s_waitcnt lgkmcnt(0)")
    stamp(5)

def kv_final():
    a.comment("---- KV finalize (aux wave 3)")
    a(f"""
s_cmp_lg_u32 {S_A}, 3
s_cbranch_scc1 L_kvf_done
v_lshlrev_b32 v41, 2, v1
ds_read_b128 v[44:47], {vL16} offset:{SCR_D}
ds_read_b128 v[48:51], {vL16} offset:{SCR_D+1024}
ds_read_b128 v[52:55], {vL16} offset:{SCR_D+2048}
ds_read_b128 v[56:59], {vL16} offset:{SCR_D+3072}
ds_read_b32 v60, v41 offset:{SCR_G}
ds_read_b32 v61, v41 offset:{SCR_G+256}
ds_read_b32 v62, v41 offset:{SCR_G+512}
ds_read_b32 v63, v41 offset:{SCR_G+768}
s_lshl_b32 s48, {S_PB}, 1
s_lshr_b32 s49, {S_U4}, 1
s_add_u32 s48, s48, s49
s_lshr_b32 s49, s48, 3
s_lshl_b32 s49, s49, 14
s_and_b32 s51, s48, 7
s_lshl_b32 s51, s51, 10
s_add_u32 s49, s49, s51
s_and_b32 s50, {S_U4}, 1
v_and_b32 v42, 15, v1
v_bfe_u32 v43, v1, 4, 1
v_lshlrev_b32 v40, 4, v42
v_lshrrev_b32 v41, 5, v1
v_lshlrev_b32 v41, 3, v41
v_add_u32 v41, v41, v40
s_waitcnt lgkmcnt(4)
""")
    for r in range(4):
        a(f"v_add_f32 v{44+r}, v{44+r}, v{48+r}")
        a(f"v_add_f32 v{52+r}, v{52+r}, v{56+r}")
    for r in range(4):
        a(f"v_add_f32 v{44+r}, v{44+r}, v{52+r}")
    a(f"""
s_cmp_ge_u32 {S_HG}, 4
s_cbranch_scc1 L_kvf_V
s_lshl_b32 s51, s50, 8
s_add_u32 s49, s49, s51
v_lshlrev_b32 v43, 9, v43
v_add_u32 v43, v43, v41
s_mov_b32 s51, {f32(QSCALE)}
v_mul_f32 v44, s51, v44
v_mul_f32 v45, s51, v45
v_mul_f32 v46, s51, v46
v_mul_f32 v47, s51, v47
v_cvt_pk_bf16_f32 v48, v44, v45
v_cvt_pk_bf16_f32 v49, v46, v47
buffer_store_dwordx2 v[48:49], v43, {SRD_WS}, s49 offen sc1
v_mul_f32 v52, v44, v44
v_fmac_f32 v52, v45, v45
v_fmac_f32 v52, v46, v46
v_fmac_f32 v52, v47, v47
v_mov_b32 v53, v52
v_permlane32_swap_b32 v52, v53
v_add_f32 v52, v52, v53
v_mov_b32 v53, v52
v_permlane16_swap_b32 v52, v53
v_add_f32 v52, v52, v53
v_max_f32_dpp v52, v52, v52 row_ror:8 row_mask:0xf bank_mask:0xf
v_max_f32_dpp v52, v52, v52 row_ror:4 row_mask:0xf bank_mask:0xf
v_max_f32_dpp v52, v52, v52 row_ror:2 row_mask:0xf bank_mask:0xf
v_max_f32_dpp v52, v52, v52 row_ror:1 row_mask:0xf bank_mask:0xf
s_lshl_b32 s48, s88, 7
s_add_u32 s48, s48, {WS_FL + 12}
v_mov_b32 v53, s48
s_mov_b64 exec, 1
buffer_store_dword v52, v53, {SRD_WS}, 0 offen sc1
s_mov_b64 exec, -1
s_branch L_kvf_done
L_kvf_V:
s_lshl_b32 s51, s50, 9
s_add_u32 s49, s49, s51
s_add_u32 s49, s49, 8192
v_lshlrev_b32 v43, 8, v43
v_add_u32 v43, v43, v41
v_cvt_pk_bf16_f32 v48, v44, v45
v_cvt_pk_bf16_f32 v49, v46, v47
buffer_store_dwordx2 v[48:49], v43, {SRD_WS}, s49 offen sc1
s_waitcnt lgkmcnt(0)
v_add_f32 v60, v60, v61
v_add_f32 v62, v62, v63
v_add_f32 v60, v60, v62
v_mul_f32 v60, {f32(-LOG2E)}, v60
v_exp_f32 v60, v60
v_add_f32 v60, 1.0, v60
v_rcp_f32 v60, v60
s_lshl_b32 s48, {S_PB}, 2
s_add_u32 s48, s48, {S_U4}
s_lshl_b32 s48, s48, 7
v_lshlrev_b32 v53, 2, v42
s_add_u32 s49, s48, {WS_G}
s_mov_b64 exec, 0xffff
buffer_store_dword v60, v53, {SRD_WS}, s49 offen sc1
s_mov_b64 exec, -1
L_kvf_done:
""")
    a.fence(2)

def c0_dma():
    a(f"""
s_lshl_b32 s72, {S_A}, 13
v_lshrrev_b32 v8, 2, v1
v_lshlrev_b32 v8, 3, v8
v_and_b32 v9, 3, v1
v_add_u32 v8, v8, v9
v_lshlrev_b32 v8, 7, v8
s_lshl_b32 s48, {S_A}, 14
s_and_b32 s48, s48, 0x4000
s_add_u32 s48, s48, {WS_FL + 12}
""")
    for i in range(8):
        a(f"s_add_u32 m0, s72, {(i>>2)*4096}")
        a(f"s_add_u32 s95, s72, {WS_KV + (i>>2)*4096}")
        a(f"buffer_load_dwordx4 {vL16}, {SRD_WS}, s95 offen offset:{(i&3)*1024} sc1 lds")
    a(f"buffer_load_dword v96, v8, {SRD_WS}, s48 offen sc1")

def issue_w(vm, s):
    slot = s & 3
    if s % 4 == 0:
        a(f"s_lshr_b32 s94, s52, 1")
        a(f"s_mul_i32 s94, s94, s{44 + s // 4}")
        a("s_sub_u32 s94, s94, s93")
    for i in range(4):
        a(f"s_add_u32 m0, s92, {slot*16384 + i*1024}")
        a("s_add_u32 s94, s94, s93")
        a(f"buffer_load_dwordx4 v5, {SRD_W}, s94 offen lds")
        vm.issue(f"S{s}")

def aux_phase1():
    a("L_aux:")
    a.fence(4)
    vm = VM(a)
    a(f"s_lshl_b32 s96, {S_A}, 12")
    for kb in range(4):
        x_instr(vm, kb, 0, "KV")
        a(f"s_add_u32 m0, s96, {L_WK}")
        a("s_nop 0")
        a(f"buffer_load_dwordx4 {vL16}, {SRD_WK}, s96 offen offset:{kb*1024} lds")
        vm.issue("KV")
    a(f"""
v_lshrrev_b32 v10, 3, v1
v_and_b32 v11, 7, v1
v_bfe_u32 v12, v1, 4, 1
v_lshlrev_b32 v12, 2, v12
v_xor_b32 v11, v11, v12
v_lshlrev_b32 v11, 4, v11
v_mul_lo_u32 v10, v10, s52
v_add3_u32 v5, v10, v11, s53
s_lshl_b32 s92, {S_A}, 12
s_add_u32 s92, s92, {L_RING}
s_lshl_b32 s93, s52, 3
s_sub_u32 s94, 0, s93
""")
    for rel in (1, 2, 3, 4): x_instr(vm, 0, rel, "S0")
    issue_w(vm, 0)
    W1E = os.environ.get("W1E", "0") == "1"
    if W1E: issue_w(vm, 1)
    a(f"""
s_cmp_lg_u32 {S_A}, 3
s_cbranch_scc1 L_aux_norst
s_lshl_b32 s48, s88, 7
s_add_u32 s48, s48, {WS_FL}
v_mov_b32 v8, s48
v_mov_b32 v10, 0
v_mov_b32 v11, 0
s_mov_b64 exec, 1
buffer_store_dwordx2 v[10:11], v8, {SRD_WS}, 0 offen offset:4 sc1
s_mov_b64 exec, -1
L_aux_norst:
""")
    setup_persistent()
    for i in range(16): a(f"v_mov_b32 v{AQR+i}, 0")
    a(f"""
v_and_b32 v37, 3, v1
v_lshlrev_b32 v37, 6, v37
v_mov_b32 v38, {L_GO}
""")
    stamp(1)
    vm.wait("KV")
    stamp(3)
    a("s_barrier   ; B_kv")
    if not W1E: issue_w(vm, 1); issue_w(vm, 2)
    for s in range(16):
        if s >= 14:
            n = 4 * (15 - s)
            a(f"""
s_cmp_eq_u32 s83, 1
s_cbranch_scc1 L_aux_w{s}a
s_waitcnt vmcnt({n})
L_aux_w{s}a:
s_waitcnt vmcnt({n + 9})
""")
        else:
            vm.wait(f"S{s}")
        if s == 13:
            a(f"""
s_cmp_lg_u32 {S_A}, 0
s_cbranch_scc1 L_aux_nogo
v_cmp_ne_u32 vcc, 64, v9
s_cmp_eq_u64 vcc, 0
s_cselect_b32 s48, 1, 0
v_mov_b32 v9, s48
ds_write_b32 v38, v9
s_waitcnt lgkmcnt(0)
L_aux_nogo:
""")
        if s in (4, 8, 12, 15): stamp(40 + s)
        a(f"s_barrier   ; B_{s}")
        if s == 10:
            a(f"""
s_cmp_lg_u32 {S_A}, 0
s_cbranch_scc1 L_aux_nopoll
buffer_load_dword v9, v37, {SRD_DBG}, 0 offen sc1
L_aux_nopoll:
""")
        if s == 0:
            if W1E: issue_w(vm, 2)
            kv_final(); issue_w(vm, 3)
        if 1 <= s and s + 3 < 16: issue_w(vm, s + 3)
        if s == 13:
            a(f"""
ds_read_b32 v9, v38
s_waitcnt lgkmcnt(0)
v_readfirstlane_b32 s83, v9
s_cmp_eq_u32 s83, 1
s_cbranch_scc0 L_aux_noearly
""")
            c0_dma()
            a("L_aux_noearly:")
    a(f"""
s_cmp_eq_u32 s83, 1
s_cbranch_scc1 L_aux_have
s_mov_b32 s49, 0
L_poll_go:
buffer_load_dword v9, v37, {SRD_DBG}, 0 offen sc1
s_add_u32 s49, s49, 1
s_waitcnt vmcnt(0)
v_cmp_ne_u32 vcc, 64, v9
s_cmp_ge_u32 s49, {SPIN_MAX}
s_cbranch_scc1 L_poll_go_done
s_cbranch_vccz L_poll_go_done
s_sleep 4
s_branch L_poll_go
L_poll_go_done:
""")
    stamp(34)
    c0_dma()
    a(f"""
L_aux_have:
s_waitcnt vmcnt(0)
v_mov_b32 v97, v96
v_permlane32_swap_b32 v96, v97
v_max_f32 v96, v96, v97
v_mov_b32 v97, v96
v_permlane16_swap_b32 v96, v97
v_max_f32 v96, v96, v97
v_max_f32_dpp v96, v96, v96 row_ror:8 row_mask:0xf bank_mask:0xf
v_max_f32_dpp v96, v96, v96 row_ror:4 row_mask:0xf bank_mask:0xf
v_max_f32_dpp v96, v96, v96 row_ror:2 row_mask:0xf bank_mask:0xf
v_max_f32_dpp v96, v96, v96 row_ror:1 row_mask:0xf bank_mask:0xf
s_and_b32 s48, {S_A}, 1
s_lshl_b32 s48, s48, 2
s_add_u32 s48, s48, {L_KMAX}
v_mov_b32 v97, s48
ds_write_b32 v97, v96
s_waitcnt lgkmcnt(0)
""")
    stamp(30)
    a("s_barrier   ; B_e")

def phase2_start():
    a(f"""
v_and_b32 v28, 3, v1
v_lshlrev_b32 v28, 11, v28
v_bfe_u32 v29, v1, 2, 3
s_lshl_b32 s48, {S_WAVE}, 3
s_and_b32 s49, s48, 31
v_add_u32 v29, s49, v29
v_and_b32 v30, 32, v1
v_add_u32 v29, v29, v30
v_lshlrev_b32 v29, 4, v29
s_lshr_b32 s49, {S_WAVE}, 2
s_lshl_b32 s49, s49, 10
s_add_u32 s49, s49, {L_QB}
v_add3_u32 v30, v28, v29, s49
v_mov_b32 v13, {L_KMAX}
ds_read_b128 v[4:7], v30
ds_read_b64 v[14:15], v13
ds_read_b128 v[{KF}:{KF+3}], {vL16}
ds_read_b128 v[{KF+4}:{KF+7}], {vL16} offset:1024
s_mov_b64 exec, s[76:77]
ds_read_b128 v[{VF}:{VF+3}], {vVA}
ds_read_b128 v[{VF+4}:{VF+7}], {vVA} offset:512
s_mov_b64 exec, -1
v_mov_b32 v12, 0
s_waitcnt lgkmcnt(4)
v_dot2_f32_bf16 v12, v4, v4, v12
v_dot2_f32_bf16 v12, v5, v5, v12
v_dot2_f32_bf16 v12, v6, v6, v12
v_dot2_f32_bf16 v12, v7, v7, v12
v_max_f32 v14, v14, v15
v_mov_b32 v13, v12
v_permlane32_swap_b32 v12, v13
v_add_f32 v12, v12, v13
v_mul_f32 v12, v12, v14
v_sqrt_f32 v12, v12
v_sub_f32 v{C_}, 0, v12
""")
    for i in range(1, 16): a(f"v_mov_b32 v{C_+i}, v{C_}")
    a("s_waitcnt lgkmcnt(3)")
    a(f"v_mfma_f32_32x32x16_bf16 v[{SA}:{SA+15}], v[{KF}:{KF+3}], v[4:7], v[{C_}:{C_+15}]")
    a(f"ds_read_b128 v[{KF}:{KF+3}], {vL16} offset:2048")
    stamp(36)
    if "hdbg" in OPT:
        a("""s_memtime s[100:101]
s_waitcnt lgkmcnt(0)
v_mov_b32 v2, s100
v_mov_b32 v3, s100""")

AKR = lambda u: 128 + 4 * u
AVR = lambda u: 136 + 4 * u
ASR = lambda u: 144 + 4 * u
AOR = lambda u: 152 + 4 * u
ALR = lambda u: 160 + 4 * u
AMX = lambda u: 168 + 2 * u
def aatt(step):
    QR = lambda u: AQR + 4 * u
    PR = lambda u: APR + 4 * u
    if step == 0:
        for u in range(2):
            a(f"ds_read_b128 v[{AKR(u)}:{AKR(u)+3}], {vAK} offset:{u*512}")
        a("s_mov_b64 exec, s[64:65]")
        for u in range(2):
            a(f"ds_read_b128 v[{QR(u)}:{QR(u)+3}], {vAQ} offset:{u*512}")
        a("s_mov_b64 exec, -1")
        for u in range(2):
            a(f"ds_read_b64_tr_b16 v[{AVR(u)}:{AVR(u)+1}], {vAV} offset:{u*512}")
            a(f"ds_read_b64_tr_b16 v[{AVR(u)+2}:{AVR(u)+3}], {vAV} offset:{u*512+32}")
    if step == 1:
        for u in range(2):
            c = CM0 if u == 0 else CM
            a(f"v_mfma_f32_16x16x32_bf16 v[{ASR(u)}:{ASR(u)+3}], v[{AKR(u)}:{AKR(u)+3}], v[{QR(u)}:{QR(u)+3}], v[{c}:{c+3}]")
    if step == 2:
        a(f"s_mov_b32 s51, {f32(QSCALE)}")
        for u in range(2):
            s = ASR(u); m = AMX(u)
            a(f"v_max3_f32 v{m}, v{s}, v{s+1}, v{s+2}")
            a(f"v_max_f32 v{m}, v{m}, v{s+3}")
            a(f"v_mov_b32 v{m+1}, v{m}")
        for u in range(2):
            m = AMX(u); a(f"v_permlane32_swap_b32 v{m}, v{m+1}")
        for u in range(2):
            m = AMX(u); a(f"v_max_f32 v{m}, v{m}, v{m+1}"); a(f"v_mov_b32 v{m+1}, v{m}")
        for u in range(2):
            m = AMX(u); a(f"v_permlane16_swap_b32 v{m}, v{m+1}")
        for u in range(2):
            m = AMX(u); a(f"v_max_f32 v{m}, v{m}, v{m+1}"); a(f"v_mul_f32 v{m}, s51, v{m}")
        for u in range(2):
            s = ASR(u); m = AMX(u)
            for r in range(4): a(f"v_fma_f32 v{s+r}, v{s+r}, s51, -v{m}")
        for u in range(2):
            s = ASR(u)
            for r in range(4): a(f"v_exp_f32 v{s+r}, v{s+r}")
        a("s_mov_b64 exec, s[66:67]")
        for u in range(2):
            s = ASR(u); p = PR(u)
            a(f"v_cvt_pk_bf16_f32 v{p}, v{s}, v{s+1}"); a(f"v_cvt_pk_bf16_f32 v{p+1}, v{s+2}, v{s+3}")
        a("s_mov_b64 exec, s[68:69]")
        for u in range(2):
            s = ASR(u); p = PR(u)
            a(f"v_cvt_pk_bf16_f32 v{p+2}, v{s}, v{s+1}"); a(f"v_cvt_pk_bf16_f32 v{p+3}, v{s+2}, v{s+3}")
        a("s_mov_b64 exec, -1")
        for u in range(2):
            a(f"v_mfma_f32_16x16x32_bf16 v[{ALR(u)}:{ALR(u)+3}], v[{ONES}:{ONES+3}], v[{PR(u)}:{PR(u)+3}], 0")
        for u in range(2):
            a(f"v_mfma_f32_16x16x32_bf16 v[{AOR(u)}:{AOR(u)+3}], v[{AVR(u)}:{AVR(u)+3}], v[{PR(u)}:{PR(u)+3}], 0")
    if step == 3:
        for u in range(2):
            a(f"v_rcp_f32 v{ALR(u)}, v{ALR(u)}")
        for u in range(2):
            o = AOR(u)
            for r in range(4): a(f"v_mul_f32 v{o+r}, v{o+r}, v{ALR(u)}")
            a(f"v_cvt_pk_bf16_f32 v{o}, v{o}, v{o+1}"); a(f"v_cvt_pk_bf16_f32 v{o+1}, v{o+2}, v{o+3}")
            a(f"ds_write_b64 {vAO}, v[{o}:{o+1}] offset:{u*2048}")

def kv_dma(sc):
    for i in range(2):
        a(f"s_add_u32 m0, s79, {(sc&3)*16384}")
        a(f"s_add_u32 s95, s79, {WS_KV + sc*16384}")
        a(f"buffer_load_dwordx4 {vL16}, {SRD_WS}, s95 offen offset:{i*1024} sc1 lds")
def oa_dma(half, dst):
    for n in range(4):
        a(f"s_add_u32 m0, s73, {dst + n*1024}")
        a(f"s_add_u32 s95, s84, {WS_OA + half*512}")
        a(f"buffer_load_dwordx4 v{STP+n}, {SRD_WS}, s95 offen sc1 lds")
def wo_dma(srdw, half, dst):
    for i in range(4):
        a(f"s_add_u32 m0, s73, {dst + i*1024}")
        a(f"s_add_u32 s95, s74, {half*262144 + i*8192}")
        a(f"buffer_load_dwordx4 {vWOP}, {srdw}, s95 offen lds")
def markers_gate():
    a(f"""
v_lshrrev_b32 v24, 3, v1
v_and_b32 v25, 7, v1
v_lshlrev_b32 v25, 4, v25
s_lshl_b32 s48, {S_WAVE}, 3
s_add_u32 s48, s48, {S_P0}
v_add_u32 v24, s48, v24
v_lshlrev_b32 v24, 10, v24
s_lshl_b32 s49, {S_HG}, 7
s_add_u32 s49, s49, {WS_OB}
v_add_u32 v24, v24, v25
v_mov_b32 v28, -1
v_mov_b32 v29, -1
v_mov_b32 v30, -1
v_mov_b32 v31, -1
buffer_store_dwordx4 v[28:31], v24, {SRD_WS}, s49 offen sc1
v_lshrrev_b32 v24, 4, {vJ}
v_lshlrev_b32 v24, 7, v24
v_and_b32 v25, 15, v1
v_lshlrev_b32 v25, 2, v25
v_add_u32 v15, v24, v25
s_lshl_b32 s48, s75, 3
s_add_u32 s48, s48, {WS_G}
buffer_load_dword v9, v15, {SRD_WS}, s48 offen sc1
v_bfe_u32 v24, v1, 2, 3
s_and_b32 s48, {S_WAVE}, 1
s_lshl_b32 s48, s48, 3
v_add_u32 v24, s48, v24
v_lshlrev_b32 v24, 2, v24
s_lshr_b32 s48, {S_WAVE}, 1
s_lshl_b32 s49, {S_PB}, 2
s_add_u32 s48, s48, s49
s_lshl_b32 s48, s48, 7
s_add_u32 s48, s48, {WS_G}
buffer_load_dword v10, v24, {SRD_WS}, s48 offen sc1
""")

def pv1(t):
    vb = VF + 8 * (t & 1)
    a(f"v_mfma_f32_32x32x16_bf16 v[{O_}:{O_+15}], v[{vb+4}:{vb+7}], v[{P_+4}:{P_+7}], v[{O_}:{O_+15}]")

def tile(t, bg=(), bgwait=False):
    first = t == 0
    S = SA if t % 2 == 0 else SB
    Sn = SB if t % 2 == 0 else SA
    def koff(x): return ((x >> 3) & 3) * 16384 + (x & 7) * 1024
    kb = KF + 4 * ((t + 1) & 1)
    vb = VF + 8 * (t & 1)
    vbp = VF + 8 * ((t + 1) & 1)
    if first: a("s_waitcnt lgkmcnt(3)")
    E = lambda i: a(f"v_exp_f32 v{S+i}, v{S+i}")
    Cv = lambda i: a(f"v_cvt_pk_bf16_f32 v{P_+i}, v{S+2*i}, v{S+2*i+1}")
    n = [0]
    def vloads():
        if t + 1 < 64:
            a("s_mov_b64 exec, s[76:77]")
            a(f"ds_read_b128 v[{vbp}:{vbp+3}], {vVA} offset:{koff(t+1)}")
            a(f"ds_read_b128 v[{vbp+4}:{vbp+7}], {vVA} offset:{koff(t+1)+512}")
            a("s_mov_b64 exec, -1")
            n[0] += 2
    def pv0():
        c = "0" if first else f"v[{O_}:{O_+15}]"
        a(f"v_mfma_f32_32x32x16_bf16 v[{O_}:{O_+15}], v[{vb}:{vb+3}], v[{P_}:{P_+3}], {c}")
    if t + 1 < 64: a(f"v_mfma_f32_32x32x16_bf16 v[{Sn}:{Sn+15}], v[{kb}:{kb+3}], v[4:7], v[{C_}:{C_+15}]")
    if t + 3 < 64: a(f"ds_read_b128 v[{kb}:{kb+3}], {vL16} offset:{koff(t+3)}"); n[0] += 1
    if bg:
        for i in range(4): E(i)
        pv1(t - 1)
        vloads()
        for i in range(4, 8): E(i)
        if bgwait: a(f"s_waitcnt lgkmcnt({n[0]})")
        bg[0]()
        for i in range(4): Cv(i)
        for i in range(8, 10): E(i)
        a(f"s_waitcnt lgkmcnt({n[0]})")
        pv0()
        for i in range(10, 14): E(i)
        bg[1]()
        for i in range(14, 16): E(i)
        for i in range(4, 8): Cv(i)
    else:
        for i in range(6): E(i)
        if not first: pv1(t - 1)
        vloads()
        for i in range(6, 8): E(i)
        for i in range(4): Cv(i)
        for i in range(8, 11): E(i)
        a(f"s_waitcnt lgkmcnt({n[0]})")
        pv0()
        for i in range(11, 16): E(i)
        for i in range(4, 8): Cv(i)

def ap_flag_issue():
    a(f"s_mov_b32 s50, {WS_FL + 4}")
    a(f"buffer_load_dword v25, {vFLG}, {SRD_WS}, s50 offen sc1")
def ap_flag_check(h):
    a(f"""
s_mov_b32 s49, 0
s_mov_b32 s50, {WS_FL + 4}
s_branch L_ap_chk{h}
L_ap_poll{h}:
buffer_load_dword v25, {vFLG}, {SRD_WS}, s50 offen sc1
s_add_u32 s49, s49, 1
s_waitcnt vmcnt(0)
L_ap_chk{h}:
v_cmp_ne_u32 vcc, 1, v25
s_cmp_ge_u32 s49, {SPIN_MAX}
s_cbranch_scc1 L_ap_go{h}
s_cbranch_vccnz L_ap_poll{h}
L_ap_go{h}:
""")
def phase2_loop():
    def bw_frags():
        a(f"""
s_mov_b32 s78, {R0}
s_cmp_ge_u32 {S_WAVE}, 4
s_cselect_b32 s78, {R2}, s78
v_add_u32 v16, s78, {vWOF}
""")
    def bw_reads(lo, hi):
        for kk in range(lo, hi):
            for half in range(2):
                r = BW + 4 * kk + 2 * half
                a(f"ds_read_b64_tr_b16 v[{r}:{r+1}], v16 offset:{kk*2048 + half*1024}")
    def publish():
        a(f"""
s_cmp_lg_u32 {S_WAVE}, 0
s_cbranch_scc1 L_nopub
s_lshl_b32 s48, s88, 7
s_add_u32 s48, s48, {WS_FL + 4}
v_mov_b32 v16, s48
v_mov_b32 v17, 1
s_mov_b64 exec, 1
buffer_store_dword v17, v16, {SRD_WS}, 0 offen sc1
s_mov_b64 exec, -1
L_nopub:
""")
    def oa_read():
        a(f"""
s_lshl_b32 s48, {S_WAVE}, 10
s_add_u32 s48, s48, {L_OAT}
v_add_u32 v16, s48, {vL16}
ds_read_b128 v[20:23], v16
""")
    def oa_store():
        a(f"""
v_lshrrev_b32 v24, 3, v1
v_and_b32 v25, 7, v1
v_lshlrev_b32 v25, 4, v25
v_lshlrev_b32 v24, 10, v24
v_add_u32 v24, v24, v25
s_lshl_b32 s48, {S_WAVE}, 3
s_add_u32 s48, s48, {S_P0}
s_lshl_b32 s48, s48, 10
s_lshl_b32 s49, {S_HG}, 7
s_add_u32 s48, s48, s49
s_add_u32 s48, s48, {WS_OA}
buffer_store_dwordx4 v[20:23], v24, {SRD_WS}, s48 offen sc1
""")
    STG = 3
    sn = [
        (1, lambda h: (kv_dma(2), aatt(0))),
        (2, lambda h: aatt(1)),
        (3, lambda h: aatt(2)),
        (4, lambda h: (aatt(3), kv_dma(3))),
        (6, lambda h: markers_gate()),
        (7, lambda h: wo_dma(SRD_BWO, 0, R0)),
        (13, lambda h: (oa_read(), kv_dma(4))),
        (14, lambda h: oa_store()),
        (21, lambda h: (publish() if h == 0 else None, kv_dma(5))),
        (22, lambda h: wo_dma(SRD_BWO, 1, R2)),
        (29, lambda h: kv_dma(6)),
        (30, lambda h: (bw_frags(), bw_reads(0, 6))),
        (31, lambda h: bw_reads(6, 11)),
        (32, lambda h: bw_reads(11, 16)),
        (33, lambda h: ap_flag_issue()),
        (37, lambda h: (ap_flag_check(h), kv_dma(7))),
        (38, lambda h: oa_dma(0, R1)),
        (39, lambda h: wo_dma(SRD_AWO, 0, R0)),
        (45, lambda h: wo_dma(SRD_AWO, 1, R2)),
        (53, lambda h: oa_dma(1, 0)),
    ]
    PRIO = [int(c) for c in os.environ.get("PRIO", "33322110")]
    if "roll" in OPT or "unroll" in OPT:
        tile(0)
        for t in range(1, 8): tile(t)
        stamp(37)
        if "roll" in OPT:
            a("s_mov_b32 s86, 0")
            a(".p2align 6")
            a("L_roll:")
        for rep in range(1 if "roll" in OPT else 6):
            for t in range(8, 16):
                ph = (t - 5) % 8
                if "bar" in OPT and t % 8 == 5: a("s_barrier")
                if "prio" in OPT and PRIO[ph] != PRIO[(ph - 1) % 8]: a(f"s_setprio {PRIO[ph]}")
                tile(t)
        if "roll" in OPT:
            a("s_add_u32 s86, s86, 1\ns_cmp_lt_u32 s86, 6\ns_cbranch_scc1 L_roll")
        stamp(40)
        a("s_setprio 0")
        a.fence(2)
        pv1(63)
        return
    nsn = 0
    for t in range(64):
        if t % 8 == 5 and t > 8:
            a("s_waitcnt vmcnt(0) lgkmcnt(0)" if t in (13, 21, 37) else "s_waitcnt vmcnt(0)")
            if "pb" in OPT: stamp(46 + t // 8)
            a(f"s_barrier   ; b{t//8+1}")
            if "pb" in OPT: stamp(55 + t // 8)
        ph = (t - 5) % 8
        if t == 0 or PRIO[ph] != PRIO[(ph - 1) % 8]:
            a(f"s_setprio {PRIO[ph]}")
        f0 = [f for (tt, f) in sn if tt == t]
        f1 = [f for (tt, f) in sn if tt + STG == t]
        if f0:
            nsn += 1; L = f"L_sn{nsn}"
            a(f"s_cmp_ge_u32 {S_WAVE}, 4\ns_cbranch_scc1 {L}")
            for f in f0: f(0)
            a(f"{L}:")
        if f1:
            nsn += 1; L = f"L_sn{nsn}"
            a(f"s_cmp_lt_u32 {S_WAVE}, 4\ns_cbranch_scc1 {L}")
            for f in f1: f(1)
            a(f"{L}:")
        tile(t)
        if t % 16 == 15: stamp(37 + t // 16)
    a("s_setprio 0")
    a.fence(2)
    pv1(63)

def fallback():
    a.comment("---- softmax safety check: l must be >= 2^-60, else redo this tile with the true max (slow path, K/V from global)")
    a.fence(12)
    a(f"""
s_mov_b32 s48, 0x21800000
v_cmp_nle_f32 vcc, s48, v{O_+8}
s_cbranch_vccz L_fb_done
v_and_b32 v3, 0x1fff, {vVA}
v_mov_b32 v12, {f32(-3.0e38)}
s_mov_b32 s48, 0
L_fb1:
s_lshr_b32 s49, s48, 3
s_lshl_b32 s49, s49, 14
s_and_b32 s50, s48, 7
s_lshl_b32 s50, s50, 10
s_add_u32 s49, s49, s50
buffer_load_dwordx4 v[{KF}:{KF+3}], {vL16}, {SRD_WS}, s49 offen sc1
s_waitcnt vmcnt(0)
v_mfma_f32_32x32x16_bf16 v[{SA}:{SA+15}], v[{KF}:{KF+3}], v[4:7], 0
""")
    for i in range(8): a(f"v_max3_f32 v12, v12, v{SA+2*i}, v{SA+2*i+1}")
    a(f"""
s_add_u32 s48, s48, 1
s_cmp_lt_u32 s48, 64
s_cbranch_scc1 L_fb1
v_mov_b32 v13, v12
v_permlane32_swap_b32 v12, v13
v_max_f32 v12, v12, v13
v_sub_f32 v{C_}, 0, v12
""")
    for i in range(1, 16): a(f"v_mov_b32 v{C_+i}, v{C_}")
    for i in range(16): a(f"v_mov_b32 v{O_+i}, 0")
    a(f"""
s_mov_b32 s48, 0
L_fb2:
s_lshr_b32 s49, s48, 3
s_lshl_b32 s49, s49, 14
s_and_b32 s50, s48, 7
s_lshl_b32 s50, s50, 10
s_add_u32 s49, s49, s50
s_add_u32 s50, s49, 8192
buffer_load_dwordx4 v[{KF}:{KF+3}], {vL16}, {SRD_WS}, s49 offen sc1
s_mov_b64 exec, s[76:77]
buffer_load_dwordx4 v[{VF}:{VF+3}], v3, {SRD_WS}, s50 offen sc1
buffer_load_dwordx4 v[{VF+4}:{VF+7}], v3, {SRD_WS}, s50 offen offset:512 sc1
s_mov_b64 exec, -1
s_waitcnt vmcnt(0)
v_mfma_f32_32x32x16_bf16 v[{SA}:{SA+15}], v[{KF}:{KF+3}], v[4:7], v[{C_}:{C_+15}]
""")
    for i in range(16): a(f"v_exp_f32 v{SA+i}, v{SA+i}")
    for i in range(8): a(f"v_cvt_pk_bf16_f32 v{P_+i}, v{SA+2*i}, v{SA+2*i+1}")
    a(f"""
v_mfma_f32_32x32x16_bf16 v[{O_}:{O_+15}], v[{VF}:{VF+3}], v[{P_}:{P_+3}], v[{O_}:{O_+15}]
v_mfma_f32_32x32x16_bf16 v[{O_}:{O_+15}], v[{VF+4}:{VF+7}], v[{P_+4}:{P_+7}], v[{O_}:{O_+15}]
s_add_u32 s48, s48, 1
s_cmp_lt_u32 s48, 64
s_cbranch_scc1 L_fb2
""")
    a.fence(12)
    a("L_fb_done:")

def phase3():
    a.comment("---- normalise + publish oB'")
    a(f"""
v_rcp_f32 v12, v{O_+8}
v_sub_f32 v13, 1.0, v10
v_add_u32 v14, s75, {vJ}
v_lshlrev_b32 v14, 10, v14
v_lshrrev_b32 v15, 5, v1
v_lshlrev_b32 v15, 4, v15
v_add_u32 v24, v14, v15
v_bfe_u32 v14, v1, 2, 3
v_lshlrev_b32 v14, 10, v14
v_and_b32 v11, 3, v1
v_lshlrev_b32 v11, 5, v11
v_add3_u32 v11, v11, v14, v15
s_lshl_b32 s48, {S_WAVE}, 3
s_add_u32 s48, s48, {S_P0}
s_lshl_b32 s48, s48, 10
s_lshl_b32 s49, {S_HG}, 7
s_add_u32 s48, s48, s49
s_add_u32 s48, s48, {WS_OB}
v_mul_f32 v12, v12, v13
""")
    for i in range(8): a(f"v_mul_f32 v{O_+i}, v{O_+i}, v12")
    for i in range(4): a(f"v_cvt_pk_bf16_f32 v{P_+i}, v{O_+2*i}, v{O_+2*i+1}")
    a(f"buffer_store_dwordx4 v[{P_}:{P_+3}], v11, {SRD_WS}, s48 offen {os.environ.get('TST', 'sc1')}")
    stamp(41)
    a(f"""
s_lshr_b32 s48, {S_WAVE}, 2
s_lshl_b32 s48, s48, 14
s_add_u32 s49, s48, {R0}
v_add_u32 v16, s49, {vWOF}
s_add_u32 s49, s48, {R1}
v_add_u32 v17, s49, v{OFA}
v_add_u32 v18, s49, v{OFA+1}
v_add_u32 v19, s49, v{OFA+2}
v_add_u32 v20, s49, v{OFA+3}
v_add_u32 v26, {R2 - R0}, v16
v_add_u32 v27, s48, v{OFA}
v_add_u32 v28, s48, v{OFA+1}
v_add_u32 v29, s48, v{OFA+2}
v_add_u32 v30, s48, v{OFA+3}
""")
    def grd(g):
        base = 32 + 32 * (g & 1); y = g >> 1
        for j in range(4):
            kk = 4 * (g & 1) + j
            for half in range(2):
                r = base + 4 * j + 2 * half
                a(f"ds_read_b64_tr_b16 v[{r}:{r+1}], v{26 if y else 16} offset:{kk*2048 + half*1024}")
            a(f"ds_read_b128 v[{base+16+4*j}:{base+19+4*j}], v{(27 if y else 17)+j} offset:{(kk>>2)*8192}")
    def gmf(g):
        base = 32 + 32 * (g & 1)
        for j in range(4):
            c = "0" if (g == 0 and j == 0) else f"v[{ACCA}:{ACCA+15}]"
            a(f"v_mfma_f32_32x32x16_bf16 v[{ACCA}:{ACCA+15}], v[{base+4*j}:{base+3+4*j}], v[{base+16+4*j}:{base+19+4*j}], {c}")
    grd(0)
    for g in range(4):
        if g + 1 < 4:
            grd(g + 1); a("s_waitcnt lgkmcnt(12)")
        else:
            a("s_waitcnt lgkmcnt(0)")
        gmf(g)
    a(f"""
s_lshl_b32 s80, {S_WAVE}, 13
s_add_u32 s80, s80, {L_OB}
s_lshl_b32 s81, {S_P0}, 10
s_lshl_b32 s48, {S_WAVE}, 7
s_add_u32 s81, s81, s48
s_add_u32 s81, s81, {WS_OB}
s_lshr_b32 s48, {S_WAVE}, 2
s_lshl_b32 s48, s48, 15
s_add_u32 s48, s48, {L_OB}
v_add_u32 v20, s48, v{OFA}
v_add_u32 v21, s48, v{OFA+1}
v_add_u32 v22, s48, v{OFA+2}
v_add_u32 v23, s48, v{OFA+3}
s_and_b32 s48, {S_WAVE}, 3
s_lshl_b32 s48, s48, 12
v_add_u32 v25, s48, {vL16}
v_add_u32 v14, s80, {vL16}
s_lshl_b32 s85, {S_HG}, 7
s_bfe_u32 s49, {S_WAVE}, 0x10001
s_lshl_b32 s49, s49, 6
s_add_u32 s85, s85, s49
s_mov_b32 s49, 0
""")
    stamp(42)
    a("s_barrier")
    a("s_branch L_t_first")
    a("L_t_retry:")
    a(f"s_sleep {int(os.environ.get('TSLEEP', '4'))}")
    a("L_t_first:")
    for n in range(8):
        a(f"s_add_u32 m0, s80, {n*1024}")
        a(f"s_add_u32 s95, s81, {(n>>2)*32768}")
        a(f"buffer_load_dwordx4 v{STP+(n&3)}, {SRD_WS}, s95 offen {os.environ.get('TLD', 'sc1')} lds")
    a(f"""
s_cmp_lg_u32 s49, 0
s_cbranch_scc1 L_t_noscale
""")
    for i in range(16): a(f"v_mul_f32 v{ACCA+i}, v9, v{ACCA+i}")
    a(f"""
L_t_noscale:
s_add_u32 s49, s49, 1
s_waitcnt vmcnt(0)
""")
    for n in range(8):
        a(f"ds_read_b128 v[{32+4*n}:{35+4*n}], v14 offset:{n*1024}")
    for n in range(8):
        a(f"s_waitcnt lgkmcnt({7-n})")
        if n == 0: a("v_max_u32 v12, v32, v33")
        else: a(f"v_max3_u32 v12, v12, v{32+4*n}, v{33+4*n}")
        a(f"v_max3_u32 v12, v12, v{34+4*n}, v{35+4*n}")
    a(f"""
v_cmp_eq_u32 vcc, -1, v12
s_cmp_ge_u32 s49, {SPIN_MAX // 4}
s_cbranch_scc1 L_t_go
s_cbranch_vccnz L_t_retry
L_t_go:
""")
    stamp(43)
    a("s_barrier   ; B_6")
    stamp(44)
    OF = lambda kk: 32 + 4 * kk
    ACC2 = ACCA
    for kk in range(8):
        a(f"ds_read_b128 v[{OF(kk)}:{OF(kk)+3}], v{20+(kk&3)} offset:{(kk>>2)*8192}")
    for kk in range(16):
        a(f"s_waitcnt lgkmcnt({min(7, 15-kk)})")
        a(f"v_mfma_f32_32x32x16_bf16 v[{ACC2}:{ACC2+15}], v[{BW+4*kk}:{BW+3+4*kk}], v[{OF(kk)}:{OF(kk)+3}], v[{ACC2}:{ACC2+15}]")
        if kk + 8 < 16:
            a(f"ds_read_b128 v[{OF(kk+8)}:{OF(kk+8)+3}], v{20+(kk&3)} offset:{((kk+8)>>2)*8192}")
    a(f"""
s_cmp_lt_u32 {S_WAVE}, 4
s_cbranch_scc1 L_t_nowr
""")
    for i in range(4):
        a(f"ds_write_b128 v25, v[{ACC2+4*i}:{ACC2+4*i+3}] offset:{L_RED + i*1024}")
    a("""
s_waitcnt lgkmcnt(0)
s_barrier   ; B_7
s_branch L_fin
L_t_nowr:
s_nop 4
s_barrier   ; B_7
""")
    for i in range(4):
        a(f"ds_read_b128 v[{32+4*i}:{35+4*i}], v25 offset:{L_RED + i*1024}")
    a("s_waitcnt lgkmcnt(0)")
    for i in range(16): a(f"v_add_f32 v{32+i}, v{32+i}, v{ACC2+i}")
    for i in range(8): a(f"v_cvt_pk_bf16_f32 v{48+i}, v{32+2*i}, v{32+2*i+1}")
    a("""
v_permlane32_swap_b32 v48, v50
v_permlane32_swap_b32 v49, v51
v_permlane32_swap_b32 v52, v54
v_permlane32_swap_b32 v53, v55
""")
    OST = os.environ.get("OST", "")
    a(f"buffer_store_dwordx4 v[48:51], v24, {SRD_OUT}, s85 offen {OST}")
    a(f"buffer_store_dwordx4 v[52:55], v24, {SRD_OUT}, s85 offen offset:32 {OST}")
    a("L_fin:")
    stamp(45)
    if "hdbg" in OPT:
        a(f"""
s_cmp_lg_u32 {S_WAVE}, 0
s_cbranch_scc1 L_hd
s_waitcnt vmcnt(0)
s_memrealtime s[70:71]
s_memtime s[100:101]
s_waitcnt lgkmcnt(0)
s_mov_b64 exec, 1
v_mov_b32 v8, v2
v_mov_b32 v2, 8
buffer_atomic_umax v254, v2, {SRD_DBG}, 0 offen sc1
v_not_b32 v3, v254
buffer_atomic_umax v3, v2, {SRD_DBG}, 0 offen offset:4 sc1
v_mov_b32 v3, s70
buffer_atomic_umax v3, v2, {SRD_DBG}, 0 offen offset:8 sc1
v_sub_u32 v3, s100, v255
buffer_atomic_umax v3, v2, {SRD_DBG}, 0 offen offset:12 sc1
v_sub_u32 v4, s70, v254
buffer_atomic_umax v4, v2, {SRD_DBG}, 0 offen offset:16 sc1
v_sub_u32 v5, v8, v255
buffer_atomic_umax v5, v2, {SRD_DBG}, 0 offen offset:20 sc1
s_waitcnt vmcnt(0)
L_hd:
""".replace("DBGV", "v2x"))

def build():
    here = os.path.dirname(os.path.abspath(__file__))
    a.raw(open(os.path.join(here, "header.txt")).read())
    a.raw(f"; @launch grid=(256,1,1) block=(512,1,1) lds={LDS_BYTES}")
    a.raw('.amdgcn_target "amdgcn-amd-amdhsa--gfx950"\n.text')
    a.raw(f".globl {NAME}_kernel\n.p2align 8\n.type {NAME}_kernel,@function\n{NAME}_kernel:")
    prologue()
    g_phase1()
    a("s_branch L_join1")
    aux_phase1()
    a("L_join1:")
    a.fence(4)
    phase2_start()
    phase2_loop()
    fallback()
    phase3()
    prof_dump()
    a("L_end:")
    a("s_endpgm")
    a.raw(f""".section .rodata,"a"
.p2align 6
.amdhsa_kernel {NAME}_kernel
  .amdhsa_next_free_vgpr 256
  .amdhsa_next_free_sgpr 102
  .amdhsa_accum_offset 256
  .amdhsa_group_segment_fixed_size 0
  .amdhsa_kernarg_size 96
  .amdhsa_user_sgpr_count 2
  .amdhsa_user_sgpr_kernarg_segment_ptr 1
  .amdhsa_system_sgpr_workgroup_id_x 1
.end_amdhsa_kernel""")
    open(sys.argv[1], "w").write(a.text())
    print("nops inserted:", a.nops, "lines:", len(a.lines))

build()
```

```python
import sys, struct, os
from dsl import Asm, VM

NAME = "gated_mix__sliding_local_dilated__grouped_kv_mqa__prompt"
WS_KV = 0x0
WS_G = 0x2C000
WS_FL = 0x24000
WS_OA = 0x100000
WS_OB = 0x300000
WS_PROF = 0x1C00000
WS_SIZE = 0x2000000
XBLK = 20480
L_RING = 81920
L_WK = 147456
L_T = 98304
L_QB = 147456
SCR_D = 3 * XBLK
SCR_G = 2 * XBLK
L_GO = 36864
L_KMAX = L_T + 30720
L_OAT = 131072
R0, R1, R2 = 65536, 98304, 131072
L_RED, L_FLAG, L_OB = 0, 16384, 65536
LDS_BYTES = 163840
LOG2E = 1.4426950408889634
QSCALE = 0.25 * LOG2E
SPIN_MAX = 1 << 15
def f32(x): return "0x%08x" % struct.unpack("<I", struct.pack("<f", x))[0]

PROF = len(sys.argv) > 2 and sys.argv[2] == "prof"
OPT = set(sys.argv[3:]) | ({"nopf"} if os.environ.get("PFM", "0") == "0" else set())

a = Asm()
S_WAVE, S_PB, S_HG, S_P0, S_U4, S_A = "s3", "s4", "s5", "s6", "s7", "s90"
SRD_X, SRD_W, SRD_WS, SRD_DBG, SRD_WK, SRD_GT, SRD_AWO, SRD_BWO, SRD_OUT = [f"s[{8+4*i}:{11+4*i}]" for i in range(9)]
vAK, vAQ, vAV, vAO = "v208", "v209", "v210", "v211"
CM, CM0, ONES, VF = 212, 216, 220, 224
vL16, vVA, vJ, vWOP = "v240", "v241", "v242", "v243"
STP, OFA = 244, 248
vWOF, vFLG = "v252", "v253"
AQR, APR = 192, 200
C_, SA, SB, O_, P_, KF, ACCA, BW, BO = 32, 48, 64, 80, 96, 104, 112, 128, 160

def stamp(i):
    if PROF:
        a(f"""s_memtime s[100:101]
s_waitcnt lgkmcnt(0)
v_writelane_b32 v255, s100, {i}""")
def rstamp(i):
    if PROF:
        a(f"""s_memrealtime s[100:101]
s_waitcnt lgkmcnt(0)
v_writelane_b32 v255, s100, {i}""")
def prof_dump():
    if PROF:
        a(f"""v_lshlrev_b32 v254, 2, v1
s_lshl_b32 s100, s2, 3
s_add_u32 s100, s100, {S_WAVE}
s_lshl_b32 s100, s100, 8
s_add_u32 s100, s100, {WS_PROF}
buffer_store_dword v255, v254, {SRD_WS}, s100 offen
s_waitcnt vmcnt(0)""")

def srd(idx, plo, size):
    b = 8 + 4 * idx
    a(f"""s_mov_b32 s{b}, s{plo}
s_and_b32 s{b+1}, s{plo+1}, 0xffff
s_mov_b32 s{b+2}, {size}
s_mov_b32 s{b+3}, 0x00020000""")

MAP = os.environ.get("MAP", "1")
ROT = os.environ.get("ROT", "4")

def mapcode():
    if MAP == "0":
        return f"""s_lshr_b32 s50, s48, 1
s_lshl_b32 s50, s50, 3
s_and_b32 s51, s49, 7
s_add_u32 {S_PB}, s50, s51
s_and_b32 s50, s48, 1
s_lshl_b32 s50, s50, 2
s_lshr_b32 s51, s49, 3
s_add_u32 {S_HG}, s50, s51
"""
    if MAP == "1":
        return f"""s_lshr_b32 s50, s48, 1
s_lshl_b32 s50, s50, 3
s_and_b32 s51, s49, 7
s_add_u32 {S_PB}, s50, s51
s_and_b32 s50, s48, 1
s_lshr_b32 s51, s49, 3
s_lshl_b32 s51, s51, 1
s_add_u32 {S_HG}, s50, s51
"""
    if MAP == "2":
        return f"""s_lshl_b32 s50, s48, 2
s_and_b32 s51, s49, 3
s_add_u32 {S_PB}, s50, s51
s_lshr_b32 {S_HG}, s49, 2
"""
def wgid_of():
    if MAP == "0":
        return f"""v_lshrrev_b32 v36, 2, v35
v_and_b32 v37, 3, v35
v_lshlrev_b32 v37, 6, v37
s_lshr_b32 s48, {S_PB}, 3
s_lshl_b32 s48, s48, 1
s_and_b32 s49, {S_PB}, 7
s_lshl_b32 s49, s49, 3
s_add_u32 s48, s48, s49
v_add3_u32 {vFLG}, v36, v37, s48
"""
    if MAP == "1":
        return f"""v_and_b32 v36, 1, v35
v_lshrrev_b32 v37, 1, v35
v_lshlrev_b32 v37, 6, v37
s_lshr_b32 s48, {S_PB}, 3
s_lshl_b32 s48, s48, 1
s_and_b32 s49, {S_PB}, 7
s_lshl_b32 s49, s49, 3
s_add_u32 s48, s48, s49
v_add3_u32 {vFLG}, v36, v37, s48
"""
    if MAP == "2":
        return f"""v_lshlrev_b32 v37, 5, v35
s_lshr_b32 s48, {S_PB}, 2
s_and_b32 s49, {S_PB}, 3
s_lshl_b32 s49, s49, 3
s_add_u32 s48, s48, s49
v_add_u32 {vFLG}, s48, v37
"""

def prologue():
    MAPCODE = mapcode()
    a(f"""
s_cmp_ge_u32 s2, 256
s_cbranch_scc1 L_end
s_load_dwordx16 s[64:79], s[0:1], 0
s_load_dwordx8 s[80:87], s[0:1], 64
v_and_b32 v1, 63, v0
v_lshrrev_b32 v2, 6, v0
s_and_b32 s48, s2, 7
s_lshr_b32 s49, s2, 3
v_readfirstlane_b32 {S_WAVE}, v2
{MAPCODE}s_lshl_b32 {S_P0}, {S_PB}, 6
s_lshl_b32 s88, {S_PB}, 3
s_add_u32 s88, s88, {S_HG}
s_and_b32 {S_A}, {S_WAVE}, 3
s_and_b32 {S_U4}, {S_HG}, 3
s_lshl_b32 s53, {S_A}, 10
s_mov_b32 s14, 1572864
s_mov_b32 s52, 3072
s_mov_b32 s15, 0x00020000
s_lshl_b32 s54, {S_HG}, 7
v_lshrrev_b32 v10, 4, v1
v_and_b32 v11, 15, v1
s_lshl_b32 s48, {S_A}, 2
v_add_u32 v12, s48, v10
v_xor_b32 v11, v11, v12
v_lshlrev_b32 v11, 4, v11
v_lshlrev_b32 v10, 10, v10
v_add_u32 v2, v10, v11
v_lshlrev_b32 {vL16}, 4, v1
s_sub_u32 s49, {S_P0}, 16
s_max_i32 s50, s49, 0
s_add_u32 s49, s49, s48
s_add_u32 s50, s50, s48
s_lshl_b32 s98, s49, 10
s_lshl_b32 s99, s50, 10
s_lshl_b32 s91, {S_A}, 10
""")
    for rel in range(4):
        a(f"""
s_add_u32 s48, {S_U4}, {rel}
s_and_b32 s48, s48, 3
s_add_u32 s48, s48, 1
s_lshl_b32 s49, s48, 12
s_add_u32 s{56+rel}, s49, s91
s_lshl_b32 s49, s48, 14
s_add_u32 s{60+rel}, s49, s98
""")
    a(f"""
s_lshr_b32 s97, {S_HG}, 1
s_add_u32 s97, s97, {S_PB}
s_and_b32 s97, s97, {dict(zip('0124', (0, 1, 1, 3)))[ROT]}
s_lshl_b32 s97, s97, {1 if ROT == '2' else 0}
""")
    for g in range(4):
        a(f"""
s_add_u32 s48, s97, {g}
s_and_b32 s48, s48, 3
s_lshl_b32 s{44+g}, s48, 8
""")
    a("s_waitcnt lgkmcnt(0)")
    srd(0, 64, 2048 * 1024)
    a(f"""
s_cmp_ge_u32 {S_HG}, 4
s_cselect_b32 s74, s76, s74
s_cselect_b32 s75, s77, s75
""")
    srd(4, 74, 16384)
    a(f"""
s_cmp_eq_u32 {S_A}, 3
s_cselect_b32 s12, s72, s66
s_cselect_b32 s13, s73, s67
s_cselect_b32 s14, 524288, s14
s_cselect_b32 s52, 1024, s52
s_cselect_b32 s53, 0, s53
s_and_b32 s13, s13, 0xffff
s_add_u32 s53, s53, s54
""")
    srd(2, 86, WS_SIZE)
    srd(3, 84, 256)
    srd(5, 80, 1024)
    srd(6, 68, 524288)
    srd(7, 78, 524288)
    srd(8, 82, 2048 * 1024)
    stamp(0); rstamp(60)
    if "hdbg" in OPT:
        a("""s_memrealtime s[70:71]
s_memtime s[100:101]
s_waitcnt lgkmcnt(0)
v_mov_b32 v254, s70
v_mov_b32 v255, s100""")
    a(f"""
s_cmp_ge_u32 {S_WAVE}, 4
s_cbranch_scc1 L_aux
""")

def x_instr(vm, kb, rel, tag):
    a(f"s_add_u32 m0, {'s91' if rel == 4 else 's%d' % (56+rel)}, {kb*XBLK}")
    a(f"s_add_u32 s95, {'s99' if rel == 4 else 's%d' % (60+rel)}, s{44+kb}")
    a(f"buffer_load_dwordx4 v2, {SRD_X}, s95 offen lds")
    if vm: vm.issue(tag)

def setup_persistent():
    a.comment("---- persistent setup")
    a(f"""
v_and_b32 v32, 15, v1
v_lshrrev_b32 v33, 4, v1
s_mul_i32 s49, {S_A}, 2560
s_lshr_b32 s55, {S_WAVE}, 2
s_lshl_b32 s51, s55, 10
s_add_u32 s49, s49, s51
s_add_u32 s50, s49, {L_T + 4*2560}
v_lshlrev_b32 v34, 6, v32
v_lshlrev_b32 v35, 4, v33
v_add3_u32 {vAK}, v34, v35, s50
s_add_u32 s50, s49, {L_T + 512}
v_lshlrev_b32 v34, 5, v32
v_and_b32 v35, 1, v33
v_lshlrev_b32 v35, 4, v35
v_add3_u32 {vAQ}, v34, v35, s50
s_add_u32 s50, s49, {L_T + 8*2560}
v_bfe_u32 v34, v1, 2, 2
v_lshlrev_b32 v34, 6, v34
v_lshlrev_b32 v35, 8, v33
v_and_b32 v36, 3, v1
v_lshlrev_b32 v36, 3, v36
v_add3_u32 {vAV}, v34, v35, v36
v_add_u32 {vAV}, s50, {vAV}
v_lshlrev_b32 v34, 7, v32
s_lshl_b32 s50, s55, 12
s_lshl_b32 s51, {S_A}, 5
s_add_u32 s50, s50, s51
s_add_u32 s50, s50, {L_OAT}
v_lshlrev_b32 v35, 3, v33
v_add3_u32 {vAO}, v34, v35, s50
v_lshrrev_b32 v34, 1, v32
v_lshlrev_b32 v35, 2, v33
v_sub_u32 v36, v35, v34
v_mov_b32 v37, {f32(-1e30)}
s_add_u32 s50, {S_PB}, s55
s_cmp_eq_u32 s50, 0
s_cselect_b32 s50, 8, 0
""")
    for r in range(4):
        a(f"""
v_add_u32 v34, {r-1}, v36
v_add_u32 v38, {r}, v35
v_cmp_gt_u32 vcc, 8, v34
v_cmp_le_u32 s[48:49], s50, v38
v_cndmask_b32 v{CM+r}, v37, 0, vcc
v_cndmask_b32 v{CM0+r}, v37, v{CM+r}, s[48:49]
""")
    for i in range(4): a(f"v_mov_b32 v{ONES+i}, 0x3f803f80")
    a(f"""
v_and_b32 {vJ}, 31, v1
v_lshrrev_b32 v34, 5, v1
v_lshlrev_b32 v35, 4, {vJ}
v_lshlrev_b32 v36, 8, v34
v_add_u32 v35, v35, v36
v_add_u32 {vVA}, 8192, v35
v_and_b32 v35, 27, {vJ}
v_cmp_eq_u32 vcc, 16, v35
v_cndmask_b32 v{VF}, 0, v{ONES}, vcc
""")
    for i in range(1, 16): a(f"v_mov_b32 v{VF+i}, v{VF}")
    a(f"""
v_lshrrev_b32 v35, 3, v1
v_and_b32 v36, 7, v1
v_bfe_u32 v37, v1, 4, 1
v_lshlrev_b32 v37, 2, v37
v_xor_b32 v36, v36, v37
v_lshlrev_b32 v36, 4, v36
v_lshlrev_b32 v35, 10, v35
v_add_u32 {vWOP}, v35, v36
""")
    for n4 in range(4):
        a(f"""
v_add_u32 v35, {4*n4}, v33
v_xor_b32 v36, v32, v35
v_lshlrev_b32 v35, 1, v35
v_lshrrev_b32 v37, 3, v36
v_add_u32 v35, v35, v37
v_lshlrev_b32 v35, 10, v35
v_and_b32 v36, 7, v36
v_lshlrev_b32 v36, 4, v36
v_add_u32 v{STP+n4}, v35, v36
""")
    a(f"""
s_and_b32 s48, {S_WAVE}, 1
s_lshl_b32 s48, s48, 5
s_add_u32 s75, s48, {S_P0}
v_add_u32 v35, s48, {vJ}
v_lshrrev_b32 v36, 1, v35
v_and_b32 v37, 1, v35
v_lshlrev_b32 v37, 3, v37
v_or_b32 v37, v37, v34
v_and_b32 v38, 15, v36
v_xor_b32 v37, v37, v38
v_lshlrev_b32 v37, 4, v37
v_lshlrev_b32 v36, 8, v36
v_add_u32 v{OFA}, v36, v37
v_xor_b32 v{OFA+1}, 32, v{OFA}
v_xor_b32 v{OFA+2}, 64, v{OFA}
v_xor_b32 v{OFA+3}, 96, v{OFA}
s_lshl_b32 s84, s75, 10
s_lshr_b32 s48, {S_WAVE}, 1
s_lshl_b32 s48, s48, 7
s_add_u32 s84, s84, s48
s_lshl_b32 s79, {S_WAVE}, 11
s_lshl_b32 s73, {S_WAVE}, 12
s_lshl_b32 s74, {S_WAVE}, 15
s_lshl_b32 s48, {S_HG}, 7
s_add_u32 s74, s74, s48
s_mov_b32 s76, 0x0000ffff
s_mov_b32 s77, 0x0000ffff
s_mov_b32 s64, 0x55555555
s_mov_b32 s65, 0xaaaaaaaa
s_mov_b32 s66, 0x55555555
s_mov_b32 s67, 0x55555555
s_mov_b32 s68, 0xaaaaaaaa
s_mov_b32 s69, 0xaaaaaaaa
v_and_b32 v35, 7, v1
s_lshl_b32 s48, {S_PB}, 3
v_add_u32 {vFLG}, s48, v35
v_lshlrev_b32 {vFLG}, 7, {vFLG}
v_and_b32 v36, 1, v33
v_lshrrev_b32 v37, 1, v33
v_bfe_u32 v38, v1, 2, 2
v_lshlrev_b32 v37, 2, v37
v_add_u32 v37, v37, v38
v_lshlrev_b32 v37, 7, v37
v_lshrrev_b32 v38, 1, v38
s_bfe_u32 s49, {S_WAVE}, 0x10001
v_xor_b32 v38, s49, v38
v_lshlrev_b32 v38, 6, v38
v_lshlrev_b32 v36, 5, v36
v_add3_u32 v38, v38, v37, v36
v_and_b32 v36, 3, v1
v_lshlrev_b32 v36, 3, v36
v_add_u32 {vWOF}, v38, v36
""")

def PF(lo, hi):
    if "nopf" in OPT: return
    mask = ((1 << (4*hi)) - 1) ^ ((1 << (4*lo)) - 1)
    a(f"""
s_mov_b32 s48, {mask & 0xffffffff}
s_mov_b32 s49, {mask >> 32}
s_mov_b64 exec, s[48:49]
buffer_load_dword v29, v28, {SRD_W}, s53 offen
""")
    if MAP == "2": a(f"buffer_load_dword v29, v28, {SRD_W}, s89 offen")
    a("s_mov_b64 exec, -1")
NPF = 0 if "nopf" in OPT else (2 if os.environ.get("MAP", "1") == "2" else 1)

def g_phase1():
    a.comment("==== G waves (0..3)")
    a(f"""
s_cmp_lt_u32 {S_HG}, 4
s_cbranch_scc1 L_g_nogate
v_lshrrev_b32 v7, 4, v1
v_lshlrev_b32 v7, 4, v7
s_add_u32 s50, {S_WAVE}, s97
s_and_b32 s50, s50, 3
s_lshl_b32 s50, s50, 8
s_mov_b32 s48, 0x00010001
s_mov_b32 s49, 0x00010001
s_mov_b64 exec, s[48:49]
""")
    for ks in range(4):
        a(f"buffer_load_dwordx4 v[{64+4*ks}:{67+4*ks}], v7, {SRD_GT}, s50 offen offset:{ks*64}")
    a(f"""
s_mov_b64 exec, -1
L_g_nogate:
v_lshrrev_b32 v4, 2, v1
s_lshl_b32 s48, s97, 2
v_add_u32 v4, s48, v4
v_and_b32 v4, 15, v4
v_lshlrev_b32 v4, 5, v4
v_and_b32 v3, 3, v1
s_and_b32 s48, {S_PB}, {3 if MAP == "2" else 7}
s_lshl_b32 s48, s48, {3 if MAP == "2" else 2}
v_add3_u32 v4, v4, v3, s48
v_mul_lo_u32 v28, v4, s52
s_lshl_b32 s89, s52, 2
s_add_u32 s89, s89, s53
""")
    a("v_mov_b32 v30, v2")
    PFM = os.environ.get("PFM", "0")
    def PFX(w):
        a(f"""
s_cmp_lg_u32 {S_WAVE}, {w}
s_cbranch_scc1 L_pfx{w}
s_lshr_b32 s48, {S_HG}, 1
s_lshl_b32 s48, s48, 4
s_add_u32 s48, s48, {S_P0}
v_bfe_u32 v3, v1, 1, 4
v_add_u32 v3, s48, v3
v_lshlrev_b32 v3, 10, v3
v_lshrrev_b32 v4, 5, v1
v_lshlrev_b32 v4, 8, v4
v_and_b32 v5, 1, v1
v_lshlrev_b32 v5, 7, v5
v_add3_u32 v3, v3, v4, v5
buffer_load_dword v29, v3, {SRD_X}, 0 offen offset:{w*512}
L_pfx{w}:
""")
    def PFXB(kb):
        a(f"""
s_cmp_lg_u32 {S_WAVE}, {kb}
s_cbranch_scc1 L_pfxb{kb}
s_mov_b32 s48, -1
s_mov_b32 s49, 0
s_mov_b64 exec, s[48:49]
buffer_load_dword v29, v27, {SRD_X}, s{44+kb} offen
s_mov_b64 exec, -1
L_pfxb{kb}:
""")
    if PFM == "h":
        a(f"""
s_lshr_b32 s48, {S_HG}, 1
s_lshl_b32 s48, s48, 4
s_add_u32 s48, s48, {S_P0}
v_bfe_u32 v3, v1, 1, 4
v_add_u32 v3, s48, v3
v_lshlrev_b32 v3, 10, v3
v_and_b32 v5, 1, v1
v_lshlrev_b32 v5, 7, v5
v_add_u32 v27, v3, v5
""")
        B = int(os.environ.get("PFB", "2"))
        PFXB(0); PF(0, B); PFXB(1); PF(B, 2 * B)
    if PFM == "a": PFX(0); PF(0, 16); PFX(1)
    if PFM == "b": PFX(0); PF(0, 8)
    if PFM == "c": PFX(0); PF(0, 6)
    setup_persistent()
    a(f"""
v_lshrrev_b32 v11, 5, v1
v_add_u32 v12, 16, {vJ}
v_and_b32 v13, 15, v12
v_xor_b32 v13, v13, v11
v_lshlrev_b32 v13, 4, v13
v_lshlrev_b32 v12, 8, v12
v_add_u32 v16, v12, v13
v_xor_b32 v17, 32, v16
v_xor_b32 v18, 64, v16
v_xor_b32 v19, 96, v16
v_xor_b32 v20, 128, v16
v_xor_b32 v21, 160, v16
v_xor_b32 v22, 192, v16
v_xor_b32 v23, 224, v16
v_lshrrev_b32 v10, 4, v1
v_and_b32 v11, 1, v10
v_lshrrev_b32 v10, 1, v10
v_bfe_u32 v12, v1, 2, 2
v_and_b32 v13, 3, v1
v_lshlrev_b32 v14, 3, v10
v_add_u32 v14, v14, v12
v_lshlrev_b32 v14, 7, v14
v_lshrrev_b32 v15, 1, v12
v_lshlrev_b32 v15, 6, v15
v_lshlrev_b32 v11, 5, v11
v_lshlrev_b32 v13, 3, v13
v_add3_u32 v14, v14, v15, v11
v_add_u32 v14, v14, v13
s_lshl_b32 s48, {S_WAVE}, 12
s_add_u32 s48, s48, {L_RING}
v_add_u32 v6, s48, v14
v_xor_b32 v7, 64, v6
""")
    if PFM == "h":
        a("s_waitcnt vmcnt(1)"); PF(2 * B, 3 * B)
        a("s_waitcnt vmcnt(1)"); PFXB(2); PF(3 * B, 4 * B)
        a("v_mov_b32 v31, v27")
    kv_partial()
    a(f"""
v_lshrrev_b32 v11, 5, v1
v_lshlrev_b32 v10, 5, {vJ}
v_lshlrev_b32 v11, 4, v11
s_mul_i32 s49, {S_WAVE}, 10240
s_add_u32 s49, s49, {L_T}
v_add3_u32 v8, v10, v11, s49
v_add_u32 v9, {L_QB - 512}, {vL16}
s_movk_i32 s50, 2560
s_cmp_eq_u32 {S_WAVE}, 3
s_cselect_b64 vcc, -1, 0
s_cselect_b32 s50, 2048, s50
v_cndmask_b32 v8, v8, v9, vcc
v_add_u32 v9, s50, v8
v_add_u32 v10, s50, v9
v_add_u32 v11, s50, v10
v_mov_b32 v2, v30
v_and_b32 v3, 16, v1
v_lshlrev_b32 v3, 8, v3
v_add_u32 v3, 4096, v3
""")
    a(f"""
s_lshr_b32 s48, {S_WAVE}, 1
s_add_u32 s48, s48, 1
s_add_u32 s49, {S_WAVE}, 1
s_lshr_b32 s49, s49, 1
s_and_b32 s49, s49, 1
s_xor_b32 s49, s49, 1
s_sub_u32 s50, s48, {S_WAVE}
s_lshl_b32 s50, s50, 12
v_add_u32 v24, s50, v6
s_lshl_b32 s50, s49, 6
v_xor_b32 v24, s50, v24
s_lshl_b32 s48, s48, 2
s_lshl_b32 s49, s49, 1
s_add_u32 s48, s48, s49
s_mul_i32 s48, s48, 2560
s_add_u32 s48, s48, {L_T}
v_lshrrev_b32 v26, 5, v1
v_lshlrev_b32 v25, 5, {vJ}
v_lshlrev_b32 v26, 4, v26
v_add3_u32 v25, v25, v26, s48
""")
    XB = lambda buf, mt, ks2: 128 + 32 * buf + 4 * (2 * mt + ks2)
    WB = lambda buf, nt, ks2: 144 + 32 * buf + 4 * (2 * nt + ks2)
    ACC = lambda nt, mt: 64 + 16 * (2 * nt + mt)
    def reads(s):
        buf = s & 1; slot = s & 3; out = []
        for ks2 in range(2):
            k16 = 2 * s + ks2
            for nt in range(2):
                r = WB(buf, nt, ks2)
                for half in range(2):
                    off = slot * 16384 + (16 * ks2 + 4 * half) * 128
                    out.append(f"ds_read_b64_tr_b16 v[{r+2*half}:{r+2*half+1}], v{6+nt} offset:{off}")
            for mt in range(2):
                off = ((k16 >> 3) & 1) * XBLK + mt * 8192
                r = XB(buf, mt, ks2)
                out.append(f"ds_read_b128 v[{r}:{r+3}], v{16+(k16&7)} offset:{off}")
        return out
    def mf(s, ks2, nt, mt):
        buf = s & 1
        d = ACC(nt, mt); w = WB(buf, nt, ks2); x = XB(buf, mt, ks2)
        c = "0" if (s == 0 and ks2 == 0) else f"v[{d}:{d+15}]"
        return f"v_mfma_f32_32x32x16_bf16 v[{d}:{d+15}], v[{w}:{w+3}], v[{x}:{x+3}], {c}"
    HXB = lambda buf, ks2: 192 + 8 * buf + 4 * ks2
    HWB = lambda buf, ks2: 48 + 8 * buf + 4 * ks2
    HACC = 32
    def hreads(s):
        buf = s & 1; slot = s & 3; out = []
        for ks2 in range(2):
            k16 = 2 * s + ks2
            out.append(f"v_sub_u32 v{4+ks2}, v{16+(k16&7)}, v3")
            out.append(f"ds_read_b128 v[{HXB(buf,ks2)}:{HXB(buf,ks2)+3}], v{4+ks2} offset:{((k16 >> 3) & 1) * XBLK}")
            for half in range(2):
                r = HWB(buf, ks2) + 2 * half
                out.append(f"ds_read_b64_tr_b16 v[{r}:{r+1}], v24 offset:{slot * 16384 + (16 * ks2 + 4 * half) * 128}")
        return out
    def hmf(s, ks2):
        buf = s & 1; d = HACC; w = HWB(buf, ks2); x = HXB(buf, ks2)
        c = "0" if (s == 0 and ks2 == 0) else f"v[{d}:{d+15}]"
        return f"v_mfma_f32_32x32x16_bf16 v[{d}:{d+15}], v[{w}:{w+3}], v[{x}:{x+3}], {c}"
    vg = VM(a)
    XS = os.environ.get("XS", "0")
    if XS == "0":
        xsched = {0: [(1, 1), (1, 2)], 1: [(1, 3), (1, 4)]}
        for i in range(8): xsched[2 + i] = [(2 + (i >> 2), 1 + (i & 3))]
    elif XS == "1":
        xsched = {0: [(1, 1)], 1: [(1, 2)], 2: [(1, 3), (1, 4)]}
        for i in range(8): xsched[3 + i] = [(2 + (i >> 2), 1 + (i & 3))]
    elif XS == "2":
        xsched = {1: [(1, 1), (1, 2)], 2: [(1, 3), (1, 4)]}
        for i in range(8): xsched[3 + i] = [(2 + (i >> 2), 1 + (i & 3))]
    for s in range(16):
        if s == 4: vg.wait("X1")
        if s == 8: vg.wait("X2")
        if s == 12: vg.wait("X3")
        a(f"s_barrier   ; B_{s}")
        if s in (0, 4, 8, 12, 15): stamp(8 + s)
        if s == 8:
            for i in range(8): a(f"v_add_u32 v{16+i}, {2*XBLK}, v{16+i}")
        R = reads(s) + hreads(s)
        M = ([mf(s - 1, ks2, nt, mt) for ks2 in range(2) for nt in range(2) for mt in range(2)] + [hmf(s - 1, 0), hmf(s - 1, 1)]) if s > 0 else []
        while R or M:
            if M: a(M.pop(0))
            for _ in range(3):
                if R: a(R.pop(0))
        for (kb, rel) in xsched.get(s, []): x_instr(vg, kb, rel, f"X{kb}")
        if PFM == "0":
            if s == 0: PF(4, 8); vg.issue("pf", NPF)
            if s == 2: PF(8, 12); vg.issue("pf", NPF)
            if s == 5: PF(12, 16); vg.issue("pf", NPF)
        if PFM == "h":
            if s == 0: a("v_mov_b32 v27, v31"); PFXB(3)
            if 4 * B + s < 16: PF(4 * B + s, 4 * B + s + 1); vg.issue("pf", 1)
        if PFM == "b" and s == 0: PF(8, 16); vg.issue("pf", NPF); a("v_mov_b32 v31, v3"); PFX(1); a("v_mov_b32 v3, v31")
        if PFM == "c" and s == 0: PF(6, 11); vg.issue("pf", NPF); a("v_mov_b32 v31, v3"); PFX(1); a("v_mov_b32 v3, v31")
        if PFM == "c" and s == 3: PF(11, 16); vg.issue("pf", NPF)
        if s == 3:
            a(f"""
s_cmp_lg_u32 {S_WAVE}, 0
s_cbranch_scc1 L_g_noarr
s_and_b32 s48, s2, 3
s_lshl_b32 s48, s48, 6
v_mov_b32 v12, s48
v_mov_b32 v13, 1
s_mov_b64 exec, 1
buffer_atomic_add v13, v12, {SRD_DBG}, 0 offen sc1
s_mov_b64 exec, -1
L_g_noarr:
""")
        a("s_waitcnt lgkmcnt(0)")
    tiles = [(nt, mt) for nt in range(2) for mt in range(2)]
    def pack(n):
        nt, mt = tiles[n]; d = ACC(nt, mt)
        for hh in range(2):
            p = 128 + 4 * (2 * n + hh)
            for e in range(4):
                a(f"v_cvt_pk_bf16_f32 v{p+e}, v{d+8*hh+2*e}, v{d+8*hh+2*e+1}")
            a(f"ds_write_b128 v{8+2*nt+hh}, v[{p}:{p+3}] offset:{mt*1024 + 512}")
    a(hmf(15, 0)); a(hmf(15, 1))
    for n, (nt, mt) in enumerate(tiles):
        a(mf(15, 0, nt, mt)); a(mf(15, 1, nt, mt))
        if n == 1:
            a("s_mov_b64 exec, s[76:77]")
            for hh in range(2):
                p = 48 + 4 * hh
                for e in range(4):
                    a(f"v_cvt_pk_bf16_f32 v{p+e}, v{HACC+8*hh+2*e}, v{HACC+8*hh+2*e+1}")
                a(f"ds_write_b128 v25, v[{p}:{p+3}] offset:{hh*2560}")
            a("s_mov_b64 exec, -1")
        if n >= 2: pack(n - 2)
    pack(2); pack(3)
    for i in range(16): a(f"v_mov_b32 v{AQR+i}, 0")
    a("s_waitcnt lgkmcnt(0)")
    stamp(30)
    a("s_barrier   ; B_e")
    stamp(31)

def kv_partial():
    a.comment("---- KV partial: G wave j handles k-block j of rows 16+16*u4+i")
    a(f"""
s_lshl_b32 s48, {S_U4}, 4
s_add_u32 s48, s48, 16
v_and_b32 v12, 15, v1
v_lshrrev_b32 v13, 4, v1
v_add_u32 v14, s48, v12
v_lshlrev_b32 v14, 8, v14
v_xor_b32 v15, v12, v13
v_lshlrev_b32 v15, 4, v15
s_mul_i32 s49, {S_WAVE}, {XBLK}
v_add3_u32 v2, v15, v14, s49
v_xor_b32 v3, 64, v2
v_xor_b32 v4, 128, v2
v_xor_b32 v5, 192, v2
v_bfe_u32 v14, v1, 2, 2
v_lshlrev_b32 v15, 3, v13
v_add_u32 v15, v15, v14
v_lshlrev_b32 v15, 5, v15
v_and_b32 v14, 3, v1
v_lshlrev_b32 v14, 3, v14
s_add_u32 s49, {S_WAVE}, s97
s_and_b32 s49, s49, 3
s_lshl_b32 s49, s49, 12
s_add_u32 s49, s49, {L_WK}
v_add3_u32 v8, v15, v14, s49
s_lshl_b32 s49, {S_WAVE}, 10
s_add_u32 s49, s49, {SCR_D}
v_add_u32 v9, s49, {vL16}
v_lshlrev_b32 v10, 2, v1
s_lshl_b32 s49, {S_WAVE}, 8
s_add_u32 s49, s49, {SCR_G}
v_add_u32 v10, s49, v10
""")
    stamp(3)
    a("s_waitcnt vmcnt(%d)" % (0 if os.environ.get("PFM", "0") == "0" else NPF))
    a("s_barrier   ; B_kv")
    stamp(4)
    for ks in range(4):
        a(f"ds_read_b128 v[{192+4*ks}:{195+4*ks}], v{2+ks}")
        for half in range(2):
            a(f"ds_read_b64_tr_b16 v[{128+4*ks+2*half}:{129+4*ks+2*half}], v8 offset:{ks*1024 + half*128}")
    a(f"s_cmp_ge_u32 {S_HG}, 4")
    a("s_cbranch_scc1 L_kv_V")
    for isV in (False, True):
        for ks in range(4):
            a(f"s_waitcnt lgkmcnt({3*(3-ks)})")
            w = f"v[{128+4*ks}:{131+4*ks}]"; x = f"v[{192+4*ks}:{195+4*ks}]"
            c0 = "0" if ks == 0 else "v[24:27]"; c1 = "0" if ks == 0 else "v[32:35]"
            if isV:
                a(f"v_mfma_f32_16x16x32_bf16 v[32:35], v[{64+4*ks}:{67+4*ks}], {x}, {c1}")
                a(f"v_mfma_f32_16x16x32_bf16 v[24:27], {x}, {w}, {c0}")
            else:
                a(f"v_mfma_f32_16x16x32_bf16 v[24:27], {w}, {x}, {c0}")
        if isV:
            a("ds_write_b32 v10, v32")
        else:
            a("s_branch L_kv_done")
            a("L_kv_V:")
    a("L_kv_done:")
    a.fence(8)
    a("ds_write_b128 v9, v[24:27]")
    a("s_waitcnt lgkmcnt(0)")
    stamp(5)

def kv_final():
    a.comment("---- KV finalize (aux wave 3)")
    a(f"""
s_cmp_lg_u32 {S_A}, 3
s_cbranch_scc1 L_kvf_done
v_lshlrev_b32 v41, 2, v1
ds_read_b128 v[44:47], {vL16} offset:{SCR_D}
ds_read_b128 v[48:51], {vL16} offset:{SCR_D+1024}
ds_read_b128 v[52:55], {vL16} offset:{SCR_D+2048}
ds_read_b128 v[56:59], {vL16} offset:{SCR_D+3072}
ds_read_b32 v60, v41 offset:{SCR_G}
ds_read_b32 v61, v41 offset:{SCR_G+256}
ds_read_b32 v62, v41 offset:{SCR_G+512}
ds_read_b32 v63, v41 offset:{SCR_G+768}
s_lshl_b32 s48, {S_PB}, 1
s_lshr_b32 s49, {S_U4}, 1
s_add_u32 s48, s48, s49
s_lshr_b32 s49, s48, 3
s_lshl_b32 s49, s49, 14
s_and_b32 s51, s48, 7
s_lshl_b32 s51, s51, 10
s_add_u32 s49, s49, s51
s_and_b32 s50, {S_U4}, 1
v_and_b32 v42, 15, v1
v_bfe_u32 v43, v1, 4, 1
v_lshlrev_b32 v40, 4, v42
v_lshrrev_b32 v41, 5, v1
v_lshlrev_b32 v41, 3, v41
v_add_u32 v41, v41, v40
s_waitcnt lgkmcnt(4)
""")
    for r in range(4):
        a(f"v_add_f32 v{44+r}, v{44+r}, v{48+r}")
        a(f"v_add_f32 v{52+r}, v{52+r}, v{56+r}")
    for r in range(4):
        a(f"v_add_f32 v{44+r}, v{44+r}, v{52+r}")
    a(f"""
s_cmp_ge_u32 {S_HG}, 4
s_cbranch_scc1 L_kvf_V
s_lshl_b32 s51, s50, 8
s_add_u32 s49, s49, s51
v_lshlrev_b32 v43, 9, v43
v_add_u32 v43, v43, v41
s_mov_b32 s51, {f32(QSCALE)}
v_mul_f32 v44, s51, v44
v_mul_f32 v45, s51, v45
v_mul_f32 v46, s51, v46
v_mul_f32 v47, s51, v47
v_cvt_pk_bf16_f32 v48, v44, v45
v_cvt_pk_bf16_f32 v49, v46, v47
buffer_store_dwordx2 v[48:49], v43, {SRD_WS}, s49 offen sc1
v_mul_f32 v52, v44, v44
v_fmac_f32 v52, v45, v45
v_fmac_f32 v52, v46, v46
v_fmac_f32 v52, v47, v47
v_mov_b32 v53, v52
v_permlane32_swap_b32 v52, v53
v_add_f32 v52, v52, v53
v_mov_b32 v53, v52
v_permlane16_swap_b32 v52, v53
v_add_f32 v52, v52, v53
v_max_f32_dpp v52, v52, v52 row_ror:8 row_mask:0xf bank_mask:0xf
v_max_f32_dpp v52, v52, v52 row_ror:4 row_mask:0xf bank_mask:0xf
v_max_f32_dpp v52, v52, v52 row_ror:2 row_mask:0xf bank_mask:0xf
v_max_f32_dpp v52, v52, v52 row_ror:1 row_mask:0xf bank_mask:0xf
s_lshl_b32 s48, s88, 7
s_add_u32 s48, s48, {WS_FL + 12}
v_mov_b32 v53, s48
s_mov_b64 exec, 1
buffer_store_dword v52, v53, {SRD_WS}, 0 offen sc1
s_mov_b64 exec, -1
s_branch L_kvf_done
L_kvf_V:
s_lshl_b32 s51, s50, 9
s_add_u32 s49, s49, s51
s_add_u32 s49, s49, 8192
v_lshlrev_b32 v43, 8, v43
v_add_u32 v43, v43, v41
v_cvt_pk_bf16_f32 v48, v44, v45
v_cvt_pk_bf16_f32 v49, v46, v47
buffer_store_dwordx2 v[48:49], v43, {SRD_WS}, s49 offen sc1
s_waitcnt lgkmcnt(0)
v_add_f32 v60, v60, v61
v_add_f32 v62, v62, v63
v_add_f32 v60, v60, v62
v_mul_f32 v60, {f32(-LOG2E)}, v60
v_exp_f32 v60, v60
v_add_f32 v60, 1.0, v60
v_rcp_f32 v60, v60
s_lshl_b32 s48, {S_PB}, 2
s_add_u32 s48, s48, {S_U4}
s_lshl_b32 s48, s48, 7
v_lshlrev_b32 v53, 2, v42
s_add_u32 s49, s48, {WS_G}
s_mov_b64 exec, 0xffff
buffer_store_dword v60, v53, {SRD_WS}, s49 offen sc1
s_mov_b64 exec, -1
L_kvf_done:
""")
    a.fence(2)

def c0_dma():
    a(f"""
s_lshl_b32 s72, {S_A}, 13
v_lshrrev_b32 v8, 2, v1
v_lshlrev_b32 v8, 3, v8
v_and_b32 v9, 3, v1
v_add_u32 v8, v8, v9
v_lshlrev_b32 v8, 7, v8
s_lshl_b32 s48, {S_A}, 14
s_and_b32 s48, s48, 0x4000
s_add_u32 s48, s48, {WS_FL + 12}
""")
    for i in range(8):
        a(f"s_add_u32 m0, s72, {(i>>2)*4096}")
        a(f"s_add_u32 s95, s72, {WS_KV + (i>>2)*4096}")
        a(f"buffer_load_dwordx4 {vL16}, {SRD_WS}, s95 offen offset:{(i&3)*1024} sc1 lds")
    a(f"buffer_load_dword v96, v8, {SRD_WS}, s48 offen sc1")

def issue_w(vm, s):
    slot = s & 3
    if s % 4 == 0:
        a(f"s_lshr_b32 s94, s52, 1")
        a(f"s_mul_i32 s94, s94, s{44 + s // 4}")
        a("s_sub_u32 s94, s94, s93")
    for i in range(4):
        a(f"s_add_u32 m0, s92, {slot*16384 + i*1024}")
        a("s_add_u32 s94, s94, s93")
        a(f"buffer_load_dwordx4 v5, {SRD_W}, s94 offen lds")
        vm.issue(f"S{s}")

def aux_phase1():
    a("L_aux:")
    a.fence(4)
    vm = VM(a)
    a(f"s_lshl_b32 s96, {S_A}, 12")
    for kb in range(4):
        x_instr(vm, kb, 0, "KV")
        a(f"s_add_u32 m0, s96, {L_WK}")
        a("s_nop 0")
        a(f"buffer_load_dwordx4 {vL16}, {SRD_WK}, s96 offen offset:{kb*1024} lds")
        vm.issue("KV")
    a(f"""
v_lshrrev_b32 v10, 3, v1
v_and_b32 v11, 7, v1
v_bfe_u32 v12, v1, 4, 1
v_lshlrev_b32 v12, 2, v12
v_xor_b32 v11, v11, v12
v_lshlrev_b32 v11, 4, v11
v_mul_lo_u32 v10, v10, s52
v_add3_u32 v5, v10, v11, s53
s_lshl_b32 s92, {S_A}, 12
s_add_u32 s92, s92, {L_RING}
s_lshl_b32 s93, s52, 3
s_sub_u32 s94, 0, s93
""")
    for rel in (1, 2, 3, 4): x_instr(vm, 0, rel, "S0")
    issue_w(vm, 0)
    W1E = os.environ.get("W1E", "0") == "1"
    if W1E: issue_w(vm, 1)
    a(f"""
s_cmp_lg_u32 {S_A}, 3
s_cbranch_scc1 L_aux_norst
s_lshl_b32 s48, s88, 7
s_add_u32 s48, s48, {WS_FL}
v_mov_b32 v8, s48
v_mov_b32 v10, 0
v_mov_b32 v11, 0
s_mov_b64 exec, 1
buffer_store_dwordx2 v[10:11], v8, {SRD_WS}, 0 offen offset:4 sc1
s_mov_b64 exec, -1
L_aux_norst:
""")
    setup_persistent()
    for i in range(16): a(f"v_mov_b32 v{AQR+i}, 0")
    a(f"""
v_and_b32 v37, 3, v1
v_lshlrev_b32 v37, 6, v37
v_mov_b32 v38, {L_GO}
""")
    stamp(1)
    vm.wait("KV")
    stamp(3)
    a("s_barrier   ; B_kv")
    if not W1E: issue_w(vm, 1); issue_w(vm, 2)
    for s in range(16):
        if s >= 14:
            n = 4 * (15 - s)
            a(f"""
s_cmp_eq_u32 s83, 1
s_cbranch_scc1 L_aux_w{s}a
s_waitcnt vmcnt({n})
L_aux_w{s}a:
s_waitcnt vmcnt({n + 9})
""")
        else:
            vm.wait(f"S{s}")
        if s == 13:
            a(f"""
s_cmp_lg_u32 {S_A}, 0
s_cbranch_scc1 L_aux_nogo
v_cmp_ne_u32 vcc, 64, v9
s_cmp_eq_u64 vcc, 0
s_cselect_b32 s48, 1, 0
v_mov_b32 v9, s48
ds_write_b32 v38, v9
s_waitcnt lgkmcnt(0)
L_aux_nogo:
""")
        if s in (4, 8, 12, 15): stamp(40 + s)
        a(f"s_barrier   ; B_{s}")
        if s == 10:
            a(f"""
s_cmp_lg_u32 {S_A}, 0
s_cbranch_scc1 L_aux_nopoll
buffer_load_dword v9, v37, {SRD_DBG}, 0 offen sc1
L_aux_nopoll:
""")
        if s == 0:
            if W1E: issue_w(vm, 2)
            kv_final(); issue_w(vm, 3)
        if 1 <= s and s + 3 < 16: issue_w(vm, s + 3)
        if s == 13:
            a(f"""
ds_read_b32 v9, v38
s_waitcnt lgkmcnt(0)
v_readfirstlane_b32 s83, v9
s_cmp_eq_u32 s83, 1
s_cbranch_scc0 L_aux_noearly
""")
            c0_dma()
            a("L_aux_noearly:")
    a(f"""
s_cmp_eq_u32 s83, 1
s_cbranch_scc1 L_aux_have
s_mov_b32 s49, 0
L_poll_go:
buffer_load_dword v9, v37, {SRD_DBG}, 0 offen sc1
s_add_u32 s49, s49, 1
s_waitcnt vmcnt(0)
v_cmp_ne_u32 vcc, 64, v9
s_cmp_ge_u32 s49, {SPIN_MAX}
s_cbranch_scc1 L_poll_go_done
s_cbranch_vccz L_poll_go_done
s_sleep 4
s_branch L_poll_go
L_poll_go_done:
""")
    stamp(34)
    c0_dma()
    a(f"""
L_aux_have:
s_waitcnt vmcnt(0)
v_mov_b32 v97, v96
v_permlane32_swap_b32 v96, v97
v_max_f32 v96, v96, v97
v_mov_b32 v97, v96
v_permlane16_swap_b32 v96, v97
v_max_f32 v96, v96, v97
v_max_f32_dpp v96, v96, v96 row_ror:8 row_mask:0xf bank_mask:0xf
v_max_f32_dpp v96, v96, v96 row_ror:4 row_mask:0xf bank_mask:0xf
v_max_f32_dpp v96, v96, v96 row_ror:2 row_mask:0xf bank_mask:0xf
v_max_f32_dpp v96, v96, v96 row_ror:1 row_mask:0xf bank_mask:0xf
s_and_b32 s48, {S_A}, 1
s_lshl_b32 s48, s48, 2
s_add_u32 s48, s48, {L_KMAX}
v_mov_b32 v97, s48
ds_write_b32 v97, v96
s_waitcnt lgkmcnt(0)
""")
    stamp(30)
    a("s_barrier   ; B_e")

def phase2_start():
    a(f"""
v_and_b32 v28, 3, v1
v_lshlrev_b32 v28, 11, v28
v_bfe_u32 v29, v1, 2, 3
s_lshl_b32 s48, {S_WAVE}, 3
s_and_b32 s49, s48, 31
v_add_u32 v29, s49, v29
v_and_b32 v30, 32, v1
v_add_u32 v29, v29, v30
v_lshlrev_b32 v29, 4, v29
s_lshr_b32 s49, {S_WAVE}, 2
s_lshl_b32 s49, s49, 10
s_add_u32 s49, s49, {L_QB}
v_add3_u32 v30, v28, v29, s49
v_mov_b32 v13, {L_KMAX}
ds_read_b128 v[4:7], v30
ds_read_b64 v[14:15], v13
ds_read_b128 v[{KF}:{KF+3}], {vL16}
ds_read_b128 v[{KF+4}:{KF+7}], {vL16} offset:1024
s_mov_b64 exec, s[76:77]
ds_read_b128 v[{VF}:{VF+3}], {vVA}
ds_read_b128 v[{VF+4}:{VF+7}], {vVA} offset:512
s_mov_b64 exec, -1
v_mov_b32 v12, 0
s_waitcnt lgkmcnt(4)
v_dot2_f32_bf16 v12, v4, v4, v12
v_dot2_f32_bf16 v12, v5, v5, v12
v_dot2_f32_bf16 v12, v6, v6, v12
v_dot2_f32_bf16 v12, v7, v7, v12
v_max_f32 v14, v14, v15
v_mov_b32 v13, v12
v_permlane32_swap_b32 v12, v13
v_add_f32 v12, v12, v13
v_mul_f32 v12, v12, v14
v_sqrt_f32 v12, v12
v_sub_f32 v{C_}, 0, v12
""")
    for i in range(1, 16): a(f"v_mov_b32 v{C_+i}, v{C_}")
    a("s_waitcnt lgkmcnt(3)")
    a(f"v_mfma_f32_32x32x16_bf16 v[{SA}:{SA+15}], v[{KF}:{KF+3}], v[4:7], v[{C_}:{C_+15}]")
    a(f"ds_read_b128 v[{KF}:{KF+3}], {vL16} offset:2048")
    stamp(36); rstamp(61)
    if "hdbg" in OPT:
        a("""s_memtime s[100:101]
s_waitcnt lgkmcnt(0)
v_mov_b32 v2, s100
v_mov_b32 v3, s100""")

AKR = lambda u: 128 + 4 * u
AVR = lambda u: 136 + 4 * u
ASR = lambda u: 144 + 4 * u
AOR = lambda u: 152 + 4 * u
ALR = lambda u: 160 + 4 * u
AMX = lambda u: 168 + 2 * u
def aatt(step):
    QR = lambda u: AQR + 4 * u
    PR = lambda u: APR + 4 * u
    if step == 0:
        for u in range(2):
            a(f"ds_read_b128 v[{AKR(u)}:{AKR(u)+3}], {vAK} offset:{u*512}")
        a("s_mov_b64 exec, s[64:65]")
        for u in range(2):
            a(f"ds_read_b128 v[{QR(u)}:{QR(u)+3}], {vAQ} offset:{u*512}")
        a("s_mov_b64 exec, -1")
        for u in range(2):
            a(f"ds_read_b64_tr_b16 v[{AVR(u)}:{AVR(u)+1}], {vAV} offset:{u*512}")
            a(f"ds_read_b64_tr_b16 v[{AVR(u)+2}:{AVR(u)+3}], {vAV} offset:{u*512+32}")
    if step == 1:
        for u in range(2):
            c = CM0 if u == 0 else CM
            a(f"v_mfma_f32_16x16x32_bf16 v[{ASR(u)}:{ASR(u)+3}], v[{AKR(u)}:{AKR(u)+3}], v[{QR(u)}:{QR(u)+3}], v[{c}:{c+3}]")
    if step == 2:
        a(f"s_mov_b32 s51, {f32(QSCALE)}")
        for u in range(2):
            s = ASR(u); m = AMX(u)
            a(f"v_max3_f32 v{m}, v{s}, v{s+1}, v{s+2}")
            a(f"v_max_f32 v{m}, v{m}, v{s+3}")
            a(f"v_mov_b32 v{m+1}, v{m}")
        for u in range(2):
            m = AMX(u); a(f"v_permlane32_swap_b32 v{m}, v{m+1}")
        for u in range(2):
            m = AMX(u); a(f"v_max_f32 v{m}, v{m}, v{m+1}"); a(f"v_mov_b32 v{m+1}, v{m}")
        for u in range(2):
            m = AMX(u); a(f"v_permlane16_swap_b32 v{m}, v{m+1}")
        for u in range(2):
            m = AMX(u); a(f"v_max_f32 v{m}, v{m}, v{m+1}"); a(f"v_mul_f32 v{m}, s51, v{m}")
        for u in range(2):
            s = ASR(u); m = AMX(u)
            for r in range(4): a(f"v_fma_f32 v{s+r}, v{s+r}, s51, -v{m}")
        for u in range(2):
            s = ASR(u)
            for r in range(4): a(f"v_exp_f32 v{s+r}, v{s+r}")
        a("s_mov_b64 exec, s[66:67]")
        for u in range(2):
            s = ASR(u); p = PR(u)
            a(f"v_cvt_pk_bf16_f32 v{p}, v{s}, v{s+1}"); a(f"v_cvt_pk_bf16_f32 v{p+1}, v{s+2}, v{s+3}")
        a("s_mov_b64 exec, s[68:69]")
        for u in range(2):
            s = ASR(u); p = PR(u)
            a(f"v_cvt_pk_bf16_f32 v{p+2}, v{s}, v{s+1}"); a(f"v_cvt_pk_bf16_f32 v{p+3}, v{s+2}, v{s+3}")
        a("s_mov_b64 exec, -1")
        for u in range(2):
            a(f"v_mfma_f32_16x16x32_bf16 v[{ALR(u)}:{ALR(u)+3}], v[{ONES}:{ONES+3}], v[{PR(u)}:{PR(u)+3}], 0")
        for u in range(2):
            a(f"v_mfma_f32_16x16x32_bf16 v[{AOR(u)}:{AOR(u)+3}], v[{AVR(u)}:{AVR(u)+3}], v[{PR(u)}:{PR(u)+3}], 0")
    if step == 3:
        for u in range(2):
            a(f"v_rcp_f32 v{ALR(u)}, v{ALR(u)}")
        for u in range(2):
            o = AOR(u)
            for r in range(4): a(f"v_mul_f32 v{o+r}, v{o+r}, v{ALR(u)}")
            a(f"v_cvt_pk_bf16_f32 v{o}, v{o}, v{o+1}"); a(f"v_cvt_pk_bf16_f32 v{o+1}, v{o+2}, v{o+3}")
            a(f"ds_write_b64 {vAO}, v[{o}:{o+1}] offset:{u*2048}")

def kv_dma(sc):
    for i in range(2):
        a(f"s_add_u32 m0, s79, {(sc&3)*16384}")
        a(f"s_add_u32 s95, s79, {WS_KV + sc*16384}")
        a(f"buffer_load_dwordx4 {vL16}, {SRD_WS}, s95 offen offset:{i*1024} sc1 lds")
def oa_dma(half, dst):
    for n in range(4):
        a(f"s_add_u32 m0, s73, {dst + n*1024}")
        a(f"s_add_u32 s95, s84, {WS_OA + half*512}")
        a(f"buffer_load_dwordx4 v{STP+n}, {SRD_WS}, s95 offen sc1 lds")
def wo_dma(srdw, half, dst):
    for i in range(4):
        a(f"s_add_u32 m0, s73, {dst + i*1024}")
        a(f"s_add_u32 s95, s74, {half*262144 + i*8192}")
        a(f"buffer_load_dwordx4 {vWOP}, {srdw}, s95 offen lds")
def markers_gate():
    a(f"""
v_lshrrev_b32 v24, 3, v1
v_and_b32 v25, 7, v1
v_lshlrev_b32 v25, 4, v25
s_lshl_b32 s48, {S_WAVE}, 3
s_add_u32 s48, s48, {S_P0}
v_add_u32 v24, s48, v24
v_lshlrev_b32 v24, 10, v24
s_lshl_b32 s49, {S_HG}, 7
s_add_u32 s49, s49, {WS_OB}
v_add_u32 v24, v24, v25
v_mov_b32 v28, -1
v_mov_b32 v29, -1
v_mov_b32 v30, -1
v_mov_b32 v31, -1
buffer_store_dwordx4 v[28:31], v24, {SRD_WS}, s49 offen sc1
v_lshrrev_b32 v24, 4, {vJ}
v_lshlrev_b32 v24, 7, v24
v_and_b32 v25, 15, v1
v_lshlrev_b32 v25, 2, v25
v_add_u32 v15, v24, v25
s_lshl_b32 s48, s75, 3
s_add_u32 s48, s48, {WS_G}
buffer_load_dword v9, v15, {SRD_WS}, s48 offen sc1
v_bfe_u32 v24, v1, 2, 3
s_and_b32 s48, {S_WAVE}, 1
s_lshl_b32 s48, s48, 3
v_add_u32 v24, s48, v24
v_lshlrev_b32 v24, 2, v24
s_lshr_b32 s48, {S_WAVE}, 1
s_lshl_b32 s49, {S_PB}, 2
s_add_u32 s48, s48, s49
s_lshl_b32 s48, s48, 7
s_add_u32 s48, s48, {WS_G}
buffer_load_dword v10, v24, {SRD_WS}, s48 offen sc1
""")

def pv1(t):
    vb = VF + 8 * (t & 1)
    a(f"v_mfma_f32_32x32x16_bf16 v[{O_}:{O_+15}], v[{vb+4}:{vb+7}], v[{P_+4}:{P_+7}], v[{O_}:{O_+15}]")

def tile(t, bg=(), bgwait=False, midprio=None):
    first = t == 0
    S = SA if t % 2 == 0 else SB
    Sn = SB if t % 2 == 0 else SA
    def koff(x): return ((x >> 3) & 3) * 16384 + (x & 7) * 1024
    kb = KF + 4 * ((t + 1) & 1)
    vb = VF + 8 * (t & 1)
    vbp = VF + 8 * ((t + 1) & 1)
    if first: a("s_waitcnt lgkmcnt(3)")
    E = lambda i: a(f"v_exp_f32 v{S+i}, v{S+i}")
    Cv = lambda i: a(f"v_cvt_pk_bf16_f32 v{P_+i}, v{S+2*i}, v{S+2*i+1}")
    n = [0]
    def vloads():
        if t + 1 < 64:
            a("s_mov_b64 exec, s[76:77]")
            a(f"ds_read_b128 v[{vbp}:{vbp+3}], {vVA} offset:{koff(t+1)}")
            a(f"ds_read_b128 v[{vbp+4}:{vbp+7}], {vVA} offset:{koff(t+1)+512}")
            a("s_mov_b64 exec, -1")
            n[0] += 2
    def pv0():
        c = "0" if first else f"v[{O_}:{O_+15}]"
        a(f"v_mfma_f32_32x32x16_bf16 v[{O_}:{O_+15}], v[{vb}:{vb+3}], v[{P_}:{P_+3}], {c}")
    if t + 1 < 64: a(f"v_mfma_f32_32x32x16_bf16 v[{Sn}:{Sn+15}], v[{kb}:{kb+3}], v[4:7], v[{C_}:{C_+15}]")
    if t + 3 < 64: a(f"ds_read_b128 v[{kb}:{kb+3}], {vL16} offset:{koff(t+3)}"); n[0] += 1
    if bg:
        for i in range(4): E(i)
        pv1(t - 1)
        vloads()
        for i in range(4, 8): E(i)
        if bgwait: a(f"s_waitcnt lgkmcnt({n[0]})")
        bg[0]()
        for i in range(4): Cv(i)
        for i in range(8, 10): E(i)
        a(f"s_waitcnt lgkmcnt({n[0]})")
        pv0()
        for i in range(10, 14): E(i)
        bg[1]()
        for i in range(14, 16): E(i)
        for i in range(4, 8): Cv(i)
    else:
        for i in range(6): E(i)
        if not first: pv1(t - 1)
        vloads()
        for i in range(6, 8): E(i)
        for i in range(4): Cv(i)
        for i in range(8, 11): E(i)
        if midprio is not None: a(f"s_setprio {midprio}")
        a(f"s_waitcnt lgkmcnt({n[0]})")
        pv0()
        for i in range(11, 16): E(i)
        for i in range(4, 8): Cv(i)

def ap_flag_issue():
    a(f"s_mov_b32 s50, {WS_FL + 4}")
    a(f"buffer_load_dword v25, {vFLG}, {SRD_WS}, s50 offen sc1")
def ap_flag_check(h):
    a(f"""
s_mov_b32 s49, 0
s_mov_b32 s50, {WS_FL + 4}
s_branch L_ap_chk{h}
L_ap_poll{h}:
buffer_load_dword v25, {vFLG}, {SRD_WS}, s50 offen sc1
s_add_u32 s49, s49, 1
s_waitcnt vmcnt(0)
L_ap_chk{h}:
v_cmp_ne_u32 vcc, 1, v25
s_cmp_ge_u32 s49, {SPIN_MAX}
s_cbranch_scc1 L_ap_go{h}
s_cbranch_vccnz L_ap_poll{h}
L_ap_go{h}:
""")
def phase2_loop():
    def bw_frags():
        a(f"""
s_mov_b32 s78, {R0}
s_cmp_ge_u32 {S_WAVE}, 4
s_cselect_b32 s78, {R2}, s78
v_add_u32 v16, s78, {vWOF}
""")
    def bw_reads(lo, hi):
        for kk in range(lo, hi):
            for half in range(2):
                r = BW + 4 * kk + 2 * half
                a(f"ds_read_b64_tr_b16 v[{r}:{r+1}], v16 offset:{kk*2048 + half*1024}")
    def publish():
        a(f"""
s_cmp_lg_u32 {S_WAVE}, 0
s_cbranch_scc1 L_nopub
s_lshl_b32 s48, s88, 7
s_add_u32 s48, s48, {WS_FL + 4}
v_mov_b32 v16, s48
v_mov_b32 v17, 1
s_mov_b64 exec, 1
buffer_store_dword v17, v16, {SRD_WS}, 0 offen sc1
s_mov_b64 exec, -1
L_nopub:
""")
    def oa_read():
        a(f"""
s_lshl_b32 s48, {S_WAVE}, 10
s_add_u32 s48, s48, {L_OAT}
v_add_u32 v16, s48, {vL16}
ds_read_b128 v[20:23], v16
""")
    def oa_store():
        a(f"""
v_lshrrev_b32 v24, 3, v1
v_and_b32 v25, 7, v1
v_lshlrev_b32 v25, 4, v25
v_lshlrev_b32 v24, 10, v24
v_add_u32 v24, v24, v25
s_lshl_b32 s48, {S_WAVE}, 3
s_add_u32 s48, s48, {S_P0}
s_lshl_b32 s48, s48, 10
s_lshl_b32 s49, {S_HG}, 7
s_add_u32 s48, s48, s49
s_add_u32 s48, s48, {WS_OA}
buffer_store_dwordx4 v[20:23], v24, {SRD_WS}, s48 offen sc1
""")
    STG = 3
    sn = [
        (1, lambda h: (kv_dma(2), aatt(0))),
        (2, lambda h: aatt(1)),
        (3, lambda h: aatt(2)),
        (4, lambda h: (aatt(3), kv_dma(3))),
        (6, lambda h: markers_gate()),
        (7, lambda h: wo_dma(SRD_BWO, 0, R0)),
        (13, lambda h: (oa_read(), kv_dma(4))),
        (14, lambda h: oa_store()),
        (21, lambda h: (publish() if h == 0 else None, kv_dma(5))),
        (22, lambda h: wo_dma(SRD_BWO, 1, R2)),
        (29, lambda h: kv_dma(6)),
        (30, lambda h: (bw_frags(), bw_reads(0, 6))),
        (31, lambda h: bw_reads(6, 11)),
        (32, lambda h: bw_reads(11, 16)),
        (33, lambda h: ap_flag_issue()),
        (37, lambda h: (ap_flag_check(h), kv_dma(7))),
        (38, lambda h: oa_dma(0, R1)),
        (39, lambda h: wo_dma(SRD_AWO, 0, R0)),
        (45, lambda h: wo_dma(SRD_AWO, 1, R2)),
        (53, lambda h: oa_dma(1, 0)),
    ]
    PRIO = [int(c) for c in os.environ.get("PRIO", "33322110")]
    if "roll" in OPT or "unroll" in OPT:
        tile(0)
        for t in range(1, 8): tile(t)
        stamp(37)
        if "roll" in OPT:
            a("s_mov_b32 s86, 0")
            a(".p2align 6")
            a("L_roll:")
        for rep in range(1 if "roll" in OPT else 6):
            for t in range(8, 16):
                ph = (t - 5) % 8
                if "bar" in OPT and t % 8 == 5: a("s_barrier")
                if "prio" in OPT and PRIO[ph] != PRIO[(ph - 1) % 8]: a(f"s_setprio {PRIO[ph]}")
                tile(t)
        if "roll" in OPT:
            a("s_add_u32 s86, s86, 1\ns_cmp_lt_u32 s86, 6\ns_cbranch_scc1 L_roll")
        stamp(40)
        a("s_setprio 0")
        a.fence(2)
        pv1(63)
        return
    nsn = 0
    for t in range(64):
        if t % 8 == 5 and t > 8:
            a("s_waitcnt vmcnt(0) lgkmcnt(0)" if t in (13, 21, 37) else "s_waitcnt vmcnt(0)")
            if "pb" in OPT: stamp(46 + t // 8)
            a(f"s_barrier   ; b{t//8+1}")
            if "pb" in OPT: stamp(55 + t // 8)
        ph = (t - 5) % 8
        if t == 0 or PRIO[ph] != PRIO[(ph - 1) % 8]:
            a(f"s_setprio {PRIO[ph]}")
        f0 = [f for (tt, f) in sn if tt == t]
        f1 = [f for (tt, f) in sn if tt + STG == t]
        if f0:
            nsn += 1; L = f"L_sn{nsn}"
            a(f"s_cmp_ge_u32 {S_WAVE}, 4\ns_cbranch_scc1 {L}")
            for f in f0: f(0)
            a(f"{L}:")
        if f1:
            nsn += 1; L = f"L_sn{nsn}"
            a(f"s_cmp_lt_u32 {S_WAVE}, 4\ns_cbranch_scc1 {L}")
            for f in f1: f(1)
            a(f"{L}:")
        tile(t, midprio=(0 if (ph == 7 and os.environ.get("MIDP")) else None))
        if t % 16 == 15: stamp(37 + t // 16)
    a("s_setprio 0")
    a.fence(2)
    pv1(63)

def fallback():
    a.comment("---- softmax safety check: l must be >= 2^-60, else redo this tile with the true max (slow path, K/V from global)")
    a.fence(12)
    a(f"""
s_mov_b32 s48, 0x21800000
v_cmp_nle_f32 vcc, s48, v{O_+8}
s_cbranch_vccz L_fb_done
v_and_b32 v3, 0x1fff, {vVA}
v_mov_b32 v12, {f32(-3.0e38)}
s_mov_b32 s48, 0
L_fb1:
s_lshr_b32 s49, s48, 3
s_lshl_b32 s49, s49, 14
s_and_b32 s50, s48, 7
s_lshl_b32 s50, s50, 10
s_add_u32 s49, s49, s50
buffer_load_dwordx4 v[{KF}:{KF+3}], {vL16}, {SRD_WS}, s49 offen sc1
s_waitcnt vmcnt(0)
v_mfma_f32_32x32x16_bf16 v[{SA}:{SA+15}], v[{KF}:{KF+3}], v[4:7], 0
""")
    for i in range(8): a(f"v_max3_f32 v12, v12, v{SA+2*i}, v{SA+2*i+1}")
    a(f"""
s_add_u32 s48, s48, 1
s_cmp_lt_u32 s48, 64
s_cbranch_scc1 L_fb1
v_mov_b32 v13, v12
v_permlane32_swap_b32 v12, v13
v_max_f32 v12, v12, v13
v_sub_f32 v{C_}, 0, v12
""")
    for i in range(1, 16): a(f"v_mov_b32 v{C_+i}, v{C_}")
    for i in range(16): a(f"v_mov_b32 v{O_+i}, 0")
    a(f"""
s_mov_b32 s48, 0
L_fb2:
s_lshr_b32 s49, s48, 3
s_lshl_b32 s49, s49, 14
s_and_b32 s50, s48, 7
s_lshl_b32 s50, s50, 10
s_add_u32 s49, s49, s50
s_add_u32 s50, s49, 8192
buffer_load_dwordx4 v[{KF}:{KF+3}], {vL16}, {SRD_WS}, s49 offen sc1
s_mov_b64 exec, s[76:77]
buffer_load_dwordx4 v[{VF}:{VF+3}], v3, {SRD_WS}, s50 offen sc1
buffer_load_dwordx4 v[{VF+4}:{VF+7}], v3, {SRD_WS}, s50 offen offset:512 sc1
s_mov_b64 exec, -1
s_waitcnt vmcnt(0)
v_mfma_f32_32x32x16_bf16 v[{SA}:{SA+15}], v[{KF}:{KF+3}], v[4:7], v[{C_}:{C_+15}]
""")
    for i in range(16): a(f"v_exp_f32 v{SA+i}, v{SA+i}")
    for i in range(8): a(f"v_cvt_pk_bf16_f32 v{P_+i}, v{SA+2*i}, v{SA+2*i+1}")
    a(f"""
v_mfma_f32_32x32x16_bf16 v[{O_}:{O_+15}], v[{VF}:{VF+3}], v[{P_}:{P_+3}], v[{O_}:{O_+15}]
v_mfma_f32_32x32x16_bf16 v[{O_}:{O_+15}], v[{VF+4}:{VF+7}], v[{P_+4}:{P_+7}], v[{O_}:{O_+15}]
s_add_u32 s48, s48, 1
s_cmp_lt_u32 s48, 64
s_cbranch_scc1 L_fb2
""")
    a.fence(12)
    a("L_fb_done:")

def phase3():
    a.comment("---- normalise + publish oB'")
    a(f"""
v_rcp_f32 v12, v{O_+8}
v_sub_f32 v13, 1.0, v10
v_add_u32 v14, s75, {vJ}
v_lshlrev_b32 v14, 10, v14
v_lshrrev_b32 v15, 5, v1
v_lshlrev_b32 v15, 4, v15
v_add_u32 v24, v14, v15
v_bfe_u32 v14, v1, 2, 3
v_lshlrev_b32 v14, 10, v14
v_and_b32 v11, 3, v1
v_lshlrev_b32 v11, 5, v11
v_add3_u32 v11, v11, v14, v15
s_lshl_b32 s48, {S_WAVE}, 3
s_add_u32 s48, s48, {S_P0}
s_lshl_b32 s48, s48, 10
s_lshl_b32 s49, {S_HG}, 7
s_add_u32 s48, s48, s49
s_add_u32 s48, s48, {WS_OB}
v_mul_f32 v12, v12, v13
""")
    for i in range(8): a(f"v_mul_f32 v{O_+i}, v{O_+i}, v12")
    for i in range(4): a(f"v_cvt_pk_bf16_f32 v{P_+i}, v{O_+2*i}, v{O_+2*i+1}")
    a(f"buffer_store_dwordx4 v[{P_}:{P_+3}], v11, {SRD_WS}, s48 offen {os.environ.get('TST', 'sc1')}")
    stamp(41); rstamp(62)
    a(f"""
s_lshr_b32 s48, {S_WAVE}, 2
s_lshl_b32 s48, s48, 14
s_add_u32 s49, s48, {R0}
v_add_u32 v16, s49, {vWOF}
s_add_u32 s49, s48, {R1}
v_add_u32 v17, s49, v{OFA}
v_add_u32 v18, s49, v{OFA+1}
v_add_u32 v19, s49, v{OFA+2}
v_add_u32 v20, s49, v{OFA+3}
v_add_u32 v26, {R2 - R0}, v16
v_add_u32 v27, s48, v{OFA}
v_add_u32 v28, s48, v{OFA+1}
v_add_u32 v29, s48, v{OFA+2}
v_add_u32 v30, s48, v{OFA+3}
""")
    def grd(g):
        base = 32 + 32 * (g & 1); y = g >> 1
        for j in range(4):
            kk = 4 * (g & 1) + j
            for half in range(2):
                r = base + 4 * j + 2 * half
                a(f"ds_read_b64_tr_b16 v[{r}:{r+1}], v{26 if y else 16} offset:{kk*2048 + half*1024}")
            a(f"ds_read_b128 v[{base+16+4*j}:{base+19+4*j}], v{(27 if y else 17)+j} offset:{(kk>>2)*8192}")
    def gmf(g):
        base = 32 + 32 * (g & 1)
        for j in range(4):
            c = "0" if (g == 0 and j == 0) else f"v[{ACCA}:{ACCA+15}]"
            a(f"v_mfma_f32_32x32x16_bf16 v[{ACCA}:{ACCA+15}], v[{base+4*j}:{base+3+4*j}], v[{base+16+4*j}:{base+19+4*j}], {c}")
    grd(0)
    for g in range(4):
        if g + 1 < 4:
            grd(g + 1); a("s_waitcnt lgkmcnt(12)")
        else:
            a("s_waitcnt lgkmcnt(0)")
        gmf(g)
    a(f"""
s_lshl_b32 s80, {S_WAVE}, 13
s_add_u32 s80, s80, {L_OB}
s_lshl_b32 s81, {S_P0}, 10
s_lshl_b32 s48, {S_WAVE}, 7
s_add_u32 s81, s81, s48
s_add_u32 s81, s81, {WS_OB}
s_lshr_b32 s48, {S_WAVE}, 2
s_lshl_b32 s48, s48, 15
s_add_u32 s48, s48, {L_OB}
v_add_u32 v20, s48, v{OFA}
v_add_u32 v21, s48, v{OFA+1}
v_add_u32 v22, s48, v{OFA+2}
v_add_u32 v23, s48, v{OFA+3}
s_and_b32 s48, {S_WAVE}, 3
s_lshl_b32 s48, s48, 12
v_add_u32 v25, s48, {vL16}
v_add_u32 v14, s80, {vL16}
s_lshl_b32 s85, {S_HG}, 7
s_bfe_u32 s49, {S_WAVE}, 0x10001
s_lshl_b32 s49, s49, 6
s_add_u32 s85, s85, s49
s_mov_b32 s49, 0
""")
    stamp(42)
    a("s_barrier")
    a("s_branch L_t_first")
    a("L_t_retry:")
    a(f"s_sleep {int(os.environ.get('TSLEEP', '4'))}")
    a("L_t_first:")
    for n in range(8):
        a(f"s_add_u32 m0, s80, {n*1024}")
        a(f"s_add_u32 s95, s81, {(n>>2)*32768}")
        a(f"buffer_load_dwordx4 v{STP+(n&3)}, {SRD_WS}, s95 offen {os.environ.get('TLD', 'sc1')} lds")
    a(f"""
s_cmp_lg_u32 s49, 0
s_cbranch_scc1 L_t_noscale
""")
    for i in range(16): a(f"v_mul_f32 v{ACCA+i}, v9, v{ACCA+i}")
    a(f"""
L_t_noscale:
s_add_u32 s49, s49, 1
s_waitcnt vmcnt(0)
""")
    for n in range(8):
        a(f"ds_read_b128 v[{32+4*n}:{35+4*n}], v14 offset:{n*1024}")
    for n in range(8):
        a(f"s_waitcnt lgkmcnt({7-n})")
        if n == 0: a("v_max_u32 v12, v32, v33")
        else: a(f"v_max3_u32 v12, v12, v{32+4*n}, v{33+4*n}")
        a(f"v_max3_u32 v12, v12, v{34+4*n}, v{35+4*n}")
    a(f"""
v_cmp_eq_u32 vcc, -1, v12
s_cmp_ge_u32 s49, {SPIN_MAX // 4}
s_cbranch_scc1 L_t_go
s_cbranch_vccnz L_t_retry
L_t_go:
""")
    stamp(43)
    a("s_barrier   ; B_6")
    stamp(44)
    OF = lambda kk: 32 + 4 * kk
    ACC2 = ACCA
    for kk in range(8):
        a(f"ds_read_b128 v[{OF(kk)}:{OF(kk)+3}], v{20+(kk&3)} offset:{(kk>>2)*8192}")
    for kk in range(16):
        a(f"s_waitcnt lgkmcnt({min(7, 15-kk)})")
        a(f"v_mfma_f32_32x32x16_bf16 v[{ACC2}:{ACC2+15}], v[{BW+4*kk}:{BW+3+4*kk}], v[{OF(kk)}:{OF(kk)+3}], v[{ACC2}:{ACC2+15}]")
        if kk + 8 < 16:
            a(f"ds_read_b128 v[{OF(kk+8)}:{OF(kk+8)+3}], v{20+(kk&3)} offset:{((kk+8)>>2)*8192}")
    a(f"""
s_cmp_lt_u32 {S_WAVE}, 4
s_cbranch_scc1 L_t_nowr
""")
    for i in range(4):
        a(f"ds_write_b128 v25, v[{ACC2+4*i}:{ACC2+4*i+3}] offset:{L_RED + i*1024}")
    a("""
s_waitcnt lgkmcnt(0)
s_barrier   ; B_7
s_branch L_fin
L_t_nowr:
s_nop 4
s_barrier   ; B_7
""")
    for i in range(4):
        a(f"ds_read_b128 v[{32+4*i}:{35+4*i}], v25 offset:{L_RED + i*1024}")
    a("s_waitcnt lgkmcnt(0)")
    for i in range(16): a(f"v_add_f32 v{32+i}, v{32+i}, v{ACC2+i}")
    for i in range(8): a(f"v_cvt_pk_bf16_f32 v{48+i}, v{32+2*i}, v{32+2*i+1}")
    a("""
v_permlane32_swap_b32 v48, v50
v_permlane32_swap_b32 v49, v51
v_permlane32_swap_b32 v52, v54
v_permlane32_swap_b32 v53, v55
""")
    OST = os.environ.get("OST", "")
    a(f"buffer_store_dwordx4 v[48:51], v24, {SRD_OUT}, s85 offen {OST}")
    a(f"buffer_store_dwordx4 v[52:55], v24, {SRD_OUT}, s85 offen offset:32 {OST}")
    a("L_fin:")
    stamp(45); rstamp(63)
    if "hdbg" in OPT:
        a(f"""
s_cmp_lg_u32 {S_WAVE}, 0
s_cbranch_scc1 L_hd
s_waitcnt vmcnt(0)
s_memrealtime s[70:71]
s_memtime s[100:101]
s_waitcnt lgkmcnt(0)
s_mov_b64 exec, 1
v_mov_b32 v8, v2
v_mov_b32 v2, 8
buffer_atomic_umax v254, v2, {SRD_DBG}, 0 offen sc1
v_not_b32 v3, v254
buffer_atomic_umax v3, v2, {SRD_DBG}, 0 offen offset:4 sc1
v_mov_b32 v3, s70
buffer_atomic_umax v3, v2, {SRD_DBG}, 0 offen offset:8 sc1
v_sub_u32 v3, s100, v255
buffer_atomic_umax v3, v2, {SRD_DBG}, 0 offen offset:12 sc1
v_sub_u32 v4, s70, v254
buffer_atomic_umax v4, v2, {SRD_DBG}, 0 offen offset:16 sc1
v_sub_u32 v5, v8, v255
buffer_atomic_umax v5, v2, {SRD_DBG}, 0 offen offset:20 sc1
s_waitcnt vmcnt(0)
L_hd:
""".replace("DBGV", "v2x"))

def build():
    here = os.path.dirname(os.path.abspath(__file__))
    a.raw(open(os.path.join(here, "header.txt")).read())
    a.raw(f"; @launch grid=(256,1,1) block=(512,1,1) lds={LDS_BYTES}")
    a.raw('.amdgcn_target "amdgcn-amd-amdhsa--gfx950"\n.text')
    a.raw(f".globl {NAME}_kernel\n.p2align 8\n.type {NAME}_kernel,@function\n{NAME}_kernel:")
    prologue()
    g_phase1()
    a("s_branch L_join1")
    aux_phase1()
    a("L_join1:")
    a.fence(4)
    phase2_start()
    phase2_loop()
    fallback()
    phase3()
    prof_dump()
    a("L_end:")
    a("s_endpgm")
    a.raw(f""".section .rodata,"a"
.p2align 6
.amdhsa_kernel {NAME}_kernel
  .amdhsa_next_free_vgpr 256
  .amdhsa_next_free_sgpr 102
  .amdhsa_accum_offset 256
  .amdhsa_group_segment_fixed_size 0
  .amdhsa_kernarg_size 96
  .amdhsa_user_sgpr_count 2
  .amdhsa_user_sgpr_kernarg_segment_ptr 1
  .amdhsa_system_sgpr_workgroup_id_x 1
.end_amdhsa_kernel""")
    open(sys.argv[1], "w").write(a.text())
    print("nops inserted:", a.nops, "lines:", len(a.lines))

build()
```

```python
import sys, struct, os
from dsl import Asm, VM

NAME = "gated_mix__sliding_local_dilated__grouped_kv_mqa__prompt"
WS_KV = 0x0
WS_FL = 0x24000
WS_KN = 0x20000
WS_G = 0x2C000
WS_OA = 0x100000
WS_OB = 0x300000
WS_PROF = 0x1C00000
WS_SIZE = 0x2000000
XBLK = 20480
L_RING = 81920
L_WK = 147456
L_KV = 0
L_QB = 147456
L_T = 98304
L_GO = 36864 + 8192
L_KMAX = L_T + 30720
SCR_D = 3 * XBLK
SCR_G = 2 * XBLK
L_REDX = 0
LDS_BYTES = 163840
LOG2E = 1.4426950408889634
QSCALE = 0.25 * LOG2E
SPIN_MAX = 1 << 15
def f32(x): return "0x%08x" % struct.unpack("<I", struct.pack("<f", x))[0]
PROF = len(sys.argv) > 2 and sys.argv[2] == "prof"
OPT = set(sys.argv[3:])
ENV = os.environ.get

a = Asm()
S_WAVE, S_PB, S_HG, S_P0, S_U4, S_A = "s3", "s4", "s5", "s6", "s7", "s90"
SRD_X, SRD_W, SRD_WS, SRD_DBG, SRD_WK, SRD_GT, SRD_AWO, SRD_BWO, SRD_OUT, SRD_WQ = [f"s[{8+4*i}:{11+4*i}]" for i in range(10)]
vL16, vKA, vVA, vJ = "v16", "v17", "v18", "v19"
vWP, vWQP, vXP = "v31", "v30", "v29"
C_, SA, SB, O_, P_, KF, VF = 32, 48, 64, 80, 96, 104, 112
PR = "v0"

def stamp(i):
    if PROF:
        a(f"""s_memtime s[100:101]
s_waitcnt lgkmcnt(0)
v_writelane_b32 {PR}, s100, {i}""")
def prof_dump(lbl):
    if PROF:
        a(f"""v_lshlrev_b32 v2, 2, v1
s_mul_i32 s100, s2, 12
s_add_u32 s100, s100, {S_WAVE}
s_lshl_b32 s100, s100, 8
s_add_u32 s100, s100, {WS_PROF}
buffer_store_dword {PR}, v2, {SRD_WS}, s100 offen
s_waitcnt vmcnt(0)""")
def srd(idx, plo, size):
    b = 8 + 4 * idx
    a(f"""s_mov_b32 s{b}, s{plo}
s_and_b32 s{b+1}, s{plo+1}, 0xffff
s_mov_b32 s{b+2}, {size}
s_mov_b32 s{b+3}, 0x00020000""")

def prologue():
    a(f"""
s_cmp_ge_u32 s2, 256
s_cbranch_scc1 L_end
s_load_dwordx16 s[64:79], s[0:1], 0
s_load_dwordx8 s[80:87], s[0:1], 64
v_and_b32 v1, 63, v0
v_lshrrev_b32 v2, 6, v0
s_and_b32 s48, s2, 7
s_lshr_b32 s49, s2, 3
v_readfirstlane_b32 {S_WAVE}, v2
s_lshr_b32 s50, s48, 1
s_lshl_b32 s50, s50, 3
s_and_b32 s51, s49, 7
s_add_u32 {S_PB}, s50, s51
s_and_b32 s50, s48, 1
s_lshr_b32 s51, s49, 3
s_lshl_b32 s51, s51, 1
s_add_u32 {S_HG}, s50, s51
s_lshl_b32 {S_P0}, {S_PB}, 6
s_lshl_b32 s88, {S_PB}, 3
s_add_u32 s88, s88, {S_HG}
s_and_b32 {S_A}, {S_WAVE}, 3
s_and_b32 {S_U4}, {S_HG}, 3
s_lshr_b32 s97, {S_HG}, 1
s_add_u32 s97, s97, {S_PB}
s_and_b32 s97, s97, 3
v_lshlrev_b32 {vL16}, 4, v1
v_and_b32 {vJ}, 31, v1
s_and_b32 s94, s49, {7 if ENV("KVROT", "1") == "1" else 0}
s_lshl_b32 s94, s94, 14
s_mov_b32 s92, 0x0000ffff
s_mov_b32 s93, 0x0000ffff
""")
    for g in range(4):
        a(f"""
s_add_u32 s48, s97, {g}
s_and_b32 s48, s48, 3
s_lshl_b32 s{52+g}, s48, 8
""")
    a(f"""
v_lshrrev_b32 v10, 4, v1
v_and_b32 v11, 15, v1
s_lshl_b32 s48, {S_A}, 2
v_add_u32 v12, s48, v10
v_xor_b32 v11, v11, v12
v_lshlrev_b32 v11, 4, v11
v_lshlrev_b32 v10, 10, v10
v_add_u32 {vXP}, v10, v11
s_sub_u32 s49, {S_P0}, 16
s_max_i32 s50, s49, 0
s_add_u32 s49, s49, s48
s_add_u32 s50, s50, s48
s_lshl_b32 s98, s49, 10
s_lshl_b32 s99, s50, 10
s_lshl_b32 s91, {S_A}, 10
s_lshl_b32 s96, {S_A}, 12
""")
    for rel in range(4):
        a(f"""
s_add_u32 s48, {S_U4}, {rel}
s_and_b32 s48, s48, 3
s_add_u32 s48, s48, 1
s_lshl_b32 s49, s48, 12
s_add_u32 s{56+rel}, s49, s91
s_lshl_b32 s49, s48, 14
s_add_u32 s{60+rel}, s49, s98
""")
    a("s_waitcnt lgkmcnt(0)")
    srd(0, 64, 2048 * 1024)
    a(f"""
s_cmp_ge_u32 {S_HG}, 4
s_cselect_b32 s74, s76, s74
s_cselect_b32 s75, s77, s75
""")
    srd(4, 74, 16384)
    srd(9, 72, 524288)
    srd(1, 66, 1572864)
    srd(2, 86, WS_SIZE)
    srd(3, 84, 256)
    srd(5, 80, 1024)
    srd(6, 68, 524288)
    srd(7, 78, 524288)
    srd(8, 82, 2048 * 1024)
    stamp(0)
    a(f"""
s_cmp_ge_u32 {S_WAVE}, 8
s_cbranch_scc1 L_sw
""")

def aw_phase1():
    a.comment("==== AW: GEMM. strip = w&3, mt = w>>2 ; waves 0-3 also KV partial + halo ; waves 4-7 X DMA")
    a(f"""
s_cmp_ge_u32 {S_WAVE}, 4
s_cbranch_scc1 L_g_nogate
s_cmp_lt_u32 {S_HG}, 4
s_cbranch_scc1 L_g_nogate
v_lshrrev_b32 v7, 4, v1
v_lshlrev_b32 v7, 4, v7
s_add_u32 s50, {S_WAVE}, s97
s_and_b32 s50, s50, 3
s_lshl_b32 s50, s50, 8
s_mov_b32 s48, 0x00010001
s_mov_b32 s49, 0x00010001
s_mov_b64 exec, s[48:49]
""")
    for ks in range(4):
        a(f"buffer_load_dwordx4 v[{80+4*ks}:{83+4*ks}], v7, {SRD_GT}, s50 offen offset:{ks*64}")
    a(f"""
s_mov_b64 exec, -1
L_g_nogate:
v_lshrrev_b32 v8, 5, v1
v_lshlrev_b32 v9, 4, {vJ}
v_lshlrev_b32 v8, 8, v8
v_add_u32 v9, v9, v8
v_add_u32 {vVA}, {L_KV + 8192}, v9
v_add_u32 {vKA}, {L_KV}, {vL16}
v_and_b32 v8, 3, v1
v_lshlrev_b32 v8, 11, v8
v_bfe_u32 v9, v1, 2, 3
s_lshl_b32 s48, {S_WAVE}, 3
s_and_b32 s49, s48, 31
v_add_u32 v9, s49, v9
v_and_b32 v10, 32, v1
v_add_u32 v9, v9, v10
v_lshlrev_b32 v9, 4, v9
s_lshr_b32 s55, {S_WAVE}, 2
s_lshl_b32 s49, s55, 10
s_add_u32 s49, s49, {L_QB}
v_add3_u32 v30, v8, v9, s49
v_lshrrev_b32 v11, 5, v1
v_and_b32 v13, 15, {vJ}
v_xor_b32 v13, v13, v11
v_lshlrev_b32 v13, 4, v13
v_add_u32 v12, 16, {vJ}
v_lshlrev_b32 v12, 8, v12
s_lshl_b32 s48, s55, 13
v_add3_u32 v20, v12, v13, s48
""".replace("s55", "s73"))
    for j in range(1, 8): a(f"v_xor_b32 v{20+j}, {32*j}, v20")
    a(f"""
v_lshrrev_b32 v10, 4, v1
v_and_b32 v11, 1, v10
v_lshrrev_b32 v10, 1, v10
v_bfe_u32 v12, v1, 2, 2
v_and_b32 v13, 3, v1
v_lshlrev_b32 v14, 3, v10
v_add_u32 v14, v14, v12
v_lshlrev_b32 v14, 7, v14
v_lshrrev_b32 v15, 1, v12
v_lshlrev_b32 v15, 6, v15
v_lshlrev_b32 v11, 5, v11
v_lshlrev_b32 v13, 3, v13
v_add3_u32 v14, v14, v15, v11
v_add_u32 v14, v14, v13
s_add_u32 s48, s96, {L_RING}
v_add_u32 v6, s48, v14
v_xor_b32 v7, 64, v6
s_lshr_b32 s48, {S_A}, 1
s_add_u32 s48, s48, 1
s_add_u32 s49, {S_A}, 1
s_lshr_b32 s49, s49, 1
s_and_b32 s49, s49, 1
s_xor_b32 s49, s49, 1
s_sub_u32 s50, s48, {S_A}
s_lshl_b32 s50, s50, 12
v_add_u32 v28, s50, v6
s_lshl_b32 s50, s49, 6
v_xor_b32 v28, s50, v28
s_lshl_b32 s48, s48, 2
s_lshl_b32 s49, s49, 1
s_add_u32 s48, s48, s49
s_mul_i32 s48, s48, 2560
s_add_u32 s48, s48, {L_T}
v_lshrrev_b32 v12, 5, v1
v_lshlrev_b32 v13, 5, {vJ}
v_lshlrev_b32 v12, 4, v12
v_add3_u32 v31, v13, v12, s48
s_mul_i32 s49, {S_A}, 10240
s_add_u32 s49, s49, {L_T + 512}
v_add3_u32 v160, v13, v12, s49
v_add_u32 v161, {L_QB}, {vL16}
s_movk_i32 s50, 2560
s_cmp_eq_u32 {S_A}, 3
s_cselect_b64 vcc, -1, 0
s_cselect_b32 s50, 2048, s50
v_cndmask_b32 v160, v160, v161, vcc
s_lshl_b32 s48, s73, 10
v_add_u32 v160, s48, v160
v_add_u32 v161, s50, v160
v_add_u32 v162, s50, v161
v_add_u32 v163, s50, v162
v_and_b32 v164, 16, v1
v_lshlrev_b32 v164, 8, v164
v_add_u32 v164, 4096, v164
s_cmp_ge_u32 {S_WAVE}, 4
s_cbranch_scc1 L_kv_skip
s_lshl_b32 s48, {S_U4}, 4
s_add_u32 s48, s48, 16
v_and_b32 v12, 15, v1
v_lshrrev_b32 v13, 4, v1
v_add_u32 v14, s48, v12
v_lshlrev_b32 v14, 8, v14
v_xor_b32 v15, v12, v13
v_lshlrev_b32 v15, 4, v15
s_mul_i32 s49, {S_WAVE}, {XBLK}
v_add3_u32 v2, v15, v14, s49
v_xor_b32 v3, 64, v2
v_xor_b32 v4, 128, v2
v_xor_b32 v5, 192, v2
v_bfe_u32 v14, v1, 2, 2
v_lshlrev_b32 v15, 3, v13
v_add_u32 v15, v15, v14
v_lshlrev_b32 v15, 5, v15
v_and_b32 v14, 3, v1
v_lshlrev_b32 v14, 3, v14
s_add_u32 s49, {S_WAVE}, s97
s_and_b32 s49, s49, 3
s_lshl_b32 s49, s49, 12
s_add_u32 s49, s49, {L_WK}
v_add3_u32 v8, v15, v14, s49
s_lshl_b32 s49, {S_WAVE}, 10
s_add_u32 s49, s49, {SCR_D}
v_add_u32 v9, s49, {vL16}
v_lshlrev_b32 v10, 2, v1
s_lshl_b32 s49, {S_WAVE}, 8
s_add_u32 s49, s49, {SCR_G}
v_add_u32 v10, s49, v10
s_waitcnt vmcnt(0)
s_barrier   ; B_kv
""")
    stamp(4)
    for ks in range(4):
        a(f"ds_read_b128 v[{128+4*ks}:{131+4*ks}], v{2+ks}")
        for half in range(2):
            a(f"ds_read_b64_tr_b16 v[{32+4*ks+2*half}:{33+4*ks+2*half}], v8 offset:{ks*1024 + half*128}")
    a(f"s_cmp_ge_u32 {S_HG}, 4\ns_cbranch_scc1 L_kv_V")
    for isV in (False, True):
        for ks in range(4):
            a(f"s_waitcnt lgkmcnt({3*(3-ks)})")
            w = f"v[{32+4*ks}:{35+4*ks}]"; x = f"v[{128+4*ks}:{131+4*ks}]"
            c0 = "0" if ks == 0 else "v[64:67]"; c1 = "0" if ks == 0 else "v[68:71]"
            if isV:
                a(f"v_mfma_f32_16x16x32_bf16 v[68:71], v[{80+4*ks}:{83+4*ks}], {x}, {c1}")
                a(f"v_mfma_f32_16x16x32_bf16 v[64:67], {x}, {w}, {c0}")
            else:
                a(f"v_mfma_f32_16x16x32_bf16 v[64:67], {w}, {x}, {c0}")
        if isV: a("ds_write_b32 v10, v68")
        else: a("s_branch L_kv_done\nL_kv_V:")
    a("L_kv_done:")
    a.fence(8)
    a("ds_write_b128 v9, v[64:67]\ns_waitcnt lgkmcnt(0)")
    WB = lambda buf, nt, ks2: 128 + 16 * buf + 8 * nt + 4 * ks2
    XB = lambda buf, ks2: 96 + 8 * buf + 4 * ks2
    HWB = lambda buf, ks2: 48 + 8 * buf + 4 * ks2
    HXB = lambda buf, ks2: 112 + 8 * buf + 4 * ks2
    ACC = lambda nt: 64 + 16 * nt
    HACC = 32
    def reads(s, halo):
        buf = s & 1; slot = s & 3; out = []
        for ks2 in range(2):
            k16 = 2 * s + ks2
            for nt in range(2):
                r = WB(buf, nt, ks2)
                for half in range(2):
                    out.append(f"ds_read_b64_tr_b16 v[{r+2*half}:{r+2*half+1}], v{6+nt} offset:{slot * 16384 + (16 * ks2 + 4 * half) * 128}")
            out.append(f"ds_read_b128 v[{XB(buf,ks2)}:{XB(buf,ks2)+3}], v{20+(k16&7)} offset:{((k16 >> 3) & 1) * XBLK}")
        if halo:
            for ks2 in range(2):
                k16 = 2 * s + ks2
                out.append(f"v_sub_u32 v{4+ks2}, v{20+(k16&7)}, v164")
                out.append(f"ds_read_b128 v[{HXB(buf,ks2)}:{HXB(buf,ks2)+3}], v{4+ks2} offset:{((k16 >> 3) & 1) * XBLK}")
                for half in range(2):
                    r = HWB(buf, ks2) + 2 * half
                    out.append(f"ds_read_b64_tr_b16 v[{r}:{r+1}], v28 offset:{slot * 16384 + (16 * ks2 + 4 * half) * 128}")
        return out
    def mfs(s, halo):
        buf = s & 1; out = []
        for ks2 in range(2):
            for nt in range(2):
                d = ACC(nt); c = "0" if (s == 0 and ks2 == 0) else f"v[{d}:{d+15}]"
                out.append(f"v_mfma_f32_32x32x16_bf16 v[{d}:{d+15}], v[{WB(buf,nt,ks2)}:{WB(buf,nt,ks2)+3}], v[{XB(buf,ks2)}:{XB(buf,ks2)+3}], {c}")
            if halo:
                c = "0" if (s == 0 and ks2 == 0) else f"v[{HACC}:{HACC+15}]"
                out.append(f"v_mfma_f32_32x32x16_bf16 v[{HACC}:{HACC+15}], v[{HWB(buf,ks2)}:{HWB(buf,ks2)+3}], v[{HXB(buf,ks2)}:{HXB(buf,ks2)+3}], {c}")
        return out
    xsched = {0: [(1, 1), (1, 2)], 1: [(1, 3), (1, 4)]}
    for i in range(8): xsched[2 + i] = [(2 + (i >> 2), 1 + (i & 3))]
    for halo in (True, False):
        if not halo:
            a("L_kv_skip:\ns_barrier   ; B_kv")
        vg = VM(a)
        if ENV("GP", "") : a(f"s_setprio {ENV('GP')[0 if halo else 1]}")
        for s in range(16):
            if not halo:
                if s == 4: vg.wait("X1")
                if s == 8: vg.wait("X2")
                if s == 12: vg.wait("X3")
            a(f"s_barrier   ; B_{s}")
            if s in (0, 4, 8, 12, 15): stamp(8 + s)
            if s == 8:
                for i in range(8): a(f"v_add_u32 v{20+i}, {2*XBLK}, v{20+i}")
            R = reads(s, halo); M = mfs(s - 1, halo) if s > 0 else []
            while R or M:
                if M: a(M.pop(0))
                for _ in range(int(ENV("RPM", "4"))):
                    if R: a(R.pop(0))
            if not halo:
                for (kb, rel) in xsched.get(s, []): x_instr(vg, kb, rel, f"X{kb}")
                if s == 3:
                    a(f"""
s_cmp_lg_u32 {S_WAVE}, 4
s_cbranch_scc1 L_noarr
s_and_b32 s48, s2, 3
s_lshl_b32 s48, s48, 6
v_mov_b32 v12, s48
v_mov_b32 v13, 1
s_mov_b64 exec, 1
buffer_atomic_add v13, v12, {SRD_DBG}, 0 offen sc1
s_mov_b64 exec, -1
L_noarr:
""")
            a("s_waitcnt lgkmcnt(0)")
        for m in mfs(15, halo): a(m)
        for nt in range(2):
            for hh in range(2):
                p = 128 + 4 * (2 * nt + hh)
                for e in range(4): a(f"v_cvt_pk_bf16_f32 v{p+e}, v{ACC(nt)+8*hh+2*e}, v{ACC(nt)+8*hh+2*e+1}")
                a(f"ds_write_b128 v{160+2*nt+hh}, v[{p}:{p+3}]")
        if halo:
            a("s_mov_b64 exec, s[92:93]")
            for hh in range(2):
                p = 48 + 4 * hh
                for e in range(4): a(f"v_cvt_pk_bf16_f32 v{p+e}, v{HACC+8*hh+2*e}, v{HACC+8*hh+2*e+1}")
                a(f"ds_write_b128 v31, v[{p}:{p+3}] offset:{hh*2560}")
            a("s_mov_b64 exec, -1\ns_branch L_aw_e")
    a(f"""
L_aw_e:
v_and_b32 v9, 27, {vJ}
v_cmp_eq_u32 vcc, 16, v9
v_mov_b32 v9, 0x3f803f80
v_cndmask_b32 v{VF}, 0, v9, vcc
""")
    for i in range(1, 16): a(f"v_mov_b32 v{VF+i}, v{VF}")
    a(f"""
v_bfe_u32 v8, v1, 2, 3
s_and_b32 s48, {S_WAVE}, 1
s_lshl_b32 s48, s48, 3
v_add_u32 v8, s48, v8
v_lshlrev_b32 v8, 2, v8
s_lshr_b32 s48, {S_WAVE}, 1
s_lshl_b32 s49, {S_PB}, 2
s_add_u32 s48, s48, s49
s_lshl_b32 s48, s48, 7
s_add_u32 s48, s48, {WS_G}
v_mov_b32 v13, {L_KMAX}
v_mov_b32 v32, 0
s_waitcnt lgkmcnt(0)
""")
    stamp(30)
    a("s_barrier   ; B_e")
    a(f"""
ds_read_b128 v[4:7], v30
ds_read_b32 v34, v13
ds_read_b128 v[{KF}:{KF+3}], {vKA}
ds_read_b128 v[{KF+4}:{KF+7}], {vKA} offset:1024
s_mov_b64 exec, s[92:93]
ds_read_b128 v[{VF}:{VF+3}], {vVA}
ds_read_b128 v[{VF+4}:{VF+7}], {vVA} offset:512
s_mov_b64 exec, -1
buffer_load_dword v10, v8, {SRD_WS}, s48 offen sc1
s_waitcnt lgkmcnt(4)
v_dot2_f32_bf16 v32, v4, v4, v32
v_dot2_f32_bf16 v32, v5, v5, v32
v_dot2_f32_bf16 v32, v6, v6, v32
v_dot2_f32_bf16 v32, v7, v7, v32
v_mov_b32 v33, v32
v_permlane32_swap_b32 v32, v33
v_add_f32 v32, v32, v33
v_mul_f32 v32, v32, v34
v_sqrt_f32 v32, v32
v_sub_f32 v{C_}, 0, v32
""")
    for i in range(1, 16): a(f"v_mov_b32 v{C_+i}, v{C_}")
    a("s_waitcnt lgkmcnt(3)")
    a(f"v_mfma_f32_32x32x16_bf16 v[{SA}:{SA+15}], v[{KF}:{KF+3}], v[4:7], v[{C_}:{C_+15}]")
    a(f"ds_read_b128 v[{KF}:{KF+3}], {vKA} offset:2048")
    stamp(36)

def pv1(t):
    vb = VF + 8 * (t & 1)
    a(f"v_mfma_f32_32x32x16_bf16 v[{O_}:{O_+15}], v[{vb+4}:{vb+7}], v[{P_+4}:{P_+7}], v[{O_}:{O_+15}]")
def tile(t):
    first = t == 0
    S = SA if t % 2 == 0 else SB
    Sn = SB if t % 2 == 0 else SA
    def koff(x): return ((x >> 3) % 3) * 16384 + (x & 7) * 1024
    kb = KF + 4 * ((t + 1) & 1)
    vb = VF + 8 * (t & 1)
    vbp = VF + 8 * ((t + 1) & 1)
    if first: a("s_waitcnt lgkmcnt(3)")
    E = lambda i: a(f"v_exp_f32 v{S+i}, v{S+i}")
    Cv = lambda i: a(f"v_cvt_pk_bf16_f32 v{P_+i}, v{S+2*i}, v{S+2*i+1}")
    n = 0
    if t + 1 < 64: a(f"v_mfma_f32_32x32x16_bf16 v[{Sn}:{Sn+15}], v[{kb}:{kb+3}], v[4:7], v[{C_}:{C_+15}]")
    if t + 3 < 64: a(f"ds_read_b128 v[{kb}:{kb+3}], {vKA} offset:{koff(t+3)}"); n += 1
    for i in range(6): E(i)
    if not first: pv1(t - 1)
    if t + 1 < 64:
        a("s_mov_b64 exec, s[92:93]")
        a(f"ds_read_b128 v[{vbp}:{vbp+3}], {vVA} offset:{koff(t+1)}")
        a(f"ds_read_b128 v[{vbp+4}:{vbp+7}], {vVA} offset:{koff(t+1)+512}")
        a("s_mov_b64 exec, -1")
        n += 2
    for i in range(6, 8): E(i)
    for i in range(4): Cv(i)
    for i in range(8, 11): E(i)
    a(f"s_waitcnt lgkmcnt({n})")
    c = "0" if first else f"v[{O_}:{O_+15}]"
    a(f"v_mfma_f32_32x32x16_bf16 v[{O_}:{O_+15}], v[{vb}:{vb+3}], v[{P_}:{P_+3}], {c}")
    for i in range(11, 16): E(i)
    for i in range(4, 8): Cv(i)

def aw_loop():
    PRIO = [int(c) for c in ENV("PRIO", "22221110")]
    for t in range(64):
        if t % 8 == 5 and 8 < t < 61:
            a(f"s_barrier   ; b{t//8+1}")
        ph = (t - 5) % 8
        if t == 0 or PRIO[ph] != PRIO[(ph - 1) % 8]: a(f"s_setprio {PRIO[ph]}")
        tile(t)
        if t % 16 == 15: stamp(37 + t // 16)
    a.fence(2)
    pv1(63)
    a(f"""
v_bfe_u32 v14, v1, 2, 3
v_lshlrev_b32 v14, 10, v14
v_and_b32 v11, 3, v1
v_lshlrev_b32 v11, 5, v11
v_lshrrev_b32 v15, 5, v1
v_lshlrev_b32 v15, 4, v15
v_add3_u32 v11, v11, v14, v15
s_lshl_b32 s51, {S_WAVE}, 3
s_add_u32 s51, s51, {S_P0}
s_lshl_b32 s51, s51, 10
s_lshl_b32 s49, {S_HG}, 7
s_add_u32 s51, s51, s49
s_add_u32 s51, s51, {WS_OB}
s_waitcnt vmcnt(0)
v_sub_f32 v13, 1.0, v10
s_mov_b32 s48, 0x21800000
v_cmp_nle_f32 vcc, s48, v{O_+8}
s_cbranch_vccz L_fb_done
v_and_b32 v3, 0x1fff, {vVA}
v_mov_b32 v12, {f32(-3.0e38)}
s_mov_b32 s48, 0
L_fb1:
s_lshr_b32 s49, s48, 3
s_lshl_b32 s49, s49, 14
s_and_b32 s50, s48, 7
s_lshl_b32 s50, s50, 10
s_add_u32 s49, s49, s50
buffer_load_dwordx4 v[{KF}:{KF+3}], {vL16}, {SRD_WS}, s49 offen sc1
s_waitcnt vmcnt(0)
v_mfma_f32_32x32x16_bf16 v[{SA}:{SA+15}], v[{KF}:{KF+3}], v[4:7], 0
""")
    for i in range(8): a(f"v_max3_f32 v12, v12, v{SA+2*i}, v{SA+2*i+1}")
    a(f"""
s_add_u32 s48, s48, 1
s_cmp_lt_u32 s48, 64
s_cbranch_scc1 L_fb1
v_mov_b32 v2, v12
v_permlane32_swap_b32 v12, v2
v_max_f32 v12, v12, v2
v_sub_f32 v{C_}, 0, v12
""")
    for i in range(1, 16): a(f"v_mov_b32 v{C_+i}, v{C_}")
    for i in range(16): a(f"v_mov_b32 v{O_+i}, 0")
    a(f"""
s_mov_b32 s48, 0
L_fb2:
s_lshr_b32 s49, s48, 3
s_lshl_b32 s49, s49, 14
s_and_b32 s50, s48, 7
s_lshl_b32 s50, s50, 10
s_add_u32 s49, s49, s50
s_add_u32 s50, s49, 8192
buffer_load_dwordx4 v[{KF}:{KF+3}], {vL16}, {SRD_WS}, s49 offen sc1
s_mov_b64 exec, s[92:93]
buffer_load_dwordx4 v[{VF}:{VF+3}], v3, {SRD_WS}, s50 offen sc1
buffer_load_dwordx4 v[{VF+4}:{VF+7}], v3, {SRD_WS}, s50 offen offset:512 sc1
s_mov_b64 exec, -1
s_waitcnt vmcnt(0)
v_mfma_f32_32x32x16_bf16 v[{SA}:{SA+15}], v[{KF}:{KF+3}], v[4:7], v[{C_}:{C_+15}]
""")
    for i in range(16): a(f"v_exp_f32 v{SA+i}, v{SA+i}")
    for i in range(8): a(f"v_cvt_pk_bf16_f32 v{P_+i}, v{SA+2*i}, v{SA+2*i+1}")
    a(f"""
v_mfma_f32_32x32x16_bf16 v[{O_}:{O_+15}], v[{VF}:{VF+3}], v[{P_}:{P_+3}], v[{O_}:{O_+15}]
v_mfma_f32_32x32x16_bf16 v[{O_}:{O_+15}], v[{VF+4}:{VF+7}], v[{P_+4}:{P_+7}], v[{O_}:{O_+15}]
s_add_u32 s48, s48, 1
s_cmp_lt_u32 s48, 64
s_cbranch_scc1 L_fb2
""")
    a.fence(12)
    a(f"""
L_fb_done:
v_rcp_f32 v12, v{O_+8}
v_mul_f32 v12, v12, v13
""")
    for i in range(8): a(f"v_mul_f32 v{O_+i}, v{O_+i}, v12")
    for i in range(4): a(f"v_cvt_pk_bf16_f32 v{P_+i}, v{O_+2*i}, v{O_+2*i+1}")
    a(f"buffer_store_dwordx4 v[{P_}:{P_+3}], v11, {SRD_WS}, s51 offen {ENV('TST', 'sc1')}")
    stamp(41)
    if ENV("BEND", "1") == "1": a("s_barrier   ; B_end")
    prof_dump("a")
    a("s_endpgm")

GACC = lambda i: 64 + 16 * i
GW = lambda buf, i: (32 + 8 * buf + 4 * i) if i < 2 else (128 + 8 * buf + 4 * (i - 2))
HX3 = lambda buf: 144 + 4 * buf
def x_instr(vm, kb, rel, tag):
    a(f"s_add_u32 m0, {'s91' if rel == 4 else 's%d' % (56+rel)}, {kb*XBLK}")
    a(f"s_add_u32 s95, {'s99' if rel == 4 else 's%d' % (60+rel)}, s{52+kb}")
    a(f"buffer_load_dwordx4 {vXP}, {SRD_X}, s95 offen lds")
    vm.issue(tag)
def gpf(g, w3, vm):
    if ENV("GPF", "0") != "1": return
    for st in range(2 if w3 else 1):
        for i in range(2):
            a(f"s_add_u32 s95, s{64+g}, {i*64*3072 + st*1024}")
            a(f"buffer_load_dword v28, v23, {SRD_W}, s95 offen")
            vm.issue("pf")
def gdma(n, w3, vm):
    slot = n % 3
    for st in range(2 if w3 else 1):
        for i in range(2):
            a(f"s_add_u32 m0, s89, {L_PR[slot] + st*2048 + i*1024}")
            a(f"s_add_u32 s95, s{64 + (n >> 3)}, {(16*(n&7) + 8*i)*3072 + st*1024}")
            a(f"buffer_load_dwordx4 {vWP}, {SRD_W}, s95 offen lds")
            vm.issue(f"g{n}")
def gstep(n, w3, vm):
    slot = n % 3; buf = n & 1
    if n < 32:
        vm.wait(f"g{n}")
        for st in range(2 if w3 else 1):
            for nt in range(2):
                r = GW(buf, 2 * st + nt)
                for half in range(2):
                    a(f"ds_read_b64_tr_b16 v[{r+2*half}:{r+2*half+1}], v{25+nt} offset:{L_PR[slot] - L_PR[2] + st*2048 + half*512}")
        a(f"v_xor_b32 v27, {32*(n&7)}, v24")
        if w3:
            a(f"ds_read_b128 v[{HX3(buf)}:{HX3(buf)+3}], v27 offset:{(n>>3)*XBLK}")
        else:
            for mt in range(2):
                r = GW(buf, 2 + mt)
                a(f"ds_read_b128 v[{r}:{r+3}], v27 offset:{(n>>3)*XBLK + mt*8192 if (n>>3) < 3 else mt*8192}")
    if n > 0:
        m = n - 1; b = m & 1
        a(f"s_waitcnt lgkmcnt({0 if n >= 32 else (9 if w3 else 6)})")
        PM = ENV("PM", "0")
        if PM == "0" and 1 <= n and n + 2 < 32: gdma(n + 2, w3, vm)
        if PM != "0": a("s_setprio 3")
        for i in range(4):
            d = GACC(i)
            c = "0" if m == 0 else f"v[{d}:{d+15}]"
            wv, xv = (GW(b, i), HX3(b)) if w3 else (GW(b, i >> 1), GW(b, 2 + (i & 1)))
            a(f"v_mfma_f32_32x32x16_bf16 v[{d}:{d+15}], v[{wv}:{wv+3}], v[{xv}:{xv+3}], {c}")
        if PM != "0":
            a("s_setprio 0")
            if 1 <= n and n + 2 < 32: gdma(n + 2, w3, vm)
    if n == 23 and not w3: a(f"v_add_u32 v24, {3*XBLK}, v24")
def kv_dma4(sc, vm=None):
    a(f"s_add_u32 s95, s94, {sc*16384}\ns_and_b32 s95, s95, 0x1ffff\ns_add_u32 s95, s95, s96")
    for i in range(4):
        a(f"s_add_u32 m0, s96, {L_KV + (sc%3)*16384}")
        a("s_nop 0")
        a(f"buffer_load_dwordx4 {vL16}, {SRD_WS}, s95 offen offset:{i*1024} sc1 lds")
        if vm: vm.issue(f"kv{sc}")

def kv_final():
    a(f"""
s_cmp_lg_u32 {S_A}, 3
s_cbranch_scc1 L_kvf_done
v_lshlrev_b32 v65, 2, v1
ds_read_b128 v[68:71], {vL16} offset:{SCR_D}
ds_read_b128 v[72:75], {vL16} offset:{SCR_D+1024}
ds_read_b128 v[76:79], {vL16} offset:{SCR_D+2048}
ds_read_b128 v[80:83], {vL16} offset:{SCR_D+3072}
ds_read_b32 v84, v65 offset:{SCR_G}
ds_read_b32 v85, v65 offset:{SCR_G+256}
ds_read_b32 v86, v65 offset:{SCR_G+512}
ds_read_b32 v87, v65 offset:{SCR_G+768}
s_lshl_b32 s48, {S_PB}, 1
s_lshr_b32 s49, {S_U4}, 1
s_add_u32 s48, s48, s49
s_lshr_b32 s49, s48, 3
s_lshl_b32 s49, s49, 14
s_and_b32 s51, s48, 7
s_lshl_b32 s51, s51, 10
s_add_u32 s49, s49, s51
s_and_b32 s50, {S_U4}, 1
v_and_b32 v66, 15, v1
v_bfe_u32 v67, v1, 4, 1
v_lshlrev_b32 v64, 4, v66
v_lshrrev_b32 v65, 5, v1
v_lshlrev_b32 v65, 3, v65
v_add_u32 v65, v65, v64
s_waitcnt lgkmcnt(4)
""")
    for r in range(4):
        a(f"v_add_f32 v{68+r}, v{68+r}, v{72+r}")
        a(f"v_add_f32 v{76+r}, v{76+r}, v{80+r}")
    for r in range(4): a(f"v_add_f32 v{68+r}, v{68+r}, v{76+r}")
    a(f"""
s_cmp_ge_u32 {S_HG}, 4
s_cbranch_scc1 L_kvf_V
s_lshl_b32 s51, s50, 8
s_add_u32 s49, s49, s51
v_lshlrev_b32 v67, 9, v67
v_add_u32 v67, v67, v65
s_mov_b32 s51, {f32(QSCALE)}
v_mul_f32 v68, s51, v68
v_mul_f32 v69, s51, v69
v_mul_f32 v70, s51, v70
v_mul_f32 v71, s51, v71
v_cvt_pk_bf16_f32 v72, v68, v69
v_cvt_pk_bf16_f32 v73, v70, v71
buffer_store_dwordx2 v[72:73], v67, {SRD_WS}, s49 offen sc1
v_mul_f32 v76, v68, v68
v_fmac_f32 v76, v69, v69
v_fmac_f32 v76, v70, v70
v_fmac_f32 v76, v71, v71
v_mov_b32 v77, v76
v_permlane32_swap_b32 v76, v77
v_add_f32 v76, v76, v77
v_mov_b32 v77, v76
v_permlane16_swap_b32 v76, v77
v_add_f32 v76, v76, v77
v_max_f32_dpp v76, v76, v76 row_ror:8 row_mask:0xf bank_mask:0xf
v_max_f32_dpp v76, v76, v76 row_ror:4 row_mask:0xf bank_mask:0xf
v_max_f32_dpp v76, v76, v76 row_ror:2 row_mask:0xf bank_mask:0xf
v_max_f32_dpp v76, v76, v76 row_ror:1 row_mask:0xf bank_mask:0xf
s_lshl_b32 s48, {S_PB}, 2
s_add_u32 s48, s48, {S_U4}
s_lshl_b32 s48, s48, 2
s_add_u32 s48, s48, {WS_KN}
v_mov_b32 v77, s48
s_mov_b64 exec, 1
buffer_store_dword v76, v77, {SRD_WS}, 0 offen sc1
s_mov_b64 exec, -1
s_branch L_kvf_done
L_kvf_V:
s_lshl_b32 s51, s50, 9
s_add_u32 s49, s49, s51
s_add_u32 s49, s49, 8192
v_lshlrev_b32 v67, 8, v67
v_add_u32 v67, v67, v65
v_cvt_pk_bf16_f32 v72, v68, v69
v_cvt_pk_bf16_f32 v73, v70, v71
buffer_store_dwordx2 v[72:73], v67, {SRD_WS}, s49 offen sc1
s_waitcnt lgkmcnt(0)
v_add_f32 v84, v84, v85
v_add_f32 v86, v86, v87
v_add_f32 v84, v84, v86
v_mul_f32 v84, {f32(-LOG2E)}, v84
v_exp_f32 v84, v84
v_add_f32 v84, 1.0, v84
v_rcp_f32 v84, v84
s_lshl_b32 s48, {S_PB}, 2
s_add_u32 s48, s48, {S_U4}
s_lshl_b32 s48, s48, 7
v_lshlrev_b32 v77, 2, v66
s_add_u32 s49, s48, {WS_G}
s_mov_b64 exec, 0xffff
buffer_store_dword v84, v77, {SRD_WS}, s49 offen sc1
s_mov_b64 exec, -1
L_kvf_done:
""")
    a.fence(2)


def sw_setup():
    a(f"""
s_lshl_b32 s78, {S_A}, 14
s_add_u32 s78, s78, 49152
s_cmp_eq_u32 {S_A}, 3
s_cselect_b32 s78, 131072, s78
v_and_b32 v10, 15, v1
v_lshrrev_b32 v11, 4, v1
s_lshl_b32 s49, {S_A}, 9
s_add_u32 s50, s49, {L_T + 4*2560}
v_lshlrev_b32 v12, 6, v10
v_lshlrev_b32 v13, 4, v11
v_add3_u32 v152, v12, v13, s50
s_add_u32 s50, s49, {L_T + 512}
v_lshlrev_b32 v12, 5, v10
v_and_b32 v13, 1, v11
v_lshlrev_b32 v13, 4, v13
v_add3_u32 v153, v12, v13, s50
s_add_u32 s50, s49, {L_T + 8*2560}
v_bfe_u32 v12, v1, 2, 2
v_lshlrev_b32 v12, 6, v12
v_lshlrev_b32 v13, 8, v11
v_and_b32 v14, 3, v1
v_lshlrev_b32 v14, 3, v14
v_add3_u32 v154, v12, v13, v14
v_add_u32 v154, s50, v154
v_lshlrev_b32 v12, 7, v10
v_lshlrev_b32 v13, 3, v11
v_add3_u32 v155, v12, v13, s78
s_mov_b32 s80, 0x55555555
s_mov_b32 s81, 0xaaaaaaaa
s_mov_b32 s82, 0x55555555
s_mov_b32 s83, 0x55555555
s_mov_b32 s84, 0xaaaaaaaa
s_mov_b32 s85, 0xaaaaaaaa
v_lshrrev_b32 v12, 1, v10
v_lshlrev_b32 v13, 2, v11
v_sub_u32 v14, v13, v12
v_mov_b32 v15, {f32(-1e30)}
s_add_u32 s50, {S_PB}, {S_A}
s_cmp_eq_u32 s50, 0
s_cselect_b32 s50, 8, 0
""")
    for r in range(4):
        a(f"""
v_add_u32 v12, {r-1}, v14
v_add_u32 v6, {r}, v13
v_cmp_gt_u32 vcc, 8, v12
v_cmp_le_u32 s[48:49], s50, v6
v_cndmask_b32 v{156+r}, v15, 0, vcc
v_cndmask_b32 v{156+r}, v15, v{156+r}, s[48:49]
""")
    for i in range(4): a(f"v_mov_b32 v{160+i}, 0x3f803f80")
    for i in range(16): a(f"v_mov_b32 v{48+i}, 0")
    a(f"""
v_lshrrev_b32 v8, 3, v1
v_and_b32 v9, 7, v1
v_lshlrev_b32 v9, 4, v9
v_lshlrev_b32 v8, 10, v8
v_add_u32 v164, v8, v9
v_lshrrev_b32 v8, 4, {vJ}
v_lshlrev_b32 v8, 7, v8
v_and_b32 v9, 15, v1
v_lshlrev_b32 v9, 2, v9
v_add_u32 v165, v8, v9
v_add_u32 v166, s78, {vL16}
s_lshl_b32 s48, {S_A}, 4
s_add_u32 s48, s48, {S_P0}
s_lshl_b32 s48, s48, 10
s_lshl_b32 s49, {S_HG}, 7
s_add_u32 s74, s48, s49
s_lshl_b32 s75, {S_PB}, 9
s_add_u32 s75, s75, {WS_G}
s_lshl_b32 s79, {S_A}, 17
v_and_b32 v12, 1, v11
v_lshrrev_b32 v13, 1, v11
v_bfe_u32 v14, v1, 2, 2
v_lshlrev_b32 v13, 2, v13
v_add_u32 v13, v13, v14
v_lshlrev_b32 v13, 7, v13
v_lshrrev_b32 v14, 1, v14
v_lshlrev_b32 v14, 6, v14
v_lshlrev_b32 v12, 5, v12
v_add3_u32 v14, v14, v13, v12
v_and_b32 v12, 3, v1
v_lshlrev_b32 v12, 3, v12
v_add3_u32 v2, v14, v12, s78
v_xor_b32 v3, 64, v2
v_lshrrev_b32 v12, 1, {vJ}
v_and_b32 v13, 1, {vJ}
v_lshlrev_b32 v13, 3, v13
v_lshrrev_b32 v14, 5, v1
v_or_b32 v13, v13, v14
v_xor_b32 v13, v13, v12
v_lshlrev_b32 v13, 4, v13
v_lshlrev_b32 v12, 8, v12
v_add3_u32 v4, v12, v13, s78
v_xor_b32 v5, 32, v4
v_xor_b32 v6, 64, v4
v_xor_b32 v7, 96, v4
""")
    for n4 in range(4):
        a(f"""
v_add_u32 v12, {4*n4}, v11
v_xor_b32 v13, v10, v12
v_lshlrev_b32 v12, 1, v12
v_lshrrev_b32 v14, 3, v13
v_add_u32 v12, v12, v14
v_lshlrev_b32 v12, 10, v12
v_and_b32 v13, 7, v13
v_lshlrev_b32 v13, 4, v13
v_add_u32 v{20+n4}, v12, v13
""")
    a(f"""
v_and_b32 v12, 1, v1
s_lshl_b32 s48, {S_PB}, 3
s_lshl_b32 s49, {S_A}, 1
s_add_u32 s48, s48, s49
v_add_u32 v28, s48, v12
v_lshlrev_b32 v28, 7, v28
s_lshl_b32 s86, {S_P0}, 10
s_lshl_b32 s48, {S_A}, 8
s_add_u32 s86, s86, s48
v_lshrrev_b32 v9, 5, v1
v_lshlrev_b32 v8, 5, {vJ}
v_lshlrev_b32 v9, 4, v9
s_mul_i32 s49, {S_A}, 10240
s_add_u32 s49, s49, {L_T + 512}
s_cmp_eq_u32 {S_A}, 3
s_cselect_b32 s49, {L_T + 10240}, s49
v_add3_u32 v167, v8, v9, s49
""")

def sw_phase1():
    a("L_sw:")
    a.fence(2)
    vm = VM(a)
    for kb in range(4):
        x_instr(vm, kb, 0, "KV")
        a(f"s_add_u32 m0, s96, {L_WK}")
        a("s_nop 0")
        a(f"buffer_load_dwordx4 {vL16}, {SRD_WK}, s96 offen offset:{kb*1024} lds")
        vm.issue("KV")
    a(f"""
s_mov_b32 s72, 3072
s_lshl_b32 s48, {S_A}, 10
s_cmp_eq_u32 {S_A}, 3
s_cselect_b32 s12, s44, s12
s_cselect_b32 s13, s45, s13
s_cselect_b32 s14, s46, s14
s_cselect_b32 s72, 1024, s72
s_cselect_b32 s48, 0, s48
v_lshrrev_b32 v10, 3, v1
v_and_b32 v11, 7, v1
v_bfe_u32 v12, v1, 4, 1
v_lshlrev_b32 v12, 2, v12
v_xor_b32 v11, v11, v12
v_lshlrev_b32 v11, 4, v11
s_lshl_b32 s51, {S_HG}, 7
v_lshlrev_b32 v12, 10, v10
v_add3_u32 {vWQP}, v12, v11, s51
v_mul_lo_u32 v12, v10, s72
s_add_u32 s48, s48, s51
v_add3_u32 {vWP}, v12, v11, s48
s_lshl_b32 s71, s72, 3
s_add_u32 s89, s96, {L_RING}
""")
    def issue_w(s):
        slot = s & 3
        if s % 4 == 0:
            a(f"s_lshr_b32 s70, s72, 1\ns_mul_i32 s70, s70, s{52 + s // 4}\ns_sub_u32 s70, s70, s71")
        for i in range(4):
            a(f"s_add_u32 m0, s89, {slot*16384 + i*1024}")
            a("s_add_u32 s70, s70, s71")
            a(f"buffer_load_dwordx4 {vWP}, {SRD_W}, s70 offen lds")
            vm.issue(f"S{s}")
    for rel in (1, 2, 3, 4): x_instr(vm, 0, rel, "S0")
    issue_w(0)
    a(f"""
s_cmp_lg_u32 {S_A}, 3
s_cbranch_scc1 L_sw_norst
s_lshl_b32 s48, s88, 7
s_add_u32 s48, s48, {WS_FL}
v_mov_b32 v8, s48
v_mov_b32 v10, 0
v_mov_b32 v11, 0
s_mov_b64 exec, 1
buffer_store_dwordx2 v[10:11], v8, {SRD_WS}, 0 offen offset:4 sc1
s_mov_b64 exec, -1
L_sw_norst:
""")
    sw_setup()
    vm.wait("KV")
    stamp(3)
    a("s_barrier   ; B_kv")
    issue_w(1); issue_w(2)
    a(f"""
v_and_b32 v24, 3, v1
v_lshlrev_b32 v24, 6, v24
v_mov_b32 v25, {L_GO}
""")
    def c0():
        a(f"s_lshl_b32 s49, {S_A}, 13")
        for hf in range(2):
            a(f"s_add_u32 s95, s49, s94\ns_add_u32 s95, s95, {hf*4096}\ns_and_b32 s95, s95, 0x1ffff")
            for i in range(4):
                a(f"s_add_u32 m0, s49, {L_KV + hf*4096}")
                a("s_nop 0")
                a(f"buffer_load_dwordx4 {vL16}, {SRD_WS}, s95 offen offset:{i*1024} sc1 lds")
        a(f"v_lshlrev_b32 v8, 3, v1\ns_mov_b32 s48, {WS_KN}\nbuffer_load_dwordx2 v[26:27], v8, {SRD_WS}, s48 offen sc1")
    for s in range(16):
        if s >= 14:
            n = 4 * (15 - s)
            a(f"s_cmp_eq_u32 s69, 1\ns_cbranch_scc1 L_sw_w{s}\ns_waitcnt vmcnt({n})\nL_sw_w{s}:\ns_waitcnt vmcnt({n + 9})")
        else:
            vm.wait(f"S{s}")
        if s == 13:
            a(f"""
s_cmp_lg_u32 {S_A}, 0
s_cbranch_scc1 L_sw_nogo
v_cmp_gt_u32 vcc, 64, v9
s_cmp_eq_u64 vcc, 0
s_cselect_b32 s48, 1, 0
v_mov_b32 v9, s48
ds_write_b32 v25, v9
s_waitcnt lgkmcnt(0)
L_sw_nogo:
""")
        a(f"s_barrier   ; B_{s}")
        if s == 10:
            a(f"s_cmp_lg_u32 {S_A}, 0\ns_cbranch_scc1 L_sw_nopoll\nbuffer_load_dword v9, v24, {SRD_DBG}, 0 offen sc1\nL_sw_nopoll:")
        if s == 0: kv_final(); issue_w(3)
        if 1 <= s and s + 3 < 16: issue_w(s + 3)
        if s == 13:
            a("ds_read_b32 v9, v25\ns_waitcnt lgkmcnt(0)\nv_readfirstlane_b32 s69, v9\ns_cmp_eq_u32 s69, 1\ns_cbranch_scc0 L_sw_noearly")
            c0()
            a("L_sw_noearly:")
    a(f"""
s_cmp_eq_u32 s69, 1
s_cbranch_scc1 L_sw_have
s_mov_b32 s50, 0
L_poll_go:
buffer_load_dword v9, v24, {SRD_DBG}, 0 offen sc1
s_add_u32 s50, s50, 1
s_waitcnt vmcnt(0)
v_cmp_gt_u32 vcc, 64, v9
s_cmp_ge_u32 s50, {SPIN_MAX}
s_cbranch_scc1 L_poll_go_done
s_cbranch_vccz L_poll_go_done
s_sleep 8
s_branch L_poll_go
L_poll_go_done:
""")
    c0()
    a(f"""
L_sw_have:
s_waitcnt vmcnt(0)
v_max_f32 v26, v26, v27
v_mov_b32 v27, v26
v_permlane32_swap_b32 v26, v27
v_max_f32 v26, v26, v27
v_mov_b32 v27, v26
v_permlane16_swap_b32 v26, v27
v_max_f32 v26, v26, v27
v_max_f32_dpp v26, v26, v26 row_ror:8 row_mask:0xf bank_mask:0xf
v_max_f32_dpp v26, v26, v26 row_ror:4 row_mask:0xf bank_mask:0xf
v_max_f32_dpp v26, v26, v26 row_ror:2 row_mask:0xf bank_mask:0xf
v_max_f32_dpp v26, v26, v26 row_ror:1 row_mask:0xf bank_mask:0xf
v_mov_b32 v27, {L_KMAX}
ds_write_b32 v27, v26
s_waitcnt lgkmcnt(0)
s_setprio {ENV('SWP', '3')}
""")
    stamp(30)
    a("s_barrier   ; B_e")
    kv_dma4(2)

def sw_post():
    a.comment("---- SW: A attention (u = a), two rounds of 2 heads")
    KR = lambda u: 32 + 4 * u
    QR = lambda u: 48 + 4 * u
    PRr = lambda u: 56 + 4 * u
    VR = lambda u: 64 + 4 * u
    SR = lambda u: 72 + 4 * u
    OR = lambda u: 80 + 4 * u
    LR = lambda u: 88 + 4 * u
    MX = lambda u: 96 + 2 * u
    a(f"s_mov_b32 s51, {f32(QSCALE)}")
    if ENV("PM", "0") != "0": a("s_setprio 3")
    for rnd in range(2):
        U = range(2)
        for u in U: a(f"ds_read_b128 v[{KR(u)}:{KR(u)+3}], v152 offset:{(2*rnd+u)*2560}")
        a("s_mov_b64 exec, s[80:81]")
        for u in U: a(f"ds_read_b128 v[{QR(u)}:{QR(u)+3}], v153 offset:{(2*rnd+u)*2560}")
        a("s_mov_b64 exec, -1")
        for u in U:
            a(f"ds_read_b64_tr_b16 v[{VR(u)}:{VR(u)+1}], v154 offset:{(2*rnd+u)*2560}")
            a(f"ds_read_b64_tr_b16 v[{VR(u)+2}:{VR(u)+3}], v154 offset:{(2*rnd+u)*2560+32}")
        a("s_waitcnt lgkmcnt(4)")
        for u in U: a(f"v_mfma_f32_16x16x32_bf16 v[{SR(u)}:{SR(u)+3}], v[{KR(u)}:{KR(u)+3}], v[{QR(u)}:{QR(u)+3}], v[156:159]")
        for u in U:
            s = SR(u); m = MX(u)
            a(f"v_max3_f32 v{m}, v{s}, v{s+1}, v{s+2}"); a(f"v_max_f32 v{m}, v{m}, v{s+3}"); a(f"v_mov_b32 v{m+1}, v{m}")
        for u in U: a(f"v_permlane32_swap_b32 v{MX(u)}, v{MX(u)+1}")
        for u in U: m = MX(u); a(f"v_max_f32 v{m}, v{m}, v{m+1}"); a(f"v_mov_b32 v{m+1}, v{m}")
        for u in U: a(f"v_permlane16_swap_b32 v{MX(u)}, v{MX(u)+1}")
        for u in U: m = MX(u); a(f"v_max_f32 v{m}, v{m}, v{m+1}"); a(f"v_mul_f32 v{m}, s51, v{m}")
        for u in U:
            for r in range(4): a(f"v_fma_f32 v{SR(u)+r}, v{SR(u)+r}, s51, -v{MX(u)}")
        for u in U:
            for r in range(4): a(f"v_exp_f32 v{SR(u)+r}, v{SR(u)+r}")
        a("s_mov_b64 exec, s[82:83]")
        for u in U:
            s = SR(u); p = PRr(u); a(f"v_cvt_pk_bf16_f32 v{p}, v{s}, v{s+1}"); a(f"v_cvt_pk_bf16_f32 v{p+1}, v{s+2}, v{s+3}")
        a("s_mov_b64 exec, s[84:85]")
        for u in U:
            s = SR(u); p = PRr(u); a(f"v_cvt_pk_bf16_f32 v{p+2}, v{s}, v{s+1}"); a(f"v_cvt_pk_bf16_f32 v{p+3}, v{s+2}, v{s+3}")
        a("s_mov_b64 exec, -1\ns_waitcnt lgkmcnt(0)")
        for u in U: a(f"v_mfma_f32_16x16x32_bf16 v[{LR(u)}:{LR(u)+3}], v[160:163], v[{PRr(u)}:{PRr(u)+3}], 0")
        for u in U: a(f"v_mfma_f32_16x16x32_bf16 v[{OR(u)}:{OR(u)+3}], v[{VR(u)}:{VR(u)+3}], v[{PRr(u)}:{PRr(u)+3}], 0")
        for u in U: a(f"v_rcp_f32 v{LR(u)}, v{LR(u)}")
        for u in U:
            o = OR(u)
            for r in range(4): a(f"v_mul_f32 v{o+r}, v{o+r}, v{LR(u)}")
            a(f"v_cvt_pk_bf16_f32 v{o}, v{o}, v{o+1}"); a(f"v_cvt_pk_bf16_f32 v{o+1}, v{o+2}, v{o+3}")
            a(f"ds_write_b64 v155, v[{o}:{o+1}] offset:{(2*rnd+u)*32}")
    if ENV("PM", "0") != "0": a("s_setprio 0")
    a(f"""
s_waitcnt lgkmcnt(0)
ds_read_b128 v[32:35], v166
ds_read_b128 v[36:39], v166 offset:1024
s_add_u32 s49, s74, {WS_OB}
s_add_u32 s50, s74, {WS_OB + 8192}
s_add_u32 s51, s74, {WS_OA + 8192}
s_add_u32 s48, s74, {WS_OA}
v_mov_b32 v40, -1
v_mov_b32 v41, -1
v_mov_b32 v42, -1
v_mov_b32 v43, -1
buffer_store_dwordx4 v[40:43], v164, {SRD_WS}, s49 offen sc1
buffer_store_dwordx4 v[40:43], v164, {SRD_WS}, s50 offen sc1
s_waitcnt lgkmcnt(0)
buffer_store_dwordx4 v[32:35], v164, {SRD_WS}, s48 offen sc1
buffer_store_dwordx4 v[36:39], v164, {SRD_WS}, s51 offen sc1
buffer_load_dword v24, v165, {SRD_WS}, s75 offen sc1
buffer_load_dword v25, v165, {SRD_WS}, s75 offen offset:256 sc1
v_mov_b32 v26, v166
s_waitcnt vmcnt(6)
""")
    def wq_dma(srdw, r0, nrows, dst_off):
        for i in range(nrows // 8):
            a(f"s_add_u32 m0, s78, {dst_off + i*1024}")
            a(f"s_add_u32 s95, s79, {(r0 + 8*i)*1024}")
            a(f"buffer_load_dwordx4 {vWQP}, {srdw}, s95 offen lds")
    stamp(46)
    a("s_barrier   ; b2")
    kv_dma4(3)
    wq_dma(SRD_BWO, 0, 128, 0)
    a("s_waitcnt vmcnt(16)")
    a("s_barrier   ; b3")
    a(f"""
s_cmp_lg_u32 {S_A}, 0
s_cbranch_scc1 L_nopub
s_lshl_b32 s48, s88, 7
s_add_u32 s48, s48, {WS_FL + 4}
v_mov_b32 v12, s48
v_mov_b32 v13, 1
s_mov_b64 exec, 1
buffer_store_dword v13, v12, {SRD_WS}, 0 offen sc1
s_mov_b64 exec, -1
L_nopub:
""")
    kv_dma4(4)
    a("s_waitcnt vmcnt(4)")
    BW = lambda kk, nt: 100 + 8 * kk + 4 * nt
    OACC = lambda i: 36 + 16 * i
    for kk in range(8):
        for nt in range(2):
            for half in range(2):
                r = BW(kk, nt) + 2 * half
                a(f"ds_read_b64_tr_b16 v[{r}:{r+1}], v{2+nt} offset:{kk*2048 + half*1024}")
        if kk % 2 == 1: a("s_waitcnt lgkmcnt(0)")
    wq_dma(SRD_AWO, 0, 64, 0)
    a("s_waitcnt vmcnt(8)")
    a("s_barrier   ; b4")
    kv_dma4(5)
    a(f"""
s_mov_b32 s49, 0
s_mov_b32 s50, {WS_FL + 4}
L_ap_poll:
buffer_load_dword v12, v28, {SRD_WS}, s50 offen sc1
s_add_u32 s49, s49, 1
s_waitcnt vmcnt(0)
v_cmp_ne_u32 vcc, 1, v12
s_cmp_ge_u32 s49, {SPIN_MAX}
s_cbranch_scc1 L_ap_go
s_cbranch_vccz L_ap_go
s_sleep 4
s_branch L_ap_poll
L_ap_go:
""")
    def o_dma(base, blk, dst=8192):
        for n in range(8):
            a(f"s_add_u32 m0, s78, {dst + n*1024}")
            a(f"s_add_u32 s95, s86, {base + blk*128 + (n>>2)*32768}")
            a(f"buffer_load_dwordx4 v{20+(n&3)}, {SRD_WS}, s95 offen {ENV('TLD', 'sc1') if base == WS_OB else 'sc1'} lds")
    TW = lambda j, nt: 8 + 4 * nt if False else None
    def apiece(first):
        for j in range(4):
            for nt in range(2):
                for half in range(2):
                    r = 8 + 4 * nt + 2 * half
                    a(f"ds_read_b64_tr_b16 v[{r}:{r+1}], v{2+nt} offset:{j*2048 + half*1024}")
            a(f"ds_read_b128 v[32:35], v{4+j} offset:8192")
            a(f"ds_read_b128 v[{TMPO}:{TMPO+3}], v{4+j} offset:{8192+4096}")
            a("s_waitcnt lgkmcnt(0)")
            for nt in range(2):
                for mi in range(2):
                    d = OACC(2 * nt + mi); c = "0" if (first and j == 0) else f"v[{d}:{d+15}]"
                    o = 32 if mi == 0 else TMPO
                    a(f"v_mfma_f32_32x32x16_bf16 v[{d}:{d+15}], v[{8+4*nt}:{11+4*nt}], v[{o}:{o+3}], {c}")
    o_dma(WS_OA, 0)
    stamp(47)
    a("s_barrier   ; b5")
    kv_dma4(6)
    a("s_waitcnt vmcnt(4)")
    if ENV("PM", "0") != "0": a("s_setprio 3")
    apiece(True)
    if ENV("PM", "0") != "0": a("s_setprio 0")
    wq_dma(SRD_AWO, 64, 64, 0)
    o_dma(WS_OA, 1)
    a("s_waitcnt vmcnt(16)")
    a("s_barrier   ; b6")
    kv_dma4(7)
    a("s_waitcnt vmcnt(0)")
    a("s_barrier   ; b7")
    if ENV("FILL", "1") == "1": a("s_barrier   ; B_end")
    apiece(False)
    a.fence(12)
    for i in range(4):
        for r in range(16): a(f"v_mul_f32 v{OACC(i)+r}, v{24 + (i & 1)}, v{OACC(i)+r}")
    if ENV("BEND", "1") == "1" and ENV("FILL", "1") != "1": a("s_barrier   ; B_end")
    stamp(42)
    o_dma(WS_OB, 0, 0); o_dma(WS_OB, 1, 8192)
    for blk in range(2):
        dst = blk * 8192
        a(f"""
s_mov_b32 s49, 0
s_waitcnt vmcnt({8 if blk == 0 else 0})
s_branch L_t{blk}f
L_t{blk}r:
s_sleep {ENV('TSLEEP', '4')}
""")
        o_dma(WS_OB, blk, dst)
        a(f"s_add_u32 s49, s49, 1\ns_waitcnt vmcnt(0)\nL_t{blk}f:")
        for half in range(4):
            a(f"ds_read_b128 v[8:11], v26 offset:{dst + half*2048}")
            a(f"ds_read_b128 v[12:15], v26 offset:{dst + half*2048 + 1024}")
            a("s_waitcnt lgkmcnt(0)")
            a("v_max_u32 v27, v8, v9" if half == 0 else "v_max3_u32 v27, v27, v8, v9")
            a("v_max3_u32 v27, v27, v10, v11\nv_max3_u32 v27, v27, v12, v13\nv_max3_u32 v27, v27, v14, v15")
        a(f"""
v_cmp_eq_u32 vcc, -1, v27
s_cmp_ge_u32 s49, {SPIN_MAX // 4}
s_cbranch_scc1 L_t{blk}g
s_cbranch_vccnz L_t{blk}r
L_t{blk}g:
""")
        regs = [(8, 12), (32, TMPO)]
        def ord_(j):
            r0, r1 = regs[j & 1]
            a(f"ds_read_b128 v[{r0}:{r0+3}], v{4+j} offset:{dst}")
            a(f"ds_read_b128 v[{r1}:{r1+3}], v{4+j} offset:{dst+4096}")
        ord_(0)
        for j in range(4):
            if j + 1 < 4: ord_(j + 1); a("s_waitcnt lgkmcnt(2)")
            else: a("s_waitcnt lgkmcnt(0)")
            for nt in range(2):
                for mi in range(2):
                    d = OACC(2 * nt + mi); o = regs[j & 1][mi]; w = BW(4 * blk + j, nt)
                    a(f"v_mfma_f32_32x32x16_bf16 v[{d}:{d+15}], v[{w}:{w+3}], v[{o}:{o+3}], v[{d}:{d+15}]")
    stamp(43)
    a.fence(12)
    a(f"""
v_add_u32 v8, s75x, {vJ}
""".replace("v_add_u32 v8, s75x, {vJ}".replace("{vJ}", vJ), "s_nop 0"))
    for i in range(4):
        a(f"""
s_cmp_eq_u32 {S_A}, {i}
s_cbranch_scc1 L_rw{i}
s_sub_u32 s48, {S_A}, {i+1}
s_and_b32 s48, s48, 3
s_add_u32 s48, s48, {3*i}
s_lshl_b32 s48, s48, 12
s_add_u32 s48, s48, {L_REDX}
v_add_u32 v8, s48, {vL16}
""")
        for q in range(4): a(f"ds_write_b128 v8, v[{OACC(i)+4*q}:{OACC(i)+4*q+3}] offset:{q*1024}")
        a(f"L_rw{i}:")
    a(f"""
s_mul_i32 s48, {S_A}, 12288
s_add_u32 s48, s48, {L_REDX}
v_add_u32 v8, s48, {vL16}
s_and_b32 s48, {S_A}, 1
s_lshl_b32 s48, s48, 5
s_add_u32 s48, s48, {S_P0}
v_add_u32 v9, s48, {vJ}
v_lshlrev_b32 v9, 10, v9
v_lshrrev_b32 v10, 5, v1
v_lshlrev_b32 v10, 4, v10
v_add_u32 v9, v9, v10
s_lshl_b32 s85, {S_HG}, 7
s_lshr_b32 s49, {S_A}, 1
s_lshl_b32 s49, s49, 6
s_add_u32 s85, s85, s49
s_waitcnt lgkmcnt(0)
s_barrier   ; B_7
""")
    stamp(44)
    for sl in range(3):
        for q in range(4): a(f"ds_read_b128 v[{100+16*sl+4*q}:{103+16*sl+4*q}], v8 offset:{sl*4096 + q*1024}")
    for i in range(4):
        a(f"s_cmp_lg_u32 {S_A}, {i}\ns_cbranch_scc1 L_ow{i}")
        for r in range(16): a(f"v_mov_b32 v{148+r}, v{OACC(i)+r}")
        a(f"L_ow{i}:")
    a("s_waitcnt lgkmcnt(0)")
    for r in range(16):
        a(f"v_add_f32 v{100+r}, v{100+r}, v{116+r}")
        a(f"v_add_f32 v{132+r}, v{132+r}, v{148+r}")
    for r in range(16): a(f"v_add_f32 v{100+r}, v{100+r}, v{132+r}")
    for i in range(8): a(f"v_cvt_pk_bf16_f32 v{48+i}, v{100+2*i}, v{100+2*i+1}")
    a("""
v_permlane32_swap_b32 v48, v50
v_permlane32_swap_b32 v49, v51
v_permlane32_swap_b32 v52, v54
v_permlane32_swap_b32 v53, v55
""")
    a(f"buffer_store_dwordx4 v[48:51], v9, {SRD_OUT}, s85 offen")
    a(f"buffer_store_dwordx4 v[52:55], v9, {SRD_OUT}, s85 offen offset:32")
    stamp(45)
    prof_dump("s")
TMPO = 164

def build():
    here = os.path.dirname(os.path.abspath(__file__))
    a.raw(open(os.path.join(here, "header.txt")).read())
    a.raw(f"; @launch grid=(256,1,1) block=(768,1,1) lds={LDS_BYTES}")
    a.raw('.amdgcn_target "amdgcn-amd-amdhsa--gfx950"\n.text')
    a.raw(f".globl {NAME}_kernel\n.p2align 8\n.type {NAME}_kernel,@function\n{NAME}_kernel:")
    prologue()
    aw_phase1()
    aw_loop()
    sw_phase1()
    sw_post()
    a("L_end:")
    a("s_endpgm")
    a.raw(f""".section .rodata,"a"
.p2align 6
.amdhsa_kernel {NAME}_kernel
  .amdhsa_next_free_vgpr 168
  .amdhsa_next_free_sgpr 102
  .amdhsa_accum_offset 168
  .amdhsa_group_segment_fixed_size 0
  .amdhsa_kernarg_size 96
  .amdhsa_user_sgpr_count 2
  .amdhsa_user_sgpr_kernarg_segment_ptr 1
  .amdhsa_system_sgpr_workgroup_id_x 1
.end_amdhsa_kernel""")
    open(sys.argv[1], "w").write(a.text())
    print("nops inserted:", a.nops, "lines:", len(a.lines))
build()
```

```python
import sys, struct, os
from dsl import Asm, VM

NAME = "gated_mix__sliding_local_dilated__grouped_kv_mqa__prompt"
WS_KV = 0x0
WS_FL = 0x24000
WS_KN = 0x20000
WS_G = 0x2C000
WS_OA = 0x100000
WS_OB = 0x300000
WS_PROF = 0x1C00000
WS_SIZE = 0x2000000
XBLK = 20480
L_RING = 81920
L_WK = 147456
L_KV = 0
L_QB = 147456
L_T = 98304
L_GO = 36864 + 8192
L_KMAX = L_T + 30720
SCR_D = 3 * XBLK
SCR_G = 2 * XBLK
L_REDX = 0
LDS_BYTES = 163840
LOG2E = 1.4426950408889634
QSCALE = 0.25 * LOG2E
SPIN_MAX = 1 << 15
def f32(x): return "0x%08x" % struct.unpack("<I", struct.pack("<f", x))[0]
PROF = len(sys.argv) > 2 and sys.argv[2] == "prof"
OPT = set(sys.argv[3:])
ENV = os.environ.get

a = Asm()
S_WAVE, S_PB, S_HG, S_P0, S_U4, S_A = "s3", "s4", "s5", "s6", "s7", "s90"
SRD_X, SRD_W, SRD_WS, SRD_DBG, SRD_WK, SRD_GT, SRD_AWO, SRD_BWO, SRD_OUT, SRD_WQ = [f"s[{8+4*i}:{11+4*i}]" for i in range(10)]
vL16, vKA, vVA, vJ = "v16", "v17", "v18", "v19"
vWP, vWQP, vXP = "v31", "v30", "v29"
C_, SA, SB, O_, P_, KF, VF = 32, 48, 64, 80, 96, 104, 112
PR = "v0"

def stamp(i):
    if PROF:
        a(f"""s_memtime s[100:101]
s_waitcnt lgkmcnt(0)
v_writelane_b32 {PR}, s100, {i}""")
def prof_dump(lbl):
    if PROF:
        a(f"""v_lshlrev_b32 v2, 2, v1
s_mul_i32 s100, s2, 12
s_add_u32 s100, s100, {S_WAVE}
s_lshl_b32 s100, s100, 8
s_add_u32 s100, s100, {WS_PROF}
buffer_store_dword {PR}, v2, {SRD_WS}, s100 offen
s_waitcnt vmcnt(0)""")
def srd(idx, plo, size):
    b = 8 + 4 * idx
    a(f"""s_mov_b32 s{b}, s{plo}
s_and_b32 s{b+1}, s{plo+1}, 0xffff
s_mov_b32 s{b+2}, {size}
s_mov_b32 s{b+3}, 0x00020000""")

def prologue():
    MAP2 = f"""s_lshl_b32 s50, s48, 2
s_and_b32 s51, s49, 3
s_add_u32 {S_PB}, s50, s51
s_lshr_b32 {S_HG}, s49, 2"""
    a(f"""
s_cmp_ge_u32 s2, 256
s_cbranch_scc1 L_end
s_load_dwordx16 s[64:79], s[0:1], 0
s_load_dwordx8 s[80:87], s[0:1], 64
v_and_b32 v1, 63, v0
v_lshrrev_b32 v2, 6, v0
s_and_b32 s48, s2, 7
s_lshr_b32 s49, s2, 3
v_readfirstlane_b32 {S_WAVE}, v2
s_lshr_b32 s50, s48, 1
s_lshl_b32 s50, s50, 3
s_and_b32 s51, s49, 7
s_add_u32 {S_PB}, s50, s51
s_and_b32 s50, s48, 1
s_lshr_b32 s51, s49, 3
s_lshl_b32 s51, s51, 1
s_add_u32 {S_HG}, s50, s51
{MAP2 if ENV("MAP", "1") == "2" else ""}
s_lshl_b32 {S_P0}, {S_PB}, 6
s_lshl_b32 s88, {S_PB}, 3
s_add_u32 s88, s88, {S_HG}
s_and_b32 {S_A}, {S_WAVE}, 3
s_and_b32 {S_U4}, {S_HG}, 3
s_lshr_b32 s97, {S_HG}, 1
s_add_u32 s97, s97, {S_PB}
s_and_b32 s97, s97, 3
v_lshlrev_b32 {vL16}, 4, v1
v_and_b32 {vJ}, 31, v1
s_and_b32 s94, s49, {7 if ENV("KVROT", "1") == "1" else 0}
s_lshl_b32 s94, s94, 14
s_mov_b32 s92, 0x0000ffff
s_mov_b32 s93, 0x0000ffff
""")
    for g in range(4):
        a(f"""
s_add_u32 s48, s97, {g}
s_and_b32 s48, s48, 3
s_lshl_b32 s{52+g}, s48, 8
""")
    a(f"""
v_lshrrev_b32 v10, 4, v1
v_and_b32 v11, 15, v1
s_lshl_b32 s48, {S_A}, 2
v_add_u32 v12, s48, v10
v_xor_b32 v11, v11, v12
v_lshlrev_b32 v11, 4, v11
v_lshlrev_b32 v10, 10, v10
v_add_u32 {vXP}, v10, v11
s_sub_u32 s49, {S_P0}, 16
s_max_i32 s50, s49, 0
s_add_u32 s49, s49, s48
s_add_u32 s50, s50, s48
s_lshl_b32 s98, s49, 10
s_lshl_b32 s99, s50, 10
s_lshl_b32 s91, {S_A}, 10
s_lshl_b32 s96, {S_A}, 12
""")
    for rel in range(4):
        a(f"""
s_add_u32 s48, {S_U4}, {rel}
s_and_b32 s48, s48, 3
s_add_u32 s48, s48, 1
s_lshl_b32 s49, s48, 12
s_add_u32 s{56+rel}, s49, s91
s_lshl_b32 s49, s48, 14
s_add_u32 s{60+rel}, s49, s98
""")
    a("s_waitcnt lgkmcnt(0)")
    srd(0, 64, 2048 * 1024)
    a(f"""
s_cmp_ge_u32 {S_HG}, 4
s_cselect_b32 s74, s76, s74
s_cselect_b32 s75, s77, s75
""")
    srd(4, 74, 16384)
    srd(9, 72, 524288)
    srd(1, 66, 1572864)
    srd(2, 86, WS_SIZE)
    srd(3, 84, 256)
    srd(5, 80, 1024)
    srd(6, 68, 524288)
    srd(7, 78, 524288)
    srd(8, 82, 2048 * 1024)
    stamp(0)
    a(f"""
s_cmp_ge_u32 {S_WAVE}, 8
s_cbranch_scc1 L_sw
""")

def aw_phase1():
    a.comment("==== AW: GEMM. strip = w&3, mt = w>>2 ; waves 0-3 also KV partial + halo ; waves 4-7 X DMA")
    a(f"""
s_cmp_ge_u32 {S_WAVE}, 4
s_cbranch_scc1 L_g_nogate
s_cmp_lt_u32 {S_HG}, 4
s_cbranch_scc1 L_g_nogate
v_lshrrev_b32 v7, 4, v1
v_lshlrev_b32 v7, 4, v7
s_add_u32 s50, {S_WAVE}, s97
s_and_b32 s50, s50, 3
s_lshl_b32 s50, s50, 8
s_mov_b32 s48, 0x00010001
s_mov_b32 s49, 0x00010001
s_mov_b64 exec, s[48:49]
""")
    for ks in range(4):
        a(f"buffer_load_dwordx4 v[{80+4*ks}:{83+4*ks}], v7, {SRD_GT}, s50 offen offset:{ks*64}")
    a(f"""
s_mov_b64 exec, -1
L_g_nogate:
v_lshrrev_b32 v8, 5, v1
v_lshlrev_b32 v9, 4, {vJ}
v_lshlrev_b32 v8, 8, v8
v_add_u32 v9, v9, v8
v_add_u32 {vVA}, {L_KV + 8192}, v9
v_add_u32 {vKA}, {L_KV}, {vL16}
v_and_b32 v8, 3, v1
v_lshlrev_b32 v8, 11, v8
v_bfe_u32 v9, v1, 2, 3
s_lshl_b32 s48, {S_WAVE}, 3
s_and_b32 s49, s48, 31
v_add_u32 v9, s49, v9
v_and_b32 v10, 32, v1
v_add_u32 v9, v9, v10
v_lshlrev_b32 v9, 4, v9
s_lshr_b32 s55, {S_WAVE}, 2
s_lshl_b32 s49, s55, 10
s_add_u32 s49, s49, {L_QB}
v_add3_u32 v30, v8, v9, s49
v_lshrrev_b32 v11, 5, v1
v_and_b32 v13, 15, {vJ}
v_xor_b32 v13, v13, v11
v_lshlrev_b32 v13, 4, v13
v_add_u32 v12, 16, {vJ}
v_lshlrev_b32 v12, 8, v12
s_and_b32 s75, {S_WAVE}, 1
s_lshr_b32 s74, {S_WAVE}, 1
s_add_u32 s74, s74, 1
s_cmp_eq_u32 s74, 3
s_cselect_b32 s74, 0, s74
s_cmp_eq_u32 s74, 4
s_cselect_b32 s74, 3, s74
s_lshl_b32 s48, s75, 13
v_add3_u32 v20, v12, v13, s48
""".replace("s55", "s73"))
    for j in range(1, 8): a(f"v_xor_b32 v{20+j}, {32*j}, v20")
    a(f"""
v_lshrrev_b32 v10, 4, v1
v_and_b32 v11, 1, v10
v_lshrrev_b32 v10, 1, v10
v_bfe_u32 v12, v1, 2, 2
v_and_b32 v13, 3, v1
v_lshlrev_b32 v14, 3, v10
v_add_u32 v14, v14, v12
v_lshlrev_b32 v14, 7, v14
v_lshrrev_b32 v15, 1, v12
v_lshlrev_b32 v15, 6, v15
v_lshlrev_b32 v11, 5, v11
v_lshlrev_b32 v13, 3, v13
v_add3_u32 v14, v14, v15, v11
v_add_u32 v14, v14, v13
s_lshl_b32 s48, s74, 12
s_add_u32 s48, s48, {L_RING}
v_add_u32 v6, s48, v14
v_xor_b32 v7, 64, v6
s_lshl_b32 s48, s74, 2
s_lshl_b32 s49, s75, 1
s_add_u32 s48, s48, s49
s_mul_i32 s48, s48, 2560
s_add_u32 s48, s48, {L_T}
v_lshrrev_b32 v12, 5, v1
v_lshlrev_b32 v13, 5, {vJ}
v_lshlrev_b32 v12, 4, v12
v_add3_u32 v31, v13, v12, s48
s_mul_i32 s49, s74, 10240
s_add_u32 s49, s49, {L_T + 512}
v_add3_u32 v160, v13, v12, s49
v_add_u32 v161, {L_QB}, {vL16}
s_movk_i32 s50, 2560
s_cmp_eq_u32 s74, 3
s_cselect_b64 vcc, -1, 0
s_cselect_b32 s50, 2048, s50
v_cndmask_b32 v160, v160, v161, vcc
s_lshl_b32 s48, s75, 10
v_add_u32 v160, s48, v160
v_add_u32 v161, s50, v160
v_add_u32 v162, s50, v161
v_add_u32 v163, s50, v162
v_and_b32 v164, 16, v1
v_lshlrev_b32 v164, 8, v164
s_lshl_b32 s48, s75, 13
s_add_u32 s48, s48, 4096
v_add_u32 v164, s48, v164
s_cmp_eq_u32 s75, 1
s_cselect_b64 vcc, -1, 0
v_cndmask_b32 v28, v6, v7, vcc
v_cndmask_b32 v7, v7, v6, vcc
v_mov_b32 v6, v28
v_cndmask_b32 v28, v160, v162, vcc
v_cndmask_b32 v162, v162, v160, vcc
v_mov_b32 v160, v28
v_cndmask_b32 v28, v161, v163, vcc
v_cndmask_b32 v163, v163, v161, vcc
v_mov_b32 v161, v28
s_cmp_ge_u32 {S_WAVE}, 4
s_cbranch_scc1 L_kv_skip
s_lshl_b32 s48, {S_U4}, 4
s_add_u32 s48, s48, 16
v_and_b32 v12, 15, v1
v_lshrrev_b32 v13, 4, v1
v_add_u32 v14, s48, v12
v_lshlrev_b32 v14, 8, v14
v_xor_b32 v15, v12, v13
v_lshlrev_b32 v15, 4, v15
s_mul_i32 s49, {S_WAVE}, {XBLK}
v_add3_u32 v2, v15, v14, s49
v_xor_b32 v3, 64, v2
v_xor_b32 v4, 128, v2
v_xor_b32 v5, 192, v2
v_bfe_u32 v14, v1, 2, 2
v_lshlrev_b32 v15, 3, v13
v_add_u32 v15, v15, v14
v_lshlrev_b32 v15, 5, v15
v_and_b32 v14, 3, v1
v_lshlrev_b32 v14, 3, v14
s_add_u32 s49, {S_WAVE}, s97
s_and_b32 s49, s49, 3
s_lshl_b32 s49, s49, 12
s_add_u32 s49, s49, {L_WK}
v_add3_u32 v8, v15, v14, s49
s_lshl_b32 s49, {S_WAVE}, 10
s_add_u32 s49, s49, {SCR_D}
v_add_u32 v9, s49, {vL16}
v_lshlrev_b32 v10, 2, v1
s_lshl_b32 s49, {S_WAVE}, 8
s_add_u32 s49, s49, {SCR_G}
v_add_u32 v10, s49, v10
s_waitcnt vmcnt(0)
s_barrier   ; B_kv
""")
    stamp(4)
    for ks in range(4):
        a(f"ds_read_b128 v[{128+4*ks}:{131+4*ks}], v{2+ks}")
        for half in range(2):
            a(f"ds_read_b64_tr_b16 v[{32+4*ks+2*half}:{33+4*ks+2*half}], v8 offset:{ks*1024 + half*128}")
    a(f"s_cmp_ge_u32 {S_HG}, 4\ns_cbranch_scc1 L_kv_V")
    for isV in (False, True):
        for ks in range(4):
            a(f"s_waitcnt lgkmcnt({3*(3-ks)})")
            w = f"v[{32+4*ks}:{35+4*ks}]"; x = f"v[{128+4*ks}:{131+4*ks}]"
            c0 = "0" if ks == 0 else "v[64:67]"; c1 = "0" if ks == 0 else "v[68:71]"
            if isV:
                a(f"v_mfma_f32_16x16x32_bf16 v[68:71], v[{80+4*ks}:{83+4*ks}], {x}, {c1}")
                a(f"v_mfma_f32_16x16x32_bf16 v[64:67], {x}, {w}, {c0}")
            else:
                a(f"v_mfma_f32_16x16x32_bf16 v[64:67], {w}, {x}, {c0}")
        if isV: a("ds_write_b32 v10, v68")
        else: a("s_branch L_kv_done\nL_kv_V:")
    a("L_kv_done:")
    a.fence(8)
    a("ds_write_b128 v9, v[64:67]\ns_waitcnt lgkmcnt(0)")
    WB = lambda buf, nt, ks2: 128 + 16 * buf + 8 * nt + 4 * ks2
    XB = lambda buf, ks2: 96 + 8 * buf + 4 * ks2
    HWB = lambda buf, ks2: 48 + 8 * buf + 4 * ks2
    HXB = lambda buf, ks2: 112 + 8 * buf + 4 * ks2
    ACC = lambda nt: 64 + 16 * nt
    HACC = 32
    def reads(s, halo):
        buf = s & 1; slot = s & 3; out = []
        for ks2 in range(2):
            k16 = 2 * s + ks2
            for nt in range(2):
                r = WB(buf, nt, ks2)
                for half in range(2):
                    out.append(f"ds_read_b64_tr_b16 v[{r+2*half}:{r+2*half+1}], v{6+nt} offset:{slot * 16384 + (16 * ks2 + 4 * half) * 128}")
            out.append(f"ds_read_b128 v[{XB(buf,ks2)}:{XB(buf,ks2)+3}], v{20+(k16&7)} offset:{((k16 >> 3) & 1) * XBLK}")
        if halo:
            for ks2 in range(2):
                k16 = 2 * s + ks2
                out.append(f"v_sub_u32 v{4+ks2}, v{20+(k16&7)}, v164")
                out.append(f"ds_read_b128 v[{HXB(buf,ks2)}:{HXB(buf,ks2)+3}], v{4+ks2} offset:{((k16 >> 3) & 1) * XBLK}")
        return out
    def mfs(s, halo):
        buf = s & 1; out = []
        for ks2 in range(2):
            for nt in range(2):
                d = ACC(nt); c = "0" if (s == 0 and ks2 == 0) else f"v[{d}:{d+15}]"
                out.append(f"v_mfma_f32_32x32x16_bf16 v[{d}:{d+15}], v[{WB(buf,nt,ks2)}:{WB(buf,nt,ks2)+3}], v[{XB(buf,ks2)}:{XB(buf,ks2)+3}], {c}")
            if halo:
                c = "0" if (s == 0 and ks2 == 0) else f"v[{HACC}:{HACC+15}]"
                out.append(f"v_mfma_f32_32x32x16_bf16 v[{HACC}:{HACC+15}], v[{WB(buf,0,ks2)}:{WB(buf,0,ks2)+3}], v[{HXB(buf,ks2)}:{HXB(buf,ks2)+3}], {c}")
        return out
    xsched = {0: [(1, 1), (1, 2)], 1: [(1, 3), (1, 4)]}
    for i in range(8): xsched[2 + i] = [(2 + (i >> 2), 1 + (i & 3))]
    for halo in (True, False):
        if not halo:
            a("L_kv_skip:\ns_barrier   ; B_kv")
        vg = VM(a)
        if ENV("GP", "") : a(f"s_setprio {ENV('GP')[0 if halo else 1]}")
        for s in range(16):
            if not halo:
                if s == 4: vg.wait("X1")
                if s == 8: vg.wait("X2")
                if s == 12: vg.wait("X3")
            a(f"s_barrier   ; B_{s}")
            if s in (0, 4, 8, 12, 15): stamp(8 + s)
            if s == 8:
                for i in range(8): a(f"v_add_u32 v{20+i}, {2*XBLK}, v{20+i}")
            R = reads(s, halo); M = mfs(s - 1, halo) if s > 0 else []
            while R or M:
                if M: a(M.pop(0))
                for _ in range(int(ENV("RPM", "4"))):
                    if R: a(R.pop(0))
            if not halo:
                for (kb, rel) in xsched.get(s, []): x_instr(vg, kb, rel, f"X{kb}")
                if s == 3:
                    a(f"""
s_cmp_lg_u32 {S_WAVE}, 4
s_cbranch_scc1 L_noarr
s_and_b32 s48, s2, 3
s_lshl_b32 s48, s48, 6
v_mov_b32 v12, s48
v_mov_b32 v13, 1
s_mov_b64 exec, 1
buffer_atomic_add v13, v12, {SRD_DBG}, 0 offen sc1
s_mov_b64 exec, -1
L_noarr:
""")
            a("s_waitcnt lgkmcnt(0)")
        for m in mfs(15, halo): a(m)
        for nt in range(2):
            for hh in range(2):
                p = 128 + 4 * (2 * nt + hh)
                for e in range(4): a(f"v_cvt_pk_bf16_f32 v{p+e}, v{ACC(nt)+8*hh+2*e}, v{ACC(nt)+8*hh+2*e+1}")
                a(f"ds_write_b128 v{160+2*nt+hh}, v[{p}:{p+3}]")
        if halo:
            a("s_mov_b64 exec, s[92:93]")
            for hh in range(2):
                p = 48 + 4 * hh
                for e in range(4): a(f"v_cvt_pk_bf16_f32 v{p+e}, v{HACC+8*hh+2*e}, v{HACC+8*hh+2*e+1}")
                a(f"ds_write_b128 v31, v[{p}:{p+3}] offset:{hh*2560}")
            a("s_mov_b64 exec, -1\ns_branch L_aw_e")
    a(f"""
L_aw_e:
v_and_b32 v9, 27, {vJ}
v_cmp_eq_u32 vcc, 16, v9
v_mov_b32 v9, 0x3f803f80
v_cndmask_b32 v{VF}, 0, v9, vcc
""")
    for i in range(1, 16): a(f"v_mov_b32 v{VF+i}, v{VF}")
    a(f"""
v_bfe_u32 v8, v1, 2, 3
s_and_b32 s48, {S_WAVE}, 1
s_lshl_b32 s48, s48, 3
v_add_u32 v8, s48, v8
v_lshlrev_b32 v8, 2, v8
s_lshr_b32 s48, {S_WAVE}, 1
s_lshl_b32 s49, {S_PB}, 2
s_add_u32 s48, s48, s49
s_lshl_b32 s48, s48, 7
s_add_u32 s48, s48, {WS_G}
v_mov_b32 v13, {L_KMAX}
v_mov_b32 v32, 0
s_waitcnt lgkmcnt(0)
""")
    stamp(30)
    a("s_barrier   ; B_e")
    a(f"""
ds_read_b128 v[4:7], v30
ds_read_b32 v34, v13
ds_read_b128 v[{KF}:{KF+3}], {vKA}
ds_read_b128 v[{KF+4}:{KF+7}], {vKA} offset:1024
s_mov_b64 exec, s[92:93]
ds_read_b128 v[{VF}:{VF+3}], {vVA}
ds_read_b128 v[{VF+4}:{VF+7}], {vVA} offset:512
s_mov_b64 exec, -1
buffer_load_dword v10, v8, {SRD_WS}, s48 offen sc1
s_waitcnt lgkmcnt(4)
v_dot2_f32_bf16 v32, v4, v4, v32
v_dot2_f32_bf16 v32, v5, v5, v32
v_dot2_f32_bf16 v32, v6, v6, v32
v_dot2_f32_bf16 v32, v7, v7, v32
v_mov_b32 v33, v32
v_permlane32_swap_b32 v32, v33
v_add_f32 v32, v32, v33
v_mul_f32 v32, v32, v34
v_sqrt_f32 v32, v32
v_sub_f32 v{C_}, 0, v32
""")
    for i in range(1, 16): a(f"v_mov_b32 v{C_+i}, v{C_}")
    a("s_waitcnt lgkmcnt(3)")
    a(f"v_mfma_f32_32x32x16_bf16 v[{SA}:{SA+15}], v[{KF}:{KF+3}], v[4:7], v[{C_}:{C_+15}]")
    a(f"ds_read_b128 v[{KF}:{KF+3}], {vKA} offset:2048")
    stamp(36)

def pv1(t):
    vb = VF + 8 * (t & 1)
    a(f"v_mfma_f32_32x32x16_bf16 v[{O_}:{O_+15}], v[{vb+4}:{vb+7}], v[{P_+4}:{P_+7}], v[{O_}:{O_+15}]")
def tile(t):
    first = t == 0
    S = SA if t % 2 == 0 else SB
    Sn = SB if t % 2 == 0 else SA
    def koff(x): return ((x >> 3) % 3) * 16384 + (x & 7) * 1024
    kb = KF + 4 * ((t + 1) & 1)
    vb = VF + 8 * (t & 1)
    vbp = VF + 8 * ((t + 1) & 1)
    if first: a("s_waitcnt lgkmcnt(3)")
    E = lambda i: a(f"v_exp_f32 v{S+i}, v{S+i}")
    Cv = lambda i: a(f"v_cvt_pk_bf16_f32 v{P_+i}, v{S+2*i}, v{S+2*i+1}")
    n = 0
    if t + 1 < 64: a(f"v_mfma_f32_32x32x16_bf16 v[{Sn}:{Sn+15}], v[{kb}:{kb+3}], v[4:7], v[{C_}:{C_+15}]")
    if t + 3 < 64: a(f"ds_read_b128 v[{kb}:{kb+3}], {vKA} offset:{koff(t+3)}"); n += 1
    for i in range(6): E(i)
    if not first: pv1(t - 1)
    if t + 1 < 64:
        a("s_mov_b64 exec, s[92:93]")
        a(f"ds_read_b128 v[{vbp}:{vbp+3}], {vVA} offset:{koff(t+1)}")
        a(f"ds_read_b128 v[{vbp+4}:{vbp+7}], {vVA} offset:{koff(t+1)+512}")
        a("s_mov_b64 exec, -1")
        n += 2
    for i in range(6, 8): E(i)
    for i in range(4): Cv(i)
    for i in range(8, 11): E(i)
    a(f"s_waitcnt lgkmcnt({n})")
    c = "0" if first else f"v[{O_}:{O_+15}]"
    a(f"v_mfma_f32_32x32x16_bf16 v[{O_}:{O_+15}], v[{vb}:{vb+3}], v[{P_}:{P_+3}], {c}")
    for i in range(11, 16): E(i)
    for i in range(4, 8): Cv(i)

def aw_loop():
    PRIO = [int(c) for c in ENV("PRIO", "22221110")]
    for t in range(64):
        if t % 8 == 5 and 8 < t < 61:
            a(f"s_barrier   ; b{t//8+1}")
        ph = (t - 5) % 8
        if t == 0 or PRIO[ph] != PRIO[(ph - 1) % 8]: a(f"s_setprio {PRIO[ph]}")
        tile(t)
        if t % 16 == 15: stamp(37 + t // 16)
    a.fence(2)
    pv1(63)
    a(f"""
v_bfe_u32 v14, v1, 2, 3
v_lshlrev_b32 v14, 10, v14
v_and_b32 v11, 3, v1
v_lshlrev_b32 v11, 5, v11
v_lshrrev_b32 v15, 5, v1
v_lshlrev_b32 v15, 4, v15
v_add3_u32 v11, v11, v14, v15
s_lshl_b32 s51, {S_WAVE}, 3
s_add_u32 s51, s51, {S_P0}
s_lshl_b32 s51, s51, 10
s_lshl_b32 s49, {S_HG}, 7
s_add_u32 s51, s51, s49
s_add_u32 s51, s51, {WS_OB}
s_waitcnt vmcnt(0)
v_sub_f32 v13, 1.0, v10
s_mov_b32 s48, 0x17800000
v_cmp_nle_f32 vcc, s48, v{O_+8}
s_cbranch_vccz L_fb_done
v_and_b32 v3, 0x1fff, {vVA}
v_mov_b32 v12, {f32(-3.0e38)}
s_mov_b32 s48, 0
L_fb1:
s_lshr_b32 s49, s48, 3
s_lshl_b32 s49, s49, 14
s_and_b32 s50, s48, 7
s_lshl_b32 s50, s50, 10
s_add_u32 s49, s49, s50
buffer_load_dwordx4 v[{KF}:{KF+3}], {vL16}, {SRD_WS}, s49 offen sc1
s_waitcnt vmcnt(0)
v_mfma_f32_32x32x16_bf16 v[{SA}:{SA+15}], v[{KF}:{KF+3}], v[4:7], 0
""")
    for i in range(8): a(f"v_max3_f32 v12, v12, v{SA+2*i}, v{SA+2*i+1}")
    a(f"""
s_add_u32 s48, s48, 1
s_cmp_lt_u32 s48, 64
s_cbranch_scc1 L_fb1
v_mov_b32 v2, v12
v_permlane32_swap_b32 v12, v2
v_max_f32 v12, v12, v2
v_sub_f32 v{C_}, 0, v12
""")
    for i in range(1, 16): a(f"v_mov_b32 v{C_+i}, v{C_}")
    for i in range(16): a(f"v_mov_b32 v{O_+i}, 0")
    a(f"""
s_mov_b32 s48, 0
L_fb2:
s_lshr_b32 s49, s48, 3
s_lshl_b32 s49, s49, 14
s_and_b32 s50, s48, 7
s_lshl_b32 s50, s50, 10
s_add_u32 s49, s49, s50
s_add_u32 s50, s49, 8192
buffer_load_dwordx4 v[{KF}:{KF+3}], {vL16}, {SRD_WS}, s49 offen sc1
s_mov_b64 exec, s[92:93]
buffer_load_dwordx4 v[{VF}:{VF+3}], v3, {SRD_WS}, s50 offen sc1
buffer_load_dwordx4 v[{VF+4}:{VF+7}], v3, {SRD_WS}, s50 offen offset:512 sc1
s_mov_b64 exec, -1
s_waitcnt vmcnt(0)
v_mfma_f32_32x32x16_bf16 v[{SA}:{SA+15}], v[{KF}:{KF+3}], v[4:7], v[{C_}:{C_+15}]
""")
    for i in range(16): a(f"v_exp_f32 v{SA+i}, v{SA+i}")
    for i in range(8): a(f"v_cvt_pk_bf16_f32 v{P_+i}, v{SA+2*i}, v{SA+2*i+1}")
    a(f"""
v_mfma_f32_32x32x16_bf16 v[{O_}:{O_+15}], v[{VF}:{VF+3}], v[{P_}:{P_+3}], v[{O_}:{O_+15}]
v_mfma_f32_32x32x16_bf16 v[{O_}:{O_+15}], v[{VF+4}:{VF+7}], v[{P_+4}:{P_+7}], v[{O_}:{O_+15}]
s_add_u32 s48, s48, 1
s_cmp_lt_u32 s48, 64
s_cbranch_scc1 L_fb2
""")
    a.fence(12)
    a(f"""
L_fb_done:
v_rcp_f32 v12, v{O_+8}
v_mul_f32 v12, v12, v13
""")
    for i in range(8): a(f"v_mul_f32 v{O_+i}, v{O_+i}, v12")
    for i in range(4): a(f"v_cvt_pk_bf16_f32 v{P_+i}, v{O_+2*i}, v{O_+2*i+1}")
    a(f"buffer_store_dwordx4 v[{P_}:{P_+3}], v11, {SRD_WS}, s51 offen {ENV('TST', 'sc1')}")
    stamp(41)
    if ENV("BEND", "1") == "1": a("s_barrier   ; B_end")
    prof_dump("a")
    a("s_endpgm")

GACC = lambda i: 64 + 16 * i
GW = lambda buf, i: (32 + 8 * buf + 4 * i) if i < 2 else (128 + 8 * buf + 4 * (i - 2))
HX3 = lambda buf: 144 + 4 * buf
def x_instr(vm, kb, rel, tag):
    a(f"s_add_u32 m0, {'s91' if rel == 4 else 's%d' % (56+rel)}, {kb*XBLK}")
    a(f"s_add_u32 s95, {'s99' if rel == 4 else 's%d' % (60+rel)}, s{52+kb}")
    a(f"buffer_load_dwordx4 {vXP}, {SRD_X}, s95 offen lds")
    vm.issue(tag)
def gpf(g, w3, vm):
    if ENV("GPF", "0") != "1": return
    for st in range(2 if w3 else 1):
        for i in range(2):
            a(f"s_add_u32 s95, s{64+g}, {i*64*3072 + st*1024}")
            a(f"buffer_load_dword v28, v23, {SRD_W}, s95 offen")
            vm.issue("pf")
def gdma(n, w3, vm):
    slot = n % 3
    for st in range(2 if w3 else 1):
        for i in range(2):
            a(f"s_add_u32 m0, s89, {L_PR[slot] + st*2048 + i*1024}")
            a(f"s_add_u32 s95, s{64 + (n >> 3)}, {(16*(n&7) + 8*i)*3072 + st*1024}")
            a(f"buffer_load_dwordx4 {vWP}, {SRD_W}, s95 offen lds")
            vm.issue(f"g{n}")
def gstep(n, w3, vm):
    slot = n % 3; buf = n & 1
    if n < 32:
        vm.wait(f"g{n}")
        for st in range(2 if w3 else 1):
            for nt in range(2):
                r = GW(buf, 2 * st + nt)
                for half in range(2):
                    a(f"ds_read_b64_tr_b16 v[{r+2*half}:{r+2*half+1}], v{25+nt} offset:{L_PR[slot] - L_PR[2] + st*2048 + half*512}")
        a(f"v_xor_b32 v27, {32*(n&7)}, v24")
        if w3:
            a(f"ds_read_b128 v[{HX3(buf)}:{HX3(buf)+3}], v27 offset:{(n>>3)*XBLK}")
        else:
            for mt in range(2):
                r = GW(buf, 2 + mt)
                a(f"ds_read_b128 v[{r}:{r+3}], v27 offset:{(n>>3)*XBLK + mt*8192 if (n>>3) < 3 else mt*8192}")
    if n > 0:
        m = n - 1; b = m & 1
        a(f"s_waitcnt lgkmcnt({0 if n >= 32 else (9 if w3 else 6)})")
        PM = ENV("PM", "0")
        if PM == "0" and 1 <= n and n + 2 < 32: gdma(n + 2, w3, vm)
        if PM != "0": a("s_setprio 3")
        for i in range(4):
            d = GACC(i)
            c = "0" if m == 0 else f"v[{d}:{d+15}]"
            wv, xv = (GW(b, i), HX3(b)) if w3 else (GW(b, i >> 1), GW(b, 2 + (i & 1)))
            a(f"v_mfma_f32_32x32x16_bf16 v[{d}:{d+15}], v[{wv}:{wv+3}], v[{xv}:{xv+3}], {c}")
        if PM != "0":
            a("s_setprio 0")
            if 1 <= n and n + 2 < 32: gdma(n + 2, w3, vm)
    if n == 23 and not w3: a(f"v_add_u32 v24, {3*XBLK}, v24")
def kv_dma4(sc, vm=None):
    a(f"s_add_u32 s95, s94, {sc*16384}\ns_and_b32 s95, s95, 0x1ffff\ns_add_u32 s95, s95, s96")
    for i in range(4):
        a(f"s_add_u32 m0, s96, {L_KV + (sc%3)*16384}")
        a("s_nop 0")
        a(f"buffer_load_dwordx4 {vL16}, {SRD_WS}, s95 offen offset:{i*1024} sc1 lds")
        if vm: vm.issue(f"kv{sc}")

def kv_final():
    a(f"""
s_cmp_lg_u32 {S_A}, 3
s_cbranch_scc1 L_kvf_done
v_lshlrev_b32 v65, 2, v1
ds_read_b128 v[68:71], {vL16} offset:{SCR_D}
ds_read_b128 v[72:75], {vL16} offset:{SCR_D+1024}
ds_read_b128 v[76:79], {vL16} offset:{SCR_D+2048}
ds_read_b128 v[80:83], {vL16} offset:{SCR_D+3072}
ds_read_b32 v84, v65 offset:{SCR_G}
ds_read_b32 v85, v65 offset:{SCR_G+256}
ds_read_b32 v86, v65 offset:{SCR_G+512}
ds_read_b32 v87, v65 offset:{SCR_G+768}
s_lshl_b32 s48, {S_PB}, 1
s_lshr_b32 s49, {S_U4}, 1
s_add_u32 s48, s48, s49
s_lshr_b32 s49, s48, 3
s_lshl_b32 s49, s49, 14
s_and_b32 s51, s48, 7
s_lshl_b32 s51, s51, 10
s_add_u32 s49, s49, s51
s_and_b32 s50, {S_U4}, 1
v_and_b32 v66, 15, v1
v_bfe_u32 v67, v1, 4, 1
v_lshlrev_b32 v64, 4, v66
v_lshrrev_b32 v65, 5, v1
v_lshlrev_b32 v65, 3, v65
v_add_u32 v65, v65, v64
s_waitcnt lgkmcnt(4)
""")
    for r in range(4):
        a(f"v_add_f32 v{68+r}, v{68+r}, v{72+r}")
        a(f"v_add_f32 v{76+r}, v{76+r}, v{80+r}")
    for r in range(4): a(f"v_add_f32 v{68+r}, v{68+r}, v{76+r}")
    a(f"""
s_cmp_ge_u32 {S_HG}, 4
s_cbranch_scc1 L_kvf_V
s_lshl_b32 s51, s50, 8
s_add_u32 s49, s49, s51
v_lshlrev_b32 v67, 9, v67
v_add_u32 v67, v67, v65
s_mov_b32 s51, {f32(QSCALE)}
v_mul_f32 v68, s51, v68
v_mul_f32 v69, s51, v69
v_mul_f32 v70, s51, v70
v_mul_f32 v71, s51, v71
v_cvt_pk_bf16_f32 v72, v68, v69
v_cvt_pk_bf16_f32 v73, v70, v71
buffer_store_dwordx2 v[72:73], v67, {SRD_WS}, s49 offen sc1
v_mul_f32 v76, v68, v68
v_fmac_f32 v76, v69, v69
v_fmac_f32 v76, v70, v70
v_fmac_f32 v76, v71, v71
v_mov_b32 v77, v76
v_permlane32_swap_b32 v76, v77
v_add_f32 v76, v76, v77
v_mov_b32 v77, v76
v_permlane16_swap_b32 v76, v77
v_add_f32 v76, v76, v77
v_max_f32_dpp v76, v76, v76 row_ror:8 row_mask:0xf bank_mask:0xf
v_max_f32_dpp v76, v76, v76 row_ror:4 row_mask:0xf bank_mask:0xf
v_max_f32_dpp v76, v76, v76 row_ror:2 row_mask:0xf bank_mask:0xf
v_max_f32_dpp v76, v76, v76 row_ror:1 row_mask:0xf bank_mask:0xf
s_lshl_b32 s48, {S_PB}, 2
s_add_u32 s48, s48, {S_U4}
s_lshl_b32 s48, s48, 2
s_add_u32 s48, s48, {WS_KN}
v_mov_b32 v77, s48
s_mov_b64 exec, 1
buffer_store_dword v76, v77, {SRD_WS}, 0 offen sc1
s_mov_b64 exec, -1
s_branch L_kvf_done
L_kvf_V:
s_lshl_b32 s51, s50, 9
s_add_u32 s49, s49, s51
s_add_u32 s49, s49, 8192
v_lshlrev_b32 v67, 8, v67
v_add_u32 v67, v67, v65
v_cvt_pk_bf16_f32 v72, v68, v69
v_cvt_pk_bf16_f32 v73, v70, v71
buffer_store_dwordx2 v[72:73], v67, {SRD_WS}, s49 offen sc1
s_waitcnt lgkmcnt(0)
v_add_f32 v84, v84, v85
v_add_f32 v86, v86, v87
v_add_f32 v84, v84, v86
v_mul_f32 v84, {f32(-LOG2E)}, v84
v_exp_f32 v84, v84
v_add_f32 v84, 1.0, v84
v_rcp_f32 v84, v84
s_lshl_b32 s48, {S_PB}, 2
s_add_u32 s48, s48, {S_U4}
s_lshl_b32 s48, s48, 7
v_lshlrev_b32 v77, 2, v66
s_add_u32 s49, s48, {WS_G}
s_mov_b64 exec, 0xffff
buffer_store_dword v84, v77, {SRD_WS}, s49 offen sc1
s_mov_b64 exec, -1
L_kvf_done:
""")
    a.fence(2)


def sw_setup():
    a(f"""
s_lshl_b32 s78, {S_A}, 14
s_add_u32 s78, s78, 49152
s_cmp_eq_u32 {S_A}, 3
s_cselect_b32 s78, 131072, s78
v_and_b32 v10, 15, v1
v_lshrrev_b32 v11, 4, v1
s_lshl_b32 s49, {S_A}, 9
s_add_u32 s50, s49, {L_T + 4*2560}
v_lshlrev_b32 v12, 6, v10
v_lshlrev_b32 v13, 4, v11
v_add3_u32 v152, v12, v13, s50
s_add_u32 s50, s49, {L_T + 512}
v_lshlrev_b32 v12, 5, v10
v_and_b32 v13, 1, v11
v_lshlrev_b32 v13, 4, v13
v_add3_u32 v153, v12, v13, s50
s_add_u32 s50, s49, {L_T + 8*2560}
v_bfe_u32 v12, v1, 2, 2
v_lshlrev_b32 v12, 6, v12
v_lshlrev_b32 v13, 8, v11
v_and_b32 v14, 3, v1
v_lshlrev_b32 v14, 3, v14
v_add3_u32 v154, v12, v13, v14
v_add_u32 v154, s50, v154
v_lshlrev_b32 v12, 7, v10
v_lshlrev_b32 v13, 3, v11
v_add3_u32 v155, v12, v13, s78
s_mov_b32 s80, 0x55555555
s_mov_b32 s81, 0xaaaaaaaa
s_mov_b32 s82, 0x55555555
s_mov_b32 s83, 0x55555555
s_mov_b32 s84, 0xaaaaaaaa
s_mov_b32 s85, 0xaaaaaaaa
v_lshrrev_b32 v12, 1, v10
v_lshlrev_b32 v13, 2, v11
v_sub_u32 v14, v13, v12
v_mov_b32 v15, {f32(-1e30)}
s_add_u32 s50, {S_PB}, {S_A}
s_cmp_eq_u32 s50, 0
s_cselect_b32 s50, 8, 0
""")
    for r in range(4):
        a(f"""
v_add_u32 v12, {r-1}, v14
v_add_u32 v6, {r}, v13
v_cmp_gt_u32 vcc, 8, v12
v_cmp_le_u32 s[48:49], s50, v6
v_cndmask_b32 v{156+r}, v15, 0, vcc
v_cndmask_b32 v{156+r}, v15, v{156+r}, s[48:49]
""")
    for i in range(4): a(f"v_mov_b32 v{160+i}, 0x3f803f80")
    for i in range(16): a(f"v_mov_b32 v{48+i}, 0")
    a(f"""
v_lshrrev_b32 v8, 3, v1
v_and_b32 v9, 7, v1
v_lshlrev_b32 v9, 4, v9
v_lshlrev_b32 v8, 10, v8
v_add_u32 v164, v8, v9
v_lshrrev_b32 v8, 4, {vJ}
v_lshlrev_b32 v8, 7, v8
v_and_b32 v9, 15, v1
v_lshlrev_b32 v9, 2, v9
v_add_u32 v165, v8, v9
v_add_u32 v166, s78, {vL16}
s_lshl_b32 s48, {S_A}, 4
s_add_u32 s48, s48, {S_P0}
s_lshl_b32 s48, s48, 10
s_lshl_b32 s49, {S_HG}, 7
s_add_u32 s74, s48, s49
s_lshl_b32 s75, {S_PB}, 9
s_add_u32 s75, s75, {WS_G}
s_lshl_b32 s79, {S_A}, 17
v_and_b32 v12, 1, v11
v_lshrrev_b32 v13, 1, v11
v_bfe_u32 v14, v1, 2, 2
v_lshlrev_b32 v13, 2, v13
v_add_u32 v13, v13, v14
v_lshlrev_b32 v13, 7, v13
v_lshrrev_b32 v14, 1, v14
v_lshlrev_b32 v14, 6, v14
v_lshlrev_b32 v12, 5, v12
v_add3_u32 v14, v14, v13, v12
v_and_b32 v12, 3, v1
v_lshlrev_b32 v12, 3, v12
v_add3_u32 v2, v14, v12, s78
v_xor_b32 v3, 64, v2
v_lshrrev_b32 v12, 1, {vJ}
v_and_b32 v13, 1, {vJ}
v_lshlrev_b32 v13, 3, v13
v_lshrrev_b32 v14, 5, v1
v_or_b32 v13, v13, v14
v_xor_b32 v13, v13, v12
v_lshlrev_b32 v13, 4, v13
v_lshlrev_b32 v12, 8, v12
v_add3_u32 v4, v12, v13, s78
v_xor_b32 v5, 32, v4
v_xor_b32 v6, 64, v4
v_xor_b32 v7, 96, v4
""")
    for n4 in range(4):
        a(f"""
v_add_u32 v12, {4*n4}, v11
v_xor_b32 v13, v10, v12
v_lshlrev_b32 v12, 1, v12
v_lshrrev_b32 v14, 3, v13
v_add_u32 v12, v12, v14
v_lshlrev_b32 v12, 10, v12
v_and_b32 v13, 7, v13
v_lshlrev_b32 v13, 4, v13
v_add_u32 v{20+n4}, v12, v13
""")
    a(f"""
v_and_b32 v12, 1, v1
s_lshl_b32 s48, {S_PB}, 3
s_lshl_b32 s49, {S_A}, 1
s_add_u32 s48, s48, s49
v_add_u32 v28, s48, v12
v_lshlrev_b32 v28, 7, v28
s_lshl_b32 s86, {S_P0}, 10
s_lshl_b32 s48, {S_A}, 8
s_add_u32 s86, s86, s48
v_lshrrev_b32 v9, 5, v1
v_lshlrev_b32 v8, 5, {vJ}
v_lshlrev_b32 v9, 4, v9
s_mul_i32 s49, {S_A}, 10240
s_add_u32 s49, s49, {L_T + 512}
s_cmp_eq_u32 {S_A}, 3
s_cselect_b32 s49, {L_T + 10240}, s49
v_add3_u32 v167, v8, v9, s49
""")

def sw_phase1():
    a("L_sw:")
    a.fence(2)
    vm = VM(a)
    for kb in range(4):
        x_instr(vm, kb, 0, "KV")
        a(f"s_add_u32 m0, s96, {L_WK}")
        a("s_nop 0")
        a(f"buffer_load_dwordx4 {vL16}, {SRD_WK}, s96 offen offset:{kb*1024} lds")
        vm.issue("KV")
    a(f"""
s_mov_b32 s72, 3072
s_lshl_b32 s48, {S_A}, 10
s_cmp_eq_u32 {S_A}, 3
s_cselect_b32 s12, s44, s12
s_cselect_b32 s13, s45, s13
s_cselect_b32 s14, s46, s14
s_cselect_b32 s72, 1024, s72
s_cselect_b32 s48, 0, s48
v_lshrrev_b32 v10, 3, v1
v_and_b32 v11, 7, v1
v_bfe_u32 v12, v1, 4, 1
v_lshlrev_b32 v12, 2, v12
v_xor_b32 v11, v11, v12
v_lshlrev_b32 v11, 4, v11
s_lshl_b32 s51, {S_HG}, 7
v_lshlrev_b32 v12, 10, v10
v_add3_u32 {vWQP}, v12, v11, s51
v_mul_lo_u32 v12, v10, s72
s_add_u32 s48, s48, s51
v_add3_u32 {vWP}, v12, v11, s48
s_lshl_b32 s71, s72, 3
s_add_u32 s89, s96, {L_RING}
""")
    def issue_w(s):
        slot = s & 3
        if s % 4 == 0:
            a(f"s_lshr_b32 s70, s72, 1\ns_mul_i32 s70, s70, s{52 + s // 4}\ns_sub_u32 s70, s70, s71")
        for i in range(4):
            a(f"s_add_u32 m0, s89, {slot*16384 + i*1024}")
            a("s_add_u32 s70, s70, s71")
            a(f"buffer_load_dwordx4 {vWP}, {SRD_W}, s70 offen lds")
            vm.issue(f"S{s}")
    for rel in (1, 2, 3, 4): x_instr(vm, 0, rel, "S0")
    issue_w(0)
    a(f"""
s_cmp_lg_u32 {S_A}, 3
s_cbranch_scc1 L_sw_norst
s_lshl_b32 s48, s88, 7
s_add_u32 s48, s48, {WS_FL}
v_mov_b32 v8, s48
v_mov_b32 v10, 0
v_mov_b32 v11, 0
s_mov_b64 exec, 1
buffer_store_dwordx2 v[10:11], v8, {SRD_WS}, 0 offen offset:4 sc1
s_mov_b64 exec, -1
L_sw_norst:
""")
    sw_setup()
    vm.wait("KV")
    stamp(3)
    a("s_barrier   ; B_kv")
    issue_w(1); issue_w(2)
    a(f"""
v_and_b32 v24, 3, v1
v_lshlrev_b32 v24, 6, v24
v_mov_b32 v25, {L_GO}
""")
    def c0():
        a(f"s_lshl_b32 s49, {S_A}, 13")
        for hf in range(2):
            a(f"s_add_u32 s95, s49, s94\ns_add_u32 s95, s95, {hf*4096}\ns_and_b32 s95, s95, 0x1ffff")
            for i in range(4):
                a(f"s_add_u32 m0, s49, {L_KV + hf*4096}")
                a("s_nop 0")
                a(f"buffer_load_dwordx4 {vL16}, {SRD_WS}, s95 offen offset:{i*1024} sc1 lds")
        a(f"v_lshlrev_b32 v8, 3, v1\ns_mov_b32 s48, {WS_KN}\nbuffer_load_dwordx2 v[26:27], v8, {SRD_WS}, s48 offen sc1")
    for s in range(16):
        if s >= 14:
            n = 4 * (15 - s)
            a(f"s_cmp_eq_u32 s69, 1\ns_cbranch_scc1 L_sw_w{s}\ns_waitcnt vmcnt({n})\nL_sw_w{s}:\ns_waitcnt vmcnt({n + 9})")
        else:
            vm.wait(f"S{s}")
        if s == 13:
            a(f"""
s_cmp_lg_u32 {S_A}, 0
s_cbranch_scc1 L_sw_nogo
v_cmp_gt_u32 vcc, 64, v9
s_cmp_eq_u64 vcc, 0
s_cselect_b32 s48, 1, 0
v_mov_b32 v9, s48
ds_write_b32 v25, v9
s_waitcnt lgkmcnt(0)
L_sw_nogo:
""")
        a(f"s_barrier   ; B_{s}")
        if s == 10:
            a(f"s_cmp_lg_u32 {S_A}, 0\ns_cbranch_scc1 L_sw_nopoll\nbuffer_load_dword v9, v24, {SRD_DBG}, 0 offen sc1\nL_sw_nopoll:")
        if s == 0: kv_final(); issue_w(3)
        if 1 <= s and s + 3 < 16: issue_w(s + 3)
        if s == 13:
            a("ds_read_b32 v9, v25\ns_waitcnt lgkmcnt(0)\nv_readfirstlane_b32 s69, v9\ns_cmp_eq_u32 s69, 1\ns_cbranch_scc0 L_sw_noearly")
            c0()
            a("L_sw_noearly:")
    a(f"""
s_cmp_eq_u32 s69, 1
s_cbranch_scc1 L_sw_have
s_mov_b32 s50, 0
L_poll_go:
buffer_load_dword v9, v24, {SRD_DBG}, 0 offen sc1
s_add_u32 s50, s50, 1
s_waitcnt vmcnt(0)
v_cmp_gt_u32 vcc, 64, v9
s_cmp_ge_u32 s50, {SPIN_MAX}
s_cbranch_scc1 L_poll_go_done
s_cbranch_vccz L_poll_go_done
s_sleep 8
s_branch L_poll_go
L_poll_go_done:
""")
    c0()
    a(f"""
L_sw_have:
s_waitcnt vmcnt(0)
v_max_f32 v26, v26, v27
v_mov_b32 v27, v26
v_permlane32_swap_b32 v26, v27
v_max_f32 v26, v26, v27
v_mov_b32 v27, v26
v_permlane16_swap_b32 v26, v27
v_max_f32 v26, v26, v27
v_max_f32_dpp v26, v26, v26 row_ror:8 row_mask:0xf bank_mask:0xf
v_max_f32_dpp v26, v26, v26 row_ror:4 row_mask:0xf bank_mask:0xf
v_max_f32_dpp v26, v26, v26 row_ror:2 row_mask:0xf bank_mask:0xf
v_max_f32_dpp v26, v26, v26 row_ror:1 row_mask:0xf bank_mask:0xf
v_mov_b32 v27, {L_KMAX}
ds_write_b32 v27, v26
s_waitcnt lgkmcnt(0)
s_setprio {ENV('SWP0', '3')}
""")
    stamp(30)
    a("s_barrier   ; B_e")
    kv_dma4(2)

def sw_post():
    a.comment("---- SW: A attention (u = a), two rounds of 2 heads")
    KR = lambda u: 32 + 4 * u
    QR = lambda u: 48 + 4 * u
    PRr = lambda u: 56 + 4 * u
    VR = lambda u: 64 + 4 * u
    SR = lambda u: 72 + 4 * u
    OR = lambda u: 80 + 4 * u
    LR = lambda u: 88 + 4 * u
    MX = lambda u: 96 + 2 * u
    a(f"s_mov_b32 s51, {f32(QSCALE)}")
    if ENV("PM", "0") != "0": a("s_setprio 3")
    for rnd in range(2):
        U = range(2)
        for u in U: a(f"ds_read_b128 v[{KR(u)}:{KR(u)+3}], v152 offset:{(2*rnd+u)*2560}")
        a("s_mov_b64 exec, s[80:81]")
        for u in U: a(f"ds_read_b128 v[{QR(u)}:{QR(u)+3}], v153 offset:{(2*rnd+u)*2560}")
        a("s_mov_b64 exec, -1")
        for u in U:
            a(f"ds_read_b64_tr_b16 v[{VR(u)}:{VR(u)+1}], v154 offset:{(2*rnd+u)*2560}")
            a(f"ds_read_b64_tr_b16 v[{VR(u)+2}:{VR(u)+3}], v154 offset:{(2*rnd+u)*2560+32}")
        a("s_waitcnt lgkmcnt(4)")
        for u in U: a(f"v_mfma_f32_16x16x32_bf16 v[{SR(u)}:{SR(u)+3}], v[{KR(u)}:{KR(u)+3}], v[{QR(u)}:{QR(u)+3}], v[156:159]")
        for u in U:
            s = SR(u); m = MX(u)
            a(f"v_max3_f32 v{m}, v{s}, v{s+1}, v{s+2}"); a(f"v_max_f32 v{m}, v{m}, v{s+3}"); a(f"v_mov_b32 v{m+1}, v{m}")
        for u in U: a(f"v_permlane32_swap_b32 v{MX(u)}, v{MX(u)+1}")
        for u in U: m = MX(u); a(f"v_max_f32 v{m}, v{m}, v{m+1}"); a(f"v_mov_b32 v{m+1}, v{m}")
        for u in U: a(f"v_permlane16_swap_b32 v{MX(u)}, v{MX(u)+1}")
        for u in U: m = MX(u); a(f"v_max_f32 v{m}, v{m}, v{m+1}"); a(f"v_mul_f32 v{m}, s51, v{m}")
        for u in U:
            for r in range(4): a(f"v_fma_f32 v{SR(u)+r}, v{SR(u)+r}, s51, -v{MX(u)}")
        for u in U:
            for r in range(4): a(f"v_exp_f32 v{SR(u)+r}, v{SR(u)+r}")
        a("s_mov_b64 exec, s[82:83]")
        for u in U:
            s = SR(u); p = PRr(u); a(f"v_cvt_pk_bf16_f32 v{p}, v{s}, v{s+1}"); a(f"v_cvt_pk_bf16_f32 v{p+1}, v{s+2}, v{s+3}")
        a("s_mov_b64 exec, s[84:85]")
        for u in U:
            s = SR(u); p = PRr(u); a(f"v_cvt_pk_bf16_f32 v{p+2}, v{s}, v{s+1}"); a(f"v_cvt_pk_bf16_f32 v{p+3}, v{s+2}, v{s+3}")
        a("s_mov_b64 exec, -1\ns_waitcnt lgkmcnt(0)")
        for u in U: a(f"v_mfma_f32_16x16x32_bf16 v[{LR(u)}:{LR(u)+3}], v[160:163], v[{PRr(u)}:{PRr(u)+3}], 0")
        for u in U: a(f"v_mfma_f32_16x16x32_bf16 v[{OR(u)}:{OR(u)+3}], v[{VR(u)}:{VR(u)+3}], v[{PRr(u)}:{PRr(u)+3}], 0")
        for u in U: a(f"v_rcp_f32 v{LR(u)}, v{LR(u)}")
        for u in U:
            o = OR(u)
            for r in range(4): a(f"v_mul_f32 v{o+r}, v{o+r}, v{LR(u)}")
            a(f"v_cvt_pk_bf16_f32 v{o}, v{o}, v{o+1}"); a(f"v_cvt_pk_bf16_f32 v{o+1}, v{o+2}, v{o+3}")
            a(f"ds_write_b64 v155, v[{o}:{o+1}] offset:{(2*rnd+u)*32}")
    if ENV("PM", "0") != "0": a("s_setprio 0")
    a(f"""
s_waitcnt lgkmcnt(0)
ds_read_b128 v[32:35], v166
ds_read_b128 v[36:39], v166 offset:1024
s_add_u32 s49, s74, {WS_OB}
s_add_u32 s50, s74, {WS_OB + 8192}
s_add_u32 s51, s74, {WS_OA + 8192}
s_add_u32 s48, s74, {WS_OA}
v_mov_b32 v40, -1
v_mov_b32 v41, -1
v_mov_b32 v42, -1
v_mov_b32 v43, -1
buffer_store_dwordx4 v[40:43], v164, {SRD_WS}, s49 offen sc1
buffer_store_dwordx4 v[40:43], v164, {SRD_WS}, s50 offen sc1
s_waitcnt lgkmcnt(0)
buffer_store_dwordx4 v[32:35], v164, {SRD_WS}, s48 offen sc1
buffer_store_dwordx4 v[36:39], v164, {SRD_WS}, s51 offen sc1
buffer_load_dword v24, v165, {SRD_WS}, s75 offen sc1
buffer_load_dword v25, v165, {SRD_WS}, s75 offen offset:256 sc1
v_mov_b32 v26, v166
s_waitcnt vmcnt(6)
""")
    def wq_dma(srdw, r0, nrows, dst_off):
        for i in range(nrows // 8):
            a(f"s_add_u32 m0, s78, {dst_off + i*1024}")
            a(f"s_add_u32 s95, s79, {(r0 + 8*i)*1024}")
            a(f"buffer_load_dwordx4 {vWQP}, {srdw}, s95 offen lds")
    stamp(46)
    a(f"s_setprio {ENV('SWP', '3')}")
    a("s_barrier   ; b2")
    kv_dma4(3)
    wq_dma(SRD_BWO, 0, 128, 0)
    a("s_waitcnt vmcnt(16)")
    a("s_barrier   ; b3")
    a(f"""
s_cmp_lg_u32 {S_A}, 0
s_cbranch_scc1 L_nopub
s_lshl_b32 s48, s88, 7
s_add_u32 s48, s48, {WS_FL + 4}
v_mov_b32 v12, s48
v_mov_b32 v13, 1
s_mov_b64 exec, 1
buffer_store_dword v13, v12, {SRD_WS}, 0 offen sc1
s_mov_b64 exec, -1
L_nopub:
""")
    kv_dma4(4)
    a("s_waitcnt vmcnt(4)")
    BW = lambda kk, nt: 100 + 8 * kk + 4 * nt
    OACC = lambda i: 36 + 16 * i
    for kk in range(8):
        for nt in range(2):
            for half in range(2):
                r = BW(kk, nt) + 2 * half
                a(f"ds_read_b64_tr_b16 v[{r}:{r+1}], v{2+nt} offset:{kk*2048 + half*1024}")
        if kk % 2 == 1: a("s_waitcnt lgkmcnt(0)")
    wq_dma(SRD_AWO, 0, 64, 0)
    a("s_waitcnt vmcnt(8)")
    a("s_barrier   ; b4")
    kv_dma4(5)
    a(f"""
s_mov_b32 s49, 0
s_mov_b32 s50, {WS_FL + 4}
L_ap_poll:
buffer_load_dword v12, v28, {SRD_WS}, s50 offen sc1
s_add_u32 s49, s49, 1
s_waitcnt vmcnt(0)
v_cmp_ne_u32 vcc, 1, v12
s_cmp_ge_u32 s49, {SPIN_MAX}
s_cbranch_scc1 L_ap_go
s_cbranch_vccz L_ap_go
s_sleep 4
s_branch L_ap_poll
L_ap_go:
""")
    def o_dma(base, blk, dst=8192, fl=None):
        for n in range(8):
            a(f"s_add_u32 m0, s78, {dst + n*1024}")
            a(f"s_add_u32 s95, s86, {base + blk*128 + (n>>2)*32768}")
            a(f"buffer_load_dwordx4 v{20+(n&3)}, {SRD_WS}, s95 offen {fl if fl is not None else 'sc1'} lds")
    TW = lambda j, nt: 8 + 4 * nt if False else None
    def apiece(first):
        for j in range(4):
            for nt in range(2):
                for half in range(2):
                    r = 8 + 4 * nt + 2 * half
                    a(f"ds_read_b64_tr_b16 v[{r}:{r+1}], v{2+nt} offset:{j*2048 + half*1024}")
            a(f"ds_read_b128 v[32:35], v{4+j} offset:8192")
            a(f"ds_read_b128 v[{TMPO}:{TMPO+3}], v{4+j} offset:{8192+4096}")
            a("s_waitcnt lgkmcnt(0)")
            for nt in range(2):
                for mi in range(2):
                    d = OACC(2 * nt + mi); c = "0" if (first and j == 0) else f"v[{d}:{d+15}]"
                    o = 32 if mi == 0 else TMPO
                    a(f"v_mfma_f32_32x32x16_bf16 v[{d}:{d+15}], v[{8+4*nt}:{11+4*nt}], v[{o}:{o+3}], {c}")
    o_dma(WS_OA, 0)
    stamp(47)
    a("s_barrier   ; b5")
    kv_dma4(6)
    a("s_waitcnt vmcnt(4)")
    if ENV("PM", "0") != "0": a("s_setprio 3")
    apiece(True)
    if ENV("PM", "0") != "0": a("s_setprio 0")
    wq_dma(SRD_AWO, 64, 64, 0)
    o_dma(WS_OA, 1)
    a("s_waitcnt vmcnt(16)")
    a("s_barrier   ; b6")
    kv_dma4(7)
    a("s_waitcnt vmcnt(0)")
    a("s_barrier   ; b7")
    if ENV("FILL", "1") == "1": a("s_barrier   ; B_end")
    apiece(False)
    a.fence(12)
    for i in range(4):
        for r in range(16): a(f"v_mul_f32 v{OACC(i)+r}, v{24 + (i & 1)}, v{OACC(i)+r}")
    if ENV("BEND", "1") == "1" and ENV("FILL", "1") != "1": a("s_barrier   ; B_end")
    stamp(42)
    o_dma(WS_OB, 0, 0, ENV('TL1', 'sc1')); o_dma(WS_OB, 1, 8192, ENV('TL1', 'sc1'))
    for blk in range(2):
        dst = blk * 8192
        a(f"""
s_mov_b32 s49, 0
s_waitcnt vmcnt({8 if blk == 0 else 0})
s_branch L_t{blk}f
L_t{blk}r:
s_sleep {ENV('TSLEEP', '4')}
""")
        o_dma(WS_OB, blk, dst)
        a(f"s_add_u32 s49, s49, 1\ns_waitcnt vmcnt(0)\nL_t{blk}f:")
        for half in range(4):
            a(f"ds_read_b128 v[8:11], v26 offset:{dst + half*2048}")
            a(f"ds_read_b128 v[12:15], v26 offset:{dst + half*2048 + 1024}")
            a("s_waitcnt lgkmcnt(0)")
            a("v_max_u32 v27, v8, v9" if half == 0 else "v_max3_u32 v27, v27, v8, v9")
            a("v_max3_u32 v27, v27, v10, v11\nv_max3_u32 v27, v27, v12, v13\nv_max3_u32 v27, v27, v14, v15")
        a(f"""
v_cmp_eq_u32 vcc, -1, v27
s_cmp_ge_u32 s49, {SPIN_MAX // 4}
s_cbranch_scc1 L_t{blk}g
s_cbranch_vccnz L_t{blk}r
L_t{blk}g:
""")
        regs = [(8, 12), (32, TMPO)]
        def ord_(j):
            r0, r1 = regs[j & 1]
            a(f"ds_read_b128 v[{r0}:{r0+3}], v{4+j} offset:{dst}")
            a(f"ds_read_b128 v[{r1}:{r1+3}], v{4+j} offset:{dst+4096}")
        ord_(0)
        for j in range(4):
            if j + 1 < 4: ord_(j + 1); a("s_waitcnt lgkmcnt(2)")
            else: a("s_waitcnt lgkmcnt(0)")
            for nt in range(2):
                for mi in range(2):
                    d = OACC(2 * nt + mi); o = regs[j & 1][mi]; w = BW(4 * blk + j, nt)
                    a(f"v_mfma_f32_32x32x16_bf16 v[{d}:{d+15}], v[{w}:{w+3}], v[{o}:{o+3}], v[{d}:{d+15}]")
    stamp(43)
    a.fence(12)
    a(f"""
v_add_u32 v8, s75x, {vJ}
""".replace("v_add_u32 v8, s75x, {vJ}".replace("{vJ}", vJ), "s_nop 0"))
    for i in range(4):
        a(f"""
s_cmp_eq_u32 {S_A}, {i}
s_cbranch_scc1 L_rw{i}
s_sub_u32 s48, {S_A}, {i+1}
s_and_b32 s48, s48, 3
s_add_u32 s48, s48, {3*i}
s_lshl_b32 s48, s48, 12
s_add_u32 s48, s48, {L_REDX}
v_add_u32 v8, s48, {vL16}
""")
        for q in range(4): a(f"ds_write_b128 v8, v[{OACC(i)+4*q}:{OACC(i)+4*q+3}] offset:{q*1024}")
        a(f"L_rw{i}:")
    a(f"""
s_mul_i32 s48, {S_A}, 12288
s_add_u32 s48, s48, {L_REDX}
v_add_u32 v8, s48, {vL16}
s_and_b32 s48, {S_A}, 1
s_lshl_b32 s48, s48, 5
s_add_u32 s48, s48, {S_P0}
v_add_u32 v9, s48, {vJ}
v_lshlrev_b32 v9, 10, v9
v_lshrrev_b32 v10, 5, v1
v_lshlrev_b32 v10, 4, v10
v_add_u32 v9, v9, v10
s_lshl_b32 s85, {S_HG}, 7
s_lshr_b32 s49, {S_A}, 1
s_lshl_b32 s49, s49, 6
s_add_u32 s85, s85, s49
s_waitcnt lgkmcnt(0)
s_barrier   ; B_7
""")
    stamp(44)
    for sl in range(3):
        for q in range(4): a(f"ds_read_b128 v[{100+16*sl+4*q}:{103+16*sl+4*q}], v8 offset:{sl*4096 + q*1024}")
    for i in range(4):
        a(f"s_cmp_lg_u32 {S_A}, {i}\ns_cbranch_scc1 L_ow{i}")
        for r in range(16): a(f"v_mov_b32 v{148+r}, v{OACC(i)+r}")
        a(f"L_ow{i}:")
    a("s_waitcnt lgkmcnt(0)")
    for r in range(16):
        a(f"v_add_f32 v{100+r}, v{100+r}, v{116+r}")
        a(f"v_add_f32 v{132+r}, v{132+r}, v{148+r}")
    for r in range(16): a(f"v_add_f32 v{100+r}, v{100+r}, v{132+r}")
    for i in range(8): a(f"v_cvt_pk_bf16_f32 v{48+i}, v{100+2*i}, v{100+2*i+1}")
    a("""
v_permlane32_swap_b32 v48, v50
v_permlane32_swap_b32 v49, v51
v_permlane32_swap_b32 v52, v54
v_permlane32_swap_b32 v53, v55
""")
    a(f"buffer_store_dwordx4 v[48:51], v9, {SRD_OUT}, s85 offen")
    a(f"buffer_store_dwordx4 v[52:55], v9, {SRD_OUT}, s85 offen offset:32")
    stamp(45)
    prof_dump("s")
TMPO = 164

def build():
    here = os.path.dirname(os.path.abspath(__file__))
    a.raw(open(os.path.join(here, "header.txt")).read())
    a.raw(f"; @launch grid=(256,1,1) block=(768,1,1) lds={LDS_BYTES}")
    a.raw('.amdgcn_target "amdgcn-amd-amdhsa--gfx950"\n.text')
    a.raw(f".globl {NAME}_kernel\n.p2align 8\n.type {NAME}_kernel,@function\n{NAME}_kernel:")
    prologue()
    aw_phase1()
    aw_loop()
    sw_phase1()
    sw_post()
    a("L_end:")
    a("s_endpgm")
    a.raw(f""".section .rodata,"a"
.p2align 6
.amdhsa_kernel {NAME}_kernel
  .amdhsa_next_free_vgpr 168
  .amdhsa_next_free_sgpr 102
  .amdhsa_accum_offset 168
  .amdhsa_group_segment_fixed_size 0
  .amdhsa_kernarg_size 96
  .amdhsa_user_sgpr_count 2
  .amdhsa_user_sgpr_kernarg_segment_ptr 1
  .amdhsa_system_sgpr_workgroup_id_x 1
.end_amdhsa_kernel""")
    open(sys.argv[1], "w").write(a.text())
    print("nops inserted:", a.nops, "lines:", len(a.lines))
build()
```

```python
import sys, struct, os
from dsl import Asm, VM

NAME = "gated_mix__sliding_local_dilated__grouped_kv_mqa__prompt"
WS_KV = 0x0
WS_FL = 0x24000
WS_KN = 0x20000
WS_G = 0x2C000
WS_OA = 0x100000
WS_OB = 0x300000
WS_PROF = 0x1C00000
WS_SIZE = 0x2000000
XBLK = 20480
L_RING = 81920
L_WK = 147456
L_KV = 0
L_QB = 147456
L_T = 98304
L_GO = 36864 + 8192
L_KMAX = L_T + 30720
SCR_D = 3 * XBLK
SCR_G = 2 * XBLK
L_REDX = 0
LDS_BYTES = 163840
LOG2E = 1.4426950408889634
QSCALE = 0.25 * LOG2E
SPIN_MAX = 1 << 15
def f32(x): return "0x%08x" % struct.unpack("<I", struct.pack("<f", x))[0]
PROF = len(sys.argv) > 2 and sys.argv[2] == "prof"
OPT = set(sys.argv[3:])
ENV = os.environ.get

a = Asm()
S_WAVE, S_PB, S_HG, S_P0, S_U4, S_A = "s3", "s4", "s5", "s6", "s7", "s90"
SRD_X, SRD_W, SRD_WS, SRD_DBG, SRD_WK, SRD_GT, SRD_AWO, SRD_BWO, SRD_OUT, SRD_WQ = [f"s[{8+4*i}:{11+4*i}]" for i in range(10)]
vL16, vKA, vVA, vJ = "v16", "v17", "v18", "v19"
vWP, vWQP, vXP = "v31", "v30", "v29"
C_, SA, SB, O_, P_, KF, VF = 32, 48, 64, 80, 96, 104, 112
PR = "v0"

def stamp(i):
    if PROF:
        a(f"""s_memtime s[100:101]
s_waitcnt lgkmcnt(0)
v_writelane_b32 {PR}, s100, {i}""")
def prof_dump(lbl):
    if PROF:
        a(f"""v_lshlrev_b32 v2, 2, v1
s_mul_i32 s100, s2, 12
s_add_u32 s100, s100, {S_WAVE}
s_lshl_b32 s100, s100, 8
s_add_u32 s100, s100, {WS_PROF}
buffer_store_dword {PR}, v2, {SRD_WS}, s100 offen
s_waitcnt vmcnt(0)""")
def srd(idx, plo, size):
    b = 8 + 4 * idx
    a(f"""s_mov_b32 s{b}, s{plo}
s_and_b32 s{b+1}, s{plo+1}, 0xffff
s_mov_b32 s{b+2}, {size}
s_mov_b32 s{b+3}, 0x00020000""")

def prologue():
    MAP2 = f"""s_lshl_b32 s50, s48, 2
s_and_b32 s51, s49, 3
s_add_u32 {S_PB}, s50, s51
s_lshr_b32 {S_HG}, s49, 2"""
    a(f"""
s_cmp_ge_u32 s2, 256
s_cbranch_scc1 L_end
s_load_dwordx16 s[64:79], s[0:1], 0
s_load_dwordx8 s[80:87], s[0:1], 64
v_and_b32 v1, 63, v0
v_lshrrev_b32 v2, 6, v0
s_and_b32 s48, s2, 7
s_lshr_b32 s49, s2, 3
v_readfirstlane_b32 {S_WAVE}, v2
s_lshr_b32 s50, s48, 1
s_lshl_b32 s50, s50, 3
s_and_b32 s51, s49, 7
s_add_u32 {S_PB}, s50, s51
s_and_b32 s50, s48, 1
s_lshr_b32 s51, s49, 3
s_lshl_b32 s51, s51, 1
s_add_u32 {S_HG}, s50, s51
{MAP2 if ENV("MAP", "1") == "2" else ""}
s_lshl_b32 {S_P0}, {S_PB}, 6
s_lshl_b32 s88, {S_PB}, 3
s_add_u32 s88, s88, {S_HG}
s_and_b32 {S_A}, {S_WAVE}, 3
s_and_b32 {S_U4}, {S_HG}, 3
s_lshr_b32 s97, {S_HG}, 1
s_add_u32 s97, s97, {S_PB}
s_and_b32 s97, s97, 3
v_lshlrev_b32 {vL16}, 4, v1
v_and_b32 {vJ}, 31, v1
s_and_b32 s94, s49, {7 if ENV("KVROT", "1") == "1" else 0}
s_lshl_b32 s94, s94, 14
s_mov_b32 s92, 0x0000ffff
s_mov_b32 s93, 0x0000ffff
""")
    for g in range(4):
        a(f"""
s_add_u32 s48, s97, {g}
s_and_b32 s48, s48, 3
s_lshl_b32 s{52+g}, s48, 8
""")
    a(f"""
v_lshrrev_b32 v10, 4, v1
v_and_b32 v11, 15, v1
s_lshl_b32 s48, {S_A}, 2
v_add_u32 v12, s48, v10
v_xor_b32 v11, v11, v12
v_lshlrev_b32 v11, 4, v11
v_lshlrev_b32 v10, 10, v10
v_add_u32 {vXP}, v10, v11
s_sub_u32 s49, {S_P0}, 16
s_max_i32 s50, s49, 0
s_add_u32 s49, s49, s48
s_add_u32 s50, s50, s48
s_lshl_b32 s98, s49, 10
s_lshl_b32 s99, s50, 10
s_lshl_b32 s91, {S_A}, 10
s_lshl_b32 s96, {S_A}, 12
""")
    for rel in range(4):
        a(f"""
s_add_u32 s48, {S_U4}, {rel}
s_and_b32 s48, s48, 3
s_add_u32 s48, s48, 1
s_lshl_b32 s49, s48, 12
s_add_u32 s{56+rel}, s49, s91
s_lshl_b32 s49, s48, 14
s_add_u32 s{60+rel}, s49, s98
""")
    a("s_waitcnt lgkmcnt(0)")
    srd(0, 64, 2048 * 1024)
    a(f"""
s_cmp_ge_u32 {S_HG}, 4
s_cselect_b32 s74, s76, s74
s_cselect_b32 s75, s77, s75
""")
    srd(4, 74, 16384)
    srd(9, 72, 524288)
    srd(1, 66, 1572864)
    srd(2, 86, WS_SIZE)
    srd(3, 84, 256)
    srd(5, 80, 1024)
    srd(6, 68, 524288)
    srd(7, 78, 524288)
    srd(8, 82, 2048 * 1024)
    stamp(0)
    a(f"""
s_cmp_ge_u32 {S_WAVE}, 8
s_cbranch_scc1 L_sw
""")

def aw_phase1():
    a.comment("==== AW: GEMM. strip = w&3, mt = w>>2 ; waves 0-3 also KV partial + halo ; waves 4-7 X DMA")
    a(f"""
s_cmp_ge_u32 {S_WAVE}, 4
s_cbranch_scc1 L_g_nogate
s_cmp_lt_u32 {S_HG}, 4
s_cbranch_scc1 L_g_nogate
v_lshrrev_b32 v7, 4, v1
v_lshlrev_b32 v7, 4, v7
s_add_u32 s50, {S_WAVE}, s97
s_and_b32 s50, s50, 3
s_lshl_b32 s50, s50, 8
s_mov_b32 s48, 0x00010001
s_mov_b32 s49, 0x00010001
s_mov_b64 exec, s[48:49]
""")
    for ks in range(4):
        a(f"buffer_load_dwordx4 v[{80+4*ks}:{83+4*ks}], v7, {SRD_GT}, s50 offen offset:{ks*64}")
    a(f"""
s_mov_b64 exec, -1
L_g_nogate:
v_lshrrev_b32 v8, 5, v1
v_lshlrev_b32 v9, 4, {vJ}
v_lshlrev_b32 v8, 8, v8
v_add_u32 v9, v9, v8
v_add_u32 {vVA}, {L_KV + 8192}, v9
v_add_u32 {vKA}, {L_KV}, {vL16}
v_and_b32 v8, 3, v1
v_lshlrev_b32 v8, 11, v8
v_bfe_u32 v9, v1, 2, 3
s_lshl_b32 s48, {S_WAVE}, 3
s_and_b32 s49, s48, 31
v_add_u32 v9, s49, v9
v_and_b32 v10, 32, v1
v_add_u32 v9, v9, v10
v_lshlrev_b32 v9, 4, v9
s_lshr_b32 s55, {S_WAVE}, 2
s_lshl_b32 s49, s55, 10
s_add_u32 s49, s49, {L_QB}
v_add3_u32 v30, v8, v9, s49
v_lshrrev_b32 v11, 5, v1
v_and_b32 v13, 15, {vJ}
v_xor_b32 v13, v13, v11
v_lshlrev_b32 v13, 4, v13
v_add_u32 v12, 16, {vJ}
v_lshlrev_b32 v12, 8, v12
s_and_b32 s75, {S_WAVE}, 1
s_lshr_b32 s74, {S_WAVE}, 1
s_add_u32 s74, s74, 1
s_cmp_eq_u32 s74, 3
s_cselect_b32 s74, 0, s74
s_cmp_eq_u32 s74, 4
s_cselect_b32 s74, 3, s74
s_lshl_b32 s48, s75, 13
v_add3_u32 v20, v12, v13, s48
""".replace("s55", "s73"))
    for j in range(1, 8): a(f"v_xor_b32 v{20+j}, {32*j}, v20")
    a(f"""
v_lshrrev_b32 v10, 4, v1
v_and_b32 v11, 1, v10
v_lshrrev_b32 v10, 1, v10
v_bfe_u32 v12, v1, 2, 2
v_and_b32 v13, 3, v1
v_lshlrev_b32 v14, 3, v10
v_add_u32 v14, v14, v12
v_lshlrev_b32 v14, 7, v14
v_lshrrev_b32 v15, 1, v12
v_lshlrev_b32 v15, 6, v15
v_lshlrev_b32 v11, 5, v11
v_lshlrev_b32 v13, 3, v13
v_add3_u32 v14, v14, v15, v11
v_add_u32 v14, v14, v13
s_lshl_b32 s48, s74, 12
s_add_u32 s48, s48, {L_RING}
v_add_u32 v6, s48, v14
v_xor_b32 v7, 64, v6
s_lshl_b32 s48, s74, 2
s_lshl_b32 s49, s75, 1
s_add_u32 s48, s48, s49
s_mul_i32 s48, s48, 2560
s_add_u32 s48, s48, {L_T}
v_lshrrev_b32 v12, 5, v1
v_lshlrev_b32 v13, 5, {vJ}
v_lshlrev_b32 v12, 4, v12
v_add3_u32 v31, v13, v12, s48
s_mul_i32 s49, s74, 10240
s_add_u32 s49, s49, {L_T + 512}
v_add3_u32 v160, v13, v12, s49
v_add_u32 v161, {L_QB}, {vL16}
s_movk_i32 s50, 2560
s_cmp_eq_u32 s74, 3
s_cselect_b64 vcc, -1, 0
s_cselect_b32 s50, 2048, s50
v_cndmask_b32 v160, v160, v161, vcc
s_lshl_b32 s48, s75, 10
v_add_u32 v160, s48, v160
v_add_u32 v161, s50, v160
v_add_u32 v162, s50, v161
v_add_u32 v163, s50, v162
v_and_b32 v164, 16, v1
v_lshlrev_b32 v164, 8, v164
s_lshl_b32 s48, s75, 13
s_add_u32 s48, s48, 4096
v_add_u32 v164, s48, v164
s_cmp_eq_u32 s75, 1
s_cselect_b64 vcc, -1, 0
v_cndmask_b32 v28, v6, v7, vcc
v_cndmask_b32 v7, v7, v6, vcc
v_mov_b32 v6, v28
v_cndmask_b32 v28, v160, v162, vcc
v_cndmask_b32 v162, v162, v160, vcc
v_mov_b32 v160, v28
v_cndmask_b32 v28, v161, v163, vcc
v_cndmask_b32 v163, v163, v161, vcc
v_mov_b32 v161, v28
s_cmp_ge_u32 {S_WAVE}, 4
s_cbranch_scc1 L_kv_skip
s_lshl_b32 s48, {S_U4}, 4
s_add_u32 s48, s48, 16
v_and_b32 v12, 15, v1
v_lshrrev_b32 v13, 4, v1
v_add_u32 v14, s48, v12
v_lshlrev_b32 v14, 8, v14
v_xor_b32 v15, v12, v13
v_lshlrev_b32 v15, 4, v15
s_mul_i32 s49, {S_WAVE}, {XBLK}
v_add3_u32 v2, v15, v14, s49
v_xor_b32 v3, 64, v2
v_xor_b32 v4, 128, v2
v_xor_b32 v5, 192, v2
v_bfe_u32 v14, v1, 2, 2
v_lshlrev_b32 v15, 3, v13
v_add_u32 v15, v15, v14
v_lshlrev_b32 v15, 5, v15
v_and_b32 v14, 3, v1
v_lshlrev_b32 v14, 3, v14
s_add_u32 s49, {S_WAVE}, s97
s_and_b32 s49, s49, 3
s_lshl_b32 s49, s49, 12
s_add_u32 s49, s49, {L_WK}
v_add3_u32 v8, v15, v14, s49
s_lshl_b32 s49, {S_WAVE}, 10
s_add_u32 s49, s49, {SCR_D}
v_add_u32 v9, s49, {vL16}
v_lshlrev_b32 v10, 2, v1
s_lshl_b32 s49, {S_WAVE}, 8
s_add_u32 s49, s49, {SCR_G}
v_add_u32 v10, s49, v10
s_waitcnt vmcnt(0)
s_barrier   ; B_kv
""")
    stamp(4)
    for ks in range(4):
        a(f"ds_read_b128 v[{128+4*ks}:{131+4*ks}], v{2+ks}")
        for half in range(2):
            a(f"ds_read_b64_tr_b16 v[{32+4*ks+2*half}:{33+4*ks+2*half}], v8 offset:{ks*1024 + half*128}")
    a(f"s_cmp_ge_u32 {S_HG}, 4\ns_cbranch_scc1 L_kv_V")
    for isV in (False, True):
        for ks in range(4):
            a(f"s_waitcnt lgkmcnt({3*(3-ks)})")
            w = f"v[{32+4*ks}:{35+4*ks}]"; x = f"v[{128+4*ks}:{131+4*ks}]"
            c0 = "0" if ks == 0 else "v[64:67]"; c1 = "0" if ks == 0 else "v[68:71]"
            if isV:
                a(f"v_mfma_f32_16x16x32_bf16 v[68:71], v[{80+4*ks}:{83+4*ks}], {x}, {c1}")
                a(f"v_mfma_f32_16x16x32_bf16 v[64:67], {x}, {w}, {c0}")
            else:
                a(f"v_mfma_f32_16x16x32_bf16 v[64:67], {w}, {x}, {c0}")
        if isV: a("ds_write_b32 v10, v68")
        else: a("s_branch L_kv_done\nL_kv_V:")
    a("L_kv_done:")
    a.fence(8)
    a("ds_write_b128 v9, v[64:67]\ns_waitcnt lgkmcnt(0)")
    WB = lambda buf, nt, ks2: 128 + 16 * buf + 8 * nt + 4 * ks2
    XB = lambda buf, ks2: 96 + 8 * buf + 4 * ks2
    HWB = lambda buf, ks2: 48 + 8 * buf + 4 * ks2
    HXB = lambda buf, ks2: 112 + 8 * buf + 4 * ks2
    ACC = lambda nt: 64 + 16 * nt
    HACC = 32
    def reads(s, halo):
        buf = s & 1; slot = s & 3; out = []
        for ks2 in range(2):
            k16 = 2 * s + ks2
            for nt in range(2):
                r = WB(buf, nt, ks2)
                for half in range(2):
                    out.append(f"ds_read_b64_tr_b16 v[{r+2*half}:{r+2*half+1}], v{6+nt} offset:{slot * 16384 + (16 * ks2 + 4 * half) * 128}")
            out.append(f"ds_read_b128 v[{XB(buf,ks2)}:{XB(buf,ks2)+3}], v{20+(k16&7)} offset:{((k16 >> 3) & 1) * XBLK}")
        if halo:
            for ks2 in range(2):
                k16 = 2 * s + ks2
                out.append(f"v_sub_u32 v{4+ks2}, v{20+(k16&7)}, v164")
                out.append(f"ds_read_b128 v[{HXB(buf,ks2)}:{HXB(buf,ks2)+3}], v{4+ks2} offset:{((k16 >> 3) & 1) * XBLK}")
        return out
    def mfs(s, halo):
        buf = s & 1; out = []
        for ks2 in range(2):
            for nt in range(2):
                d = ACC(nt); c = "0" if (s == 0 and ks2 == 0) else f"v[{d}:{d+15}]"
                out.append(f"v_mfma_f32_32x32x16_bf16 v[{d}:{d+15}], v[{WB(buf,nt,ks2)}:{WB(buf,nt,ks2)+3}], v[{XB(buf,ks2)}:{XB(buf,ks2)+3}], {c}")
            if halo:
                c = "0" if (s == 0 and ks2 == 0) else f"v[{HACC}:{HACC+15}]"
                out.append(f"v_mfma_f32_32x32x16_bf16 v[{HACC}:{HACC+15}], v[{WB(buf,0,ks2)}:{WB(buf,0,ks2)+3}], v[{HXB(buf,ks2)}:{HXB(buf,ks2)+3}], {c}")
        return out
    xsched = {0: [(1, 1), (1, 2)], 1: [(1, 3), (1, 4)]}
    for i in range(8): xsched[2 + i] = [(2 + (i >> 2), 1 + (i & 3))]
    for halo in (True, False):
        if not halo:
            a("L_kv_skip:\ns_barrier   ; B_kv")
        vg = VM(a)
        if ENV("GP", "") : a(f"s_setprio {ENV('GP')[0 if halo else 1]}")
        for s in range(16):
            if not halo:
                if s == 4: vg.wait("X1")
                if s == 8: vg.wait("X2")
                if s == 12: vg.wait("X3")
            a(f"s_barrier   ; B_{s}")
            if s in (0, 4, 8, 12, 15): stamp(8 + s)
            if s == 8:
                for i in range(8): a(f"v_add_u32 v{20+i}, {2*XBLK}, v{20+i}")
            R = reads(s, halo); M = mfs(s - 1, halo) if s > 0 else []
            while R or M:
                if M: a(M.pop(0))
                for _ in range(int(ENV("RPM", "4"))):
                    if R: a(R.pop(0))
            if not halo:
                for (kb, rel) in xsched.get(s, []): x_instr(vg, kb, rel, f"X{kb}")
                if s == 3:
                    a(f"""
s_cmp_lg_u32 {S_WAVE}, 4
s_cbranch_scc1 L_noarr
s_and_b32 s48, s2, 3
s_lshl_b32 s48, s48, 6
v_mov_b32 v12, s48
v_mov_b32 v13, 1
s_mov_b64 exec, 1
buffer_atomic_add v13, v12, {SRD_DBG}, 0 offen sc1
s_mov_b64 exec, -1
L_noarr:
""")
            a("s_waitcnt lgkmcnt(0)")
        for m in mfs(15, halo): a(m)
        for nt in range(2):
            for hh in range(2):
                p = 128 + 4 * (2 * nt + hh)
                for e in range(4): a(f"v_cvt_pk_bf16_f32 v{p+e}, v{ACC(nt)+8*hh+2*e}, v{ACC(nt)+8*hh+2*e+1}")
                a(f"ds_write_b128 v{160+2*nt+hh}, v[{p}:{p+3}]")
        if halo:
            a("s_mov_b64 exec, s[92:93]")
            for hh in range(2):
                p = 48 + 4 * hh
                for e in range(4): a(f"v_cvt_pk_bf16_f32 v{p+e}, v{HACC+8*hh+2*e}, v{HACC+8*hh+2*e+1}")
                a(f"ds_write_b128 v31, v[{p}:{p+3}] offset:{hh*2560}")
            a("s_mov_b64 exec, -1\ns_branch L_aw_e")
    a(f"""
L_aw_e:
v_and_b32 v9, 27, {vJ}
v_cmp_eq_u32 vcc, 16, v9
v_mov_b32 v9, 0x3f803f80
v_cndmask_b32 v{VF}, 0, v9, vcc
""")
    for i in range(1, 16): a(f"v_mov_b32 v{VF+i}, v{VF}")
    a(f"""
v_bfe_u32 v8, v1, 2, 3
s_and_b32 s48, {S_WAVE}, 1
s_lshl_b32 s48, s48, 3
v_add_u32 v8, s48, v8
v_lshlrev_b32 v8, 2, v8
s_lshr_b32 s48, {S_WAVE}, 1
s_lshl_b32 s49, {S_PB}, 2
s_add_u32 s48, s48, s49
s_lshl_b32 s48, s48, 7
s_add_u32 s48, s48, {WS_G}
v_mov_b32 v13, {L_KMAX}
v_mov_b32 v32, 0
s_waitcnt lgkmcnt(0)
""")
    stamp(30)
    a("s_barrier   ; B_e")
    a(f"""
ds_read_b128 v[4:7], v30
ds_read_b32 v34, v13
ds_read_b128 v[{KF}:{KF+3}], {vKA}
ds_read_b128 v[{KF+4}:{KF+7}], {vKA} offset:1024
s_mov_b64 exec, s[92:93]
ds_read_b128 v[{VF}:{VF+3}], {vVA}
ds_read_b128 v[{VF+4}:{VF+7}], {vVA} offset:512
s_mov_b64 exec, -1
buffer_load_dword v10, v8, {SRD_WS}, s48 offen sc1
s_waitcnt lgkmcnt(4)
v_dot2_f32_bf16 v32, v4, v4, v32
v_dot2_f32_bf16 v32, v5, v5, v32
v_dot2_f32_bf16 v32, v6, v6, v32
v_dot2_f32_bf16 v32, v7, v7, v32
v_mov_b32 v33, v32
v_permlane32_swap_b32 v32, v33
v_add_f32 v32, v32, v33
v_mul_f32 v32, v32, v34
v_sqrt_f32 v32, v32
v_sub_f32 v{C_}, 0, v32
""")
    for i in range(1, 16): a(f"v_mov_b32 v{C_+i}, v{C_}")
    a("s_waitcnt lgkmcnt(3)")
    a(f"v_mfma_f32_32x32x16_bf16 v[{SA}:{SA+15}], v[{KF}:{KF+3}], v[4:7], v[{C_}:{C_+15}]")
    a(f"ds_read_b128 v[{KF}:{KF+3}], {vKA} offset:2048")
    stamp(36)

def pv1(t):
    vb = VF + 8 * (t & 1)
    a(f"v_mfma_f32_32x32x16_bf16 v[{O_}:{O_+15}], v[{vb+4}:{vb+7}], v[{P_+4}:{P_+7}], v[{O_}:{O_+15}]")
def tile(t):
    first = t == 0
    S = SA if t % 2 == 0 else SB
    Sn = SB if t % 2 == 0 else SA
    def koff(x): return ((x >> 3) % 3) * 16384 + (x & 7) * 1024
    kb = KF + 4 * ((t + 1) & 1)
    vb = VF + 8 * (t & 1)
    vbp = VF + 8 * ((t + 1) & 1)
    if first: a("s_waitcnt lgkmcnt(3)")
    E = lambda i: a(f"v_exp_f32 v{S+i}, v{S+i}")
    Cv = lambda i: a(f"v_cvt_pk_bf16_f32 v{P_+i}, v{S+2*i}, v{S+2*i+1}")
    n = 0
    if t + 1 < 64: a(f"v_mfma_f32_32x32x16_bf16 v[{Sn}:{Sn+15}], v[{kb}:{kb+3}], v[4:7], v[{C_}:{C_+15}]")
    if t + 3 < 64: a(f"ds_read_b128 v[{kb}:{kb+3}], {vKA} offset:{koff(t+3)}"); n += 1
    for i in range(6): E(i)
    if not first: pv1(t - 1)
    if t + 1 < 64:
        a("s_mov_b64 exec, s[92:93]")
        a(f"ds_read_b128 v[{vbp}:{vbp+3}], {vVA} offset:{koff(t+1)}")
        a(f"ds_read_b128 v[{vbp+4}:{vbp+7}], {vVA} offset:{koff(t+1)+512}")
        a("s_mov_b64 exec, -1")
        n += 2
    for i in range(6, 8): E(i)
    for i in range(4): Cv(i)
    for i in range(8, 11): E(i)
    a(f"s_waitcnt lgkmcnt({n})")
    c = "0" if first else f"v[{O_}:{O_+15}]"
    a(f"v_mfma_f32_32x32x16_bf16 v[{O_}:{O_+15}], v[{vb}:{vb+3}], v[{P_}:{P_+3}], {c}")
    for i in range(11, 16): E(i)
    for i in range(4, 8): Cv(i)

def aw_loop():
    PRIO = [int(c) for c in ENV("PRIO", "22221110")]
    for t in range(64):
        if t % 8 == 5 and 8 < t < 61:
            a(f"s_barrier   ; b{t//8+1}")
        ph = (t - 5) % 8
        if t == 0 or PRIO[ph] != PRIO[(ph - 1) % 8]: a(f"s_setprio {PRIO[ph]}")
        tile(t)
        if t % 16 == 15: stamp(37 + t // 16)
    a.fence(2)
    pv1(63)
    a(f"""
v_bfe_u32 v14, v1, 2, 3
v_lshlrev_b32 v14, 10, v14
v_and_b32 v11, 3, v1
v_lshlrev_b32 v11, 5, v11
v_lshrrev_b32 v15, 5, v1
v_lshlrev_b32 v15, 4, v15
v_add3_u32 v11, v11, v14, v15
s_lshl_b32 s51, {S_WAVE}, 3
s_add_u32 s51, s51, {S_P0}
s_lshl_b32 s51, s51, 10
s_lshl_b32 s49, {S_HG}, 7
s_add_u32 s51, s51, s49
s_add_u32 s51, s51, {WS_OB}
s_waitcnt vmcnt(0)
v_sub_f32 v13, 1.0, v10
s_mov_b32 s48, 0x17800000
v_cmp_nle_f32 vcc, s48, v{O_+8}
s_cbranch_vccz L_fb_done
v_and_b32 v3, 0x1fff, {vVA}
v_mov_b32 v12, {f32(-3.0e38)}
s_mov_b32 s48, 0
L_fb1:
s_lshr_b32 s49, s48, 3
s_lshl_b32 s49, s49, 14
s_and_b32 s50, s48, 7
s_lshl_b32 s50, s50, 10
s_add_u32 s49, s49, s50
buffer_load_dwordx4 v[{KF}:{KF+3}], {vL16}, {SRD_WS}, s49 offen sc1
s_waitcnt vmcnt(0)
v_mfma_f32_32x32x16_bf16 v[{SA}:{SA+15}], v[{KF}:{KF+3}], v[4:7], 0
""")
    for i in range(8): a(f"v_max3_f32 v12, v12, v{SA+2*i}, v{SA+2*i+1}")
    a(f"""
s_add_u32 s48, s48, 1
s_cmp_lt_u32 s48, 64
s_cbranch_scc1 L_fb1
v_mov_b32 v2, v12
v_permlane32_swap_b32 v12, v2
v_max_f32 v12, v12, v2
v_sub_f32 v{C_}, 0, v12
""")
    for i in range(1, 16): a(f"v_mov_b32 v{C_+i}, v{C_}")
    for i in range(16): a(f"v_mov_b32 v{O_+i}, 0")
    a(f"""
s_mov_b32 s48, 0
L_fb2:
s_lshr_b32 s49, s48, 3
s_lshl_b32 s49, s49, 14
s_and_b32 s50, s48, 7
s_lshl_b32 s50, s50, 10
s_add_u32 s49, s49, s50
s_add_u32 s50, s49, 8192
buffer_load_dwordx4 v[{KF}:{KF+3}], {vL16}, {SRD_WS}, s49 offen sc1
s_mov_b64 exec, s[92:93]
buffer_load_dwordx4 v[{VF}:{VF+3}], v3, {SRD_WS}, s50 offen sc1
buffer_load_dwordx4 v[{VF+4}:{VF+7}], v3, {SRD_WS}, s50 offen offset:512 sc1
s_mov_b64 exec, -1
s_waitcnt vmcnt(0)
v_mfma_f32_32x32x16_bf16 v[{SA}:{SA+15}], v[{KF}:{KF+3}], v[4:7], v[{C_}:{C_+15}]
""")
    for i in range(16): a(f"v_exp_f32 v{SA+i}, v{SA+i}")
    for i in range(8): a(f"v_cvt_pk_bf16_f32 v{P_+i}, v{SA+2*i}, v{SA+2*i+1}")
    a(f"""
v_mfma_f32_32x32x16_bf16 v[{O_}:{O_+15}], v[{VF}:{VF+3}], v[{P_}:{P_+3}], v[{O_}:{O_+15}]
v_mfma_f32_32x32x16_bf16 v[{O_}:{O_+15}], v[{VF+4}:{VF+7}], v[{P_+4}:{P_+7}], v[{O_}:{O_+15}]
s_add_u32 s48, s48, 1
s_cmp_lt_u32 s48, 64
s_cbranch_scc1 L_fb2
""")
    a.fence(12)
    a(f"""
L_fb_done:
v_rcp_f32 v12, v{O_+8}
v_mul_f32 v12, v12, v13
""")
    for i in range(8): a(f"v_mul_f32 v{O_+i}, v{O_+i}, v12")
    for i in range(4): a(f"v_cvt_pk_bf16_f32 v{P_+i}, v{O_+2*i}, v{O_+2*i+1}")
    a(f"buffer_store_dwordx4 v[{P_}:{P_+3}], v11, {SRD_WS}, s51 offen {ENV('TST', 'sc1')}")
    stamp(41)
    if ENV("BEND", "1") == "1": a("s_barrier   ; B_end")
    prof_dump("a")
    a("s_endpgm")

GACC = lambda i: 64 + 16 * i
GW = lambda buf, i: (32 + 8 * buf + 4 * i) if i < 2 else (128 + 8 * buf + 4 * (i - 2))
HX3 = lambda buf: 144 + 4 * buf
def x_instr(vm, kb, rel, tag):
    a(f"s_add_u32 m0, {'s91' if rel == 4 else 's%d' % (56+rel)}, {kb*XBLK}")
    a(f"s_add_u32 s95, {'s99' if rel == 4 else 's%d' % (60+rel)}, s{52+kb}")
    a(f"buffer_load_dwordx4 {vXP}, {SRD_X}, s95 offen lds")
    vm.issue(tag)
def gpf(g, w3, vm):
    if ENV("GPF", "0") != "1": return
    for st in range(2 if w3 else 1):
        for i in range(2):
            a(f"s_add_u32 s95, s{64+g}, {i*64*3072 + st*1024}")
            a(f"buffer_load_dword v28, v23, {SRD_W}, s95 offen")
            vm.issue("pf")
def gdma(n, w3, vm):
    slot = n % 3
    for st in range(2 if w3 else 1):
        for i in range(2):
            a(f"s_add_u32 m0, s89, {L_PR[slot] + st*2048 + i*1024}")
            a(f"s_add_u32 s95, s{64 + (n >> 3)}, {(16*(n&7) + 8*i)*3072 + st*1024}")
            a(f"buffer_load_dwordx4 {vWP}, {SRD_W}, s95 offen lds")
            vm.issue(f"g{n}")
def gstep(n, w3, vm):
    slot = n % 3; buf = n & 1
    if n < 32:
        vm.wait(f"g{n}")
        for st in range(2 if w3 else 1):
            for nt in range(2):
                r = GW(buf, 2 * st + nt)
                for half in range(2):
                    a(f"ds_read_b64_tr_b16 v[{r+2*half}:{r+2*half+1}], v{25+nt} offset:{L_PR[slot] - L_PR[2] + st*2048 + half*512}")
        a(f"v_xor_b32 v27, {32*(n&7)}, v24")
        if w3:
            a(f"ds_read_b128 v[{HX3(buf)}:{HX3(buf)+3}], v27 offset:{(n>>3)*XBLK}")
        else:
            for mt in range(2):
                r = GW(buf, 2 + mt)
                a(f"ds_read_b128 v[{r}:{r+3}], v27 offset:{(n>>3)*XBLK + mt*8192 if (n>>3) < 3 else mt*8192}")
    if n > 0:
        m = n - 1; b = m & 1
        a(f"s_waitcnt lgkmcnt({0 if n >= 32 else (9 if w3 else 6)})")
        PM = ENV("PM", "0")
        if PM == "0" and 1 <= n and n + 2 < 32: gdma(n + 2, w3, vm)
        if PM != "0": a("s_setprio 3")
        for i in range(4):
            d = GACC(i)
            c = "0" if m == 0 else f"v[{d}:{d+15}]"
            wv, xv = (GW(b, i), HX3(b)) if w3 else (GW(b, i >> 1), GW(b, 2 + (i & 1)))
            a(f"v_mfma_f32_32x32x16_bf16 v[{d}:{d+15}], v[{wv}:{wv+3}], v[{xv}:{xv+3}], {c}")
        if PM != "0":
            a("s_setprio 0")
            if 1 <= n and n + 2 < 32: gdma(n + 2, w3, vm)
    if n == 23 and not w3: a(f"v_add_u32 v24, {3*XBLK}, v24")
def kv_dma4(sc, vm=None):
    a(f"s_add_u32 s95, s94, {sc*16384}\ns_and_b32 s95, s95, 0x1ffff\ns_add_u32 s95, s95, s96")
    for i in range(4):
        a(f"s_add_u32 m0, s96, {L_KV + (sc%3)*16384}")
        a("s_nop 0")
        a(f"buffer_load_dwordx4 {vL16}, {SRD_WS}, s95 offen offset:{i*1024} sc1 lds")
        if vm: vm.issue(f"kv{sc}")

def kv_final():
    a(f"""
s_cmp_lg_u32 {S_A}, 3
s_cbranch_scc1 L_kvf_done
v_lshlrev_b32 v65, 2, v1
ds_read_b128 v[68:71], {vL16} offset:{SCR_D}
ds_read_b128 v[72:75], {vL16} offset:{SCR_D+1024}
ds_read_b128 v[76:79], {vL16} offset:{SCR_D+2048}
ds_read_b128 v[80:83], {vL16} offset:{SCR_D+3072}
ds_read_b32 v84, v65 offset:{SCR_G}
ds_read_b32 v85, v65 offset:{SCR_G+256}
ds_read_b32 v86, v65 offset:{SCR_G+512}
ds_read_b32 v87, v65 offset:{SCR_G+768}
s_lshl_b32 s48, {S_PB}, 1
s_lshr_b32 s49, {S_U4}, 1
s_add_u32 s48, s48, s49
s_lshr_b32 s49, s48, 3
s_lshl_b32 s49, s49, 14
s_and_b32 s51, s48, 7
s_lshl_b32 s51, s51, 10
s_add_u32 s49, s49, s51
s_and_b32 s50, {S_U4}, 1
v_and_b32 v66, 15, v1
v_bfe_u32 v67, v1, 4, 1
v_lshlrev_b32 v64, 4, v66
v_lshrrev_b32 v65, 5, v1
v_lshlrev_b32 v65, 3, v65
v_add_u32 v65, v65, v64
s_waitcnt lgkmcnt(4)
""")
    for r in range(4):
        a(f"v_add_f32 v{68+r}, v{68+r}, v{72+r}")
        a(f"v_add_f32 v{76+r}, v{76+r}, v{80+r}")
    for r in range(4): a(f"v_add_f32 v{68+r}, v{68+r}, v{76+r}")
    a(f"""
s_cmp_ge_u32 {S_HG}, 4
s_cbranch_scc1 L_kvf_V
s_lshl_b32 s51, s50, 8
s_add_u32 s49, s49, s51
v_lshlrev_b32 v67, 9, v67
v_add_u32 v67, v67, v65
s_mov_b32 s51, {f32(QSCALE)}
v_mul_f32 v68, s51, v68
v_mul_f32 v69, s51, v69
v_mul_f32 v70, s51, v70
v_mul_f32 v71, s51, v71
v_cvt_pk_bf16_f32 v72, v68, v69
v_cvt_pk_bf16_f32 v73, v70, v71
buffer_store_dwordx2 v[72:73], v67, {SRD_WS}, s49 offen sc1
v_mul_f32 v76, v68, v68
v_fmac_f32 v76, v69, v69
v_fmac_f32 v76, v70, v70
v_fmac_f32 v76, v71, v71
v_mov_b32 v77, v76
v_permlane32_swap_b32 v76, v77
v_add_f32 v76, v76, v77
v_mov_b32 v77, v76
v_permlane16_swap_b32 v76, v77
v_add_f32 v76, v76, v77
v_max_f32_dpp v76, v76, v76 row_ror:8 row_mask:0xf bank_mask:0xf
v_max_f32_dpp v76, v76, v76 row_ror:4 row_mask:0xf bank_mask:0xf
v_max_f32_dpp v76, v76, v76 row_ror:2 row_mask:0xf bank_mask:0xf
v_max_f32_dpp v76, v76, v76 row_ror:1 row_mask:0xf bank_mask:0xf
s_lshl_b32 s48, {S_PB}, 2
s_add_u32 s48, s48, {S_U4}
s_lshl_b32 s48, s48, 2
s_add_u32 s48, s48, {WS_KN}
v_mov_b32 v77, s48
s_mov_b64 exec, 1
buffer_store_dword v76, v77, {SRD_WS}, 0 offen sc1
s_mov_b64 exec, -1
s_branch L_kvf_done
L_kvf_V:
s_lshl_b32 s51, s50, 9
s_add_u32 s49, s49, s51
s_add_u32 s49, s49, 8192
v_lshlrev_b32 v67, 8, v67
v_add_u32 v67, v67, v65
v_cvt_pk_bf16_f32 v72, v68, v69
v_cvt_pk_bf16_f32 v73, v70, v71
buffer_store_dwordx2 v[72:73], v67, {SRD_WS}, s49 offen sc1
s_waitcnt lgkmcnt(0)
v_add_f32 v84, v84, v85
v_add_f32 v86, v86, v87
v_add_f32 v84, v84, v86
v_mul_f32 v84, {f32(-LOG2E)}, v84
v_exp_f32 v84, v84
v_add_f32 v84, 1.0, v84
v_rcp_f32 v84, v84
s_lshl_b32 s48, {S_PB}, 2
s_add_u32 s48, s48, {S_U4}
s_lshl_b32 s48, s48, 7
v_lshlrev_b32 v77, 2, v66
s_add_u32 s49, s48, {WS_G}
s_mov_b64 exec, 0xffff
buffer_store_dword v84, v77, {SRD_WS}, s49 offen sc1
s_mov_b64 exec, -1
L_kvf_done:
""")
    a.fence(2)


def sw_setup():
    a(f"""
s_lshl_b32 s78, {S_A}, 14
s_add_u32 s78, s78, 49152
s_cmp_eq_u32 {S_A}, 3
s_cselect_b32 s78, 131072, s78
v_and_b32 v10, 15, v1
v_lshrrev_b32 v11, 4, v1
s_lshl_b32 s49, {S_A}, 9
s_add_u32 s50, s49, {L_T + 4*2560}
v_lshlrev_b32 v12, 6, v10
v_lshlrev_b32 v13, 4, v11
v_add3_u32 v152, v12, v13, s50
s_add_u32 s50, s49, {L_T + 512}
v_lshlrev_b32 v12, 5, v10
v_and_b32 v13, 1, v11
v_lshlrev_b32 v13, 4, v13
v_add3_u32 v153, v12, v13, s50
s_add_u32 s50, s49, {L_T + 8*2560}
v_bfe_u32 v12, v1, 2, 2
v_lshlrev_b32 v12, 6, v12
v_lshlrev_b32 v13, 8, v11
v_and_b32 v14, 3, v1
v_lshlrev_b32 v14, 3, v14
v_add3_u32 v154, v12, v13, v14
v_add_u32 v154, s50, v154
v_lshlrev_b32 v12, 7, v10
v_lshlrev_b32 v13, 3, v11
v_add3_u32 v155, v12, v13, s78
s_mov_b32 s80, 0x55555555
s_mov_b32 s81, 0xaaaaaaaa
s_mov_b32 s82, 0x55555555
s_mov_b32 s83, 0x55555555
s_mov_b32 s84, 0xaaaaaaaa
s_mov_b32 s85, 0xaaaaaaaa
v_lshrrev_b32 v12, 1, v10
v_lshlrev_b32 v13, 2, v11
v_sub_u32 v14, v13, v12
v_mov_b32 v15, {f32(-1e30)}
s_add_u32 s50, {S_PB}, {S_A}
s_cmp_eq_u32 s50, 0
s_cselect_b32 s50, 8, 0
""")
    for r in range(4):
        a(f"""
v_add_u32 v12, {r-1}, v14
v_add_u32 v6, {r}, v13
v_cmp_gt_u32 vcc, 8, v12
v_cmp_le_u32 s[48:49], s50, v6
v_cndmask_b32 v{156+r}, v15, 0, vcc
v_cndmask_b32 v{156+r}, v15, v{156+r}, s[48:49]
""")
    for i in range(4): a(f"v_mov_b32 v{160+i}, 0x3f803f80")
    for i in range(16): a(f"v_mov_b32 v{48+i}, 0")
    a(f"""
v_lshrrev_b32 v8, 3, v1
v_and_b32 v9, 7, v1
v_lshlrev_b32 v9, 4, v9
v_lshlrev_b32 v8, 10, v8
v_add_u32 v164, v8, v9
v_lshrrev_b32 v8, 4, {vJ}
v_lshlrev_b32 v8, 7, v8
v_and_b32 v9, 15, v1
v_lshlrev_b32 v9, 2, v9
v_add_u32 v165, v8, v9
v_add_u32 v166, s78, {vL16}
s_lshl_b32 s48, {S_A}, 4
s_add_u32 s48, s48, {S_P0}
s_lshl_b32 s48, s48, 10
s_lshl_b32 s49, {S_HG}, 7
s_add_u32 s74, s48, s49
s_lshl_b32 s75, {S_PB}, 9
s_add_u32 s75, s75, {WS_G}
s_lshl_b32 s79, {S_A}, 17
v_and_b32 v12, 1, v11
v_lshrrev_b32 v13, 1, v11
v_bfe_u32 v14, v1, 2, 2
v_lshlrev_b32 v13, 2, v13
v_add_u32 v13, v13, v14
v_lshlrev_b32 v13, 7, v13
v_lshrrev_b32 v14, 1, v14
v_lshlrev_b32 v14, 6, v14
v_lshlrev_b32 v12, 5, v12
v_add3_u32 v14, v14, v13, v12
v_and_b32 v12, 3, v1
v_lshlrev_b32 v12, 3, v12
v_add3_u32 v2, v14, v12, s78
v_xor_b32 v3, 64, v2
v_lshrrev_b32 v12, 1, {vJ}
v_and_b32 v13, 1, {vJ}
v_lshlrev_b32 v13, 3, v13
v_lshrrev_b32 v14, 5, v1
v_or_b32 v13, v13, v14
v_xor_b32 v13, v13, v12
v_lshlrev_b32 v13, 4, v13
v_lshlrev_b32 v12, 8, v12
v_add3_u32 v4, v12, v13, s78
v_xor_b32 v5, 32, v4
v_xor_b32 v6, 64, v4
v_xor_b32 v7, 96, v4
""")
    for n4 in range(4):
        a(f"""
v_add_u32 v12, {4*n4}, v11
v_xor_b32 v13, v10, v12
v_lshlrev_b32 v12, 1, v12
v_lshrrev_b32 v14, 3, v13
v_add_u32 v12, v12, v14
v_lshlrev_b32 v12, 10, v12
v_and_b32 v13, 7, v13
v_lshlrev_b32 v13, 4, v13
v_add_u32 v{20+n4}, v12, v13
""")
    a(f"""
v_and_b32 v12, 1, v1
s_lshl_b32 s48, {S_PB}, 3
s_lshl_b32 s49, {S_A}, 1
s_add_u32 s48, s48, s49
v_add_u32 v28, s48, v12
v_lshlrev_b32 v28, 7, v28
s_lshl_b32 s86, {S_P0}, 10
s_lshl_b32 s48, {S_A}, 8
s_add_u32 s86, s86, s48
v_lshrrev_b32 v9, 5, v1
v_lshlrev_b32 v8, 5, {vJ}
v_lshlrev_b32 v9, 4, v9
s_mul_i32 s49, {S_A}, 10240
s_add_u32 s49, s49, {L_T + 512}
s_cmp_eq_u32 {S_A}, 3
s_cselect_b32 s49, {L_T + 10240}, s49
v_add3_u32 v167, v8, v9, s49
""")

def sw_phase1():
    a("L_sw:")
    a.fence(2)
    vm = VM(a)
    for kb in range(4):
        x_instr(vm, kb, 0, "KV")
        a(f"s_add_u32 m0, s96, {L_WK}")
        a("s_nop 0")
        a(f"buffer_load_dwordx4 {vL16}, {SRD_WK}, s96 offen offset:{kb*1024} lds")
        vm.issue("KV")
    a(f"""
s_mov_b32 s72, 3072
s_lshl_b32 s48, {S_A}, 10
s_cmp_eq_u32 {S_A}, 3
s_cselect_b32 s12, s44, s12
s_cselect_b32 s13, s45, s13
s_cselect_b32 s14, s46, s14
s_cselect_b32 s72, 1024, s72
s_cselect_b32 s48, 0, s48
v_lshrrev_b32 v10, 3, v1
v_and_b32 v11, 7, v1
v_bfe_u32 v12, v1, 4, 1
v_lshlrev_b32 v12, 2, v12
v_xor_b32 v11, v11, v12
v_lshlrev_b32 v11, 4, v11
s_lshl_b32 s51, {S_HG}, 7
v_lshlrev_b32 v12, 10, v10
v_add3_u32 {vWQP}, v12, v11, s51
v_mul_lo_u32 v12, v10, s72
s_add_u32 s48, s48, s51
v_add3_u32 {vWP}, v12, v11, s48
s_lshl_b32 s71, s72, 3
s_add_u32 s89, s96, {L_RING}
""")
    def issue_w(s):
        slot = s & 3
        if s % 4 == 0:
            a(f"s_lshr_b32 s70, s72, 1\ns_mul_i32 s70, s70, s{52 + s // 4}\ns_sub_u32 s70, s70, s71")
        for i in range(4):
            a(f"s_add_u32 m0, s89, {slot*16384 + i*1024}")
            a("s_add_u32 s70, s70, s71")
            a(f"buffer_load_dwordx4 {vWP}, {SRD_W}, s70 offen lds")
            vm.issue(f"S{s}")
    for rel in (1, 2, 3, 4): x_instr(vm, 0, rel, "S0")
    issue_w(0)
    a(f"""
s_cmp_lg_u32 {S_A}, 3
s_cbranch_scc1 L_sw_norst
s_lshl_b32 s48, s88, 7
s_add_u32 s48, s48, {WS_FL}
v_mov_b32 v8, s48
v_mov_b32 v10, 0
v_mov_b32 v11, 0
s_mov_b64 exec, 1
buffer_store_dwordx2 v[10:11], v8, {SRD_WS}, 0 offen offset:4 sc1
s_mov_b64 exec, -1
L_sw_norst:
""")
    sw_setup()
    vm.wait("KV")
    stamp(3)
    a("s_barrier   ; B_kv")
    issue_w(1); issue_w(2)
    a(f"""
v_and_b32 v24, 3, v1
v_lshlrev_b32 v24, 6, v24
v_mov_b32 v25, {L_GO}
""")
    def c0():
        a(f"s_lshl_b32 s49, {S_A}, 13")
        for hf in range(2):
            a(f"s_add_u32 s95, s49, s94\ns_add_u32 s95, s95, {hf*4096}\ns_and_b32 s95, s95, 0x1ffff")
            for i in range(4):
                a(f"s_add_u32 m0, s49, {L_KV + hf*4096}")
                a("s_nop 0")
                a(f"buffer_load_dwordx4 {vL16}, {SRD_WS}, s95 offen offset:{i*1024} sc1 lds")
        a(f"v_lshlrev_b32 v8, 3, v1\ns_mov_b32 s48, {WS_KN}\nbuffer_load_dwordx2 v[26:27], v8, {SRD_WS}, s48 offen sc1")
    for s in range(16):
        if s >= 14:
            n = 4 * (15 - s)
            a(f"s_cmp_eq_u32 s69, 1\ns_cbranch_scc1 L_sw_w{s}\ns_waitcnt vmcnt({n})\nL_sw_w{s}:\ns_waitcnt vmcnt({n + 9})")
        else:
            vm.wait(f"S{s}")
        if s == 13:
            a(f"""
s_cmp_lg_u32 {S_A}, 0
s_cbranch_scc1 L_sw_nogo
v_cmp_gt_u32 vcc, 64, v9
s_cmp_eq_u64 vcc, 0
s_cselect_b32 s48, 1, 0
v_mov_b32 v9, s48
ds_write_b32 v25, v9
s_waitcnt lgkmcnt(0)
L_sw_nogo:
""")
        a(f"s_barrier   ; B_{s}")
        if s == 10:
            a(f"s_cmp_lg_u32 {S_A}, 0\ns_cbranch_scc1 L_sw_nopoll\nbuffer_load_dword v9, v24, {SRD_DBG}, 0 offen sc1\nL_sw_nopoll:")
        if s == 0: kv_final(); issue_w(3)
        if 1 <= s and s + 3 < 16: issue_w(s + 3)
        if s == 13:
            a("ds_read_b32 v9, v25\ns_waitcnt lgkmcnt(0)\nv_readfirstlane_b32 s69, v9\ns_cmp_eq_u32 s69, 1\ns_cbranch_scc0 L_sw_noearly")
            c0()
            a("L_sw_noearly:")
    a(f"""
s_cmp_eq_u32 s69, 1
s_cbranch_scc1 L_sw_have
s_mov_b32 s50, 0
s_cmp_lg_u32 {S_A}, 0
s_cbranch_scc1 L_poll_lds
L_poll_go:
buffer_load_dword v9, v24, {SRD_DBG}, 0 offen sc1
s_add_u32 s50, s50, 1
s_waitcnt vmcnt(0)
v_cmp_gt_u32 vcc, 64, v9
s_cmp_ge_u32 s50, {SPIN_MAX}
s_cbranch_scc1 L_poll_set
s_cbranch_vccz L_poll_set
s_sleep {ENV("GSLEEP", "8")}
s_branch L_poll_go
L_poll_set:
v_mov_b32 v9, 1
ds_write_b32 v25, v9
s_branch L_poll_go_done
L_poll_lds:
ds_read_b32 v9, v25
s_add_u32 s50, s50, 1
s_waitcnt lgkmcnt(0)
v_readfirstlane_b32 s48, v9
s_cmp_ge_u32 s50, {SPIN_MAX * 32}
s_cbranch_scc1 L_poll_go_done
s_cmp_eq_u32 s48, 1
s_cbranch_scc1 L_poll_go_done
s_sleep 1
s_branch L_poll_lds
L_poll_go_done:
""")
    c0()
    a(f"""
L_sw_have:
s_waitcnt vmcnt(0)
v_max_f32 v26, v26, v27
v_mov_b32 v27, v26
v_permlane32_swap_b32 v26, v27
v_max_f32 v26, v26, v27
v_mov_b32 v27, v26
v_permlane16_swap_b32 v26, v27
v_max_f32 v26, v26, v27
v_max_f32_dpp v26, v26, v26 row_ror:8 row_mask:0xf bank_mask:0xf
v_max_f32_dpp v26, v26, v26 row_ror:4 row_mask:0xf bank_mask:0xf
v_max_f32_dpp v26, v26, v26 row_ror:2 row_mask:0xf bank_mask:0xf
v_max_f32_dpp v26, v26, v26 row_ror:1 row_mask:0xf bank_mask:0xf
v_mov_b32 v27, {L_KMAX}
ds_write_b32 v27, v26
s_waitcnt lgkmcnt(0)
s_setprio {ENV('SWP0', '3')}
""")
    stamp(30)
    a("s_barrier   ; B_e")
    kv_dma4(2)

def sw_post():
    a.comment("---- SW: A attention (u = a), two rounds of 2 heads")
    KR = lambda u: 32 + 4 * u
    QR = lambda u: 48 + 4 * u
    PRr = lambda u: 56 + 4 * u
    VR = lambda u: 64 + 4 * u
    SR = lambda u: 72 + 4 * u
    OR = lambda u: 80 + 4 * u
    LR = lambda u: 88 + 4 * u
    MX = lambda u: 96 + 2 * u
    a(f"s_mov_b32 s51, {f32(QSCALE)}")
    if ENV("PM", "0") != "0": a("s_setprio 3")
    for rnd in range(2):
        U = range(2)
        for u in U: a(f"ds_read_b128 v[{KR(u)}:{KR(u)+3}], v152 offset:{(2*rnd+u)*2560}")
        a("s_mov_b64 exec, s[80:81]")
        for u in U: a(f"ds_read_b128 v[{QR(u)}:{QR(u)+3}], v153 offset:{(2*rnd+u)*2560}")
        a("s_mov_b64 exec, -1")
        for u in U:
            a(f"ds_read_b64_tr_b16 v[{VR(u)}:{VR(u)+1}], v154 offset:{(2*rnd+u)*2560}")
            a(f"ds_read_b64_tr_b16 v[{VR(u)+2}:{VR(u)+3}], v154 offset:{(2*rnd+u)*2560+32}")
        a("s_waitcnt lgkmcnt(4)")
        for u in U: a(f"v_mfma_f32_16x16x32_bf16 v[{SR(u)}:{SR(u)+3}], v[{KR(u)}:{KR(u)+3}], v[{QR(u)}:{QR(u)+3}], v[156:159]")
        for u in U:
            s = SR(u); m = MX(u)
            a(f"v_max3_f32 v{m}, v{s}, v{s+1}, v{s+2}"); a(f"v_max_f32 v{m}, v{m}, v{s+3}"); a(f"v_mov_b32 v{m+1}, v{m}")
        for u in U: a(f"v_permlane32_swap_b32 v{MX(u)}, v{MX(u)+1}")
        for u in U: m = MX(u); a(f"v_max_f32 v{m}, v{m}, v{m+1}"); a(f"v_mov_b32 v{m+1}, v{m}")
        for u in U: a(f"v_permlane16_swap_b32 v{MX(u)}, v{MX(u)+1}")
        for u in U: m = MX(u); a(f"v_max_f32 v{m}, v{m}, v{m+1}"); a(f"v_mul_f32 v{m}, s51, v{m}")
        for u in U:
            for r in range(4): a(f"v_fma_f32 v{SR(u)+r}, v{SR(u)+r}, s51, -v{MX(u)}")
        for u in U:
            for r in range(4): a(f"v_exp_f32 v{SR(u)+r}, v{SR(u)+r}")
        a("s_mov_b64 exec, s[82:83]")
        for u in U:
            s = SR(u); p = PRr(u); a(f"v_cvt_pk_bf16_f32 v{p}, v{s}, v{s+1}"); a(f"v_cvt_pk_bf16_f32 v{p+1}, v{s+2}, v{s+3}")
        a("s_mov_b64 exec, s[84:85]")
        for u in U:
            s = SR(u); p = PRr(u); a(f"v_cvt_pk_bf16_f32 v{p+2}, v{s}, v{s+1}"); a(f"v_cvt_pk_bf16_f32 v{p+3}, v{s+2}, v{s+3}")
        a("s_mov_b64 exec, -1\ns_waitcnt lgkmcnt(0)")
        for u in U: a(f"v_mfma_f32_16x16x32_bf16 v[{LR(u)}:{LR(u)+3}], v[160:163], v[{PRr(u)}:{PRr(u)+3}], 0")
        for u in U: a(f"v_mfma_f32_16x16x32_bf16 v[{OR(u)}:{OR(u)+3}], v[{VR(u)}:{VR(u)+3}], v[{PRr(u)}:{PRr(u)+3}], 0")
        for u in U: a(f"v_rcp_f32 v{LR(u)}, v{LR(u)}")
        for u in U:
            o = OR(u)
            for r in range(4): a(f"v_mul_f32 v{o+r}, v{o+r}, v{LR(u)}")
            a(f"v_cvt_pk_bf16_f32 v{o}, v{o}, v{o+1}"); a(f"v_cvt_pk_bf16_f32 v{o+1}, v{o+2}, v{o+3}")
            a(f"ds_write_b64 v155, v[{o}:{o+1}] offset:{(2*rnd+u)*32}")
    if ENV("PM", "0") != "0": a("s_setprio 0")
    a(f"""
s_waitcnt lgkmcnt(0)
ds_read_b128 v[32:35], v166
ds_read_b128 v[36:39], v166 offset:1024
s_add_u32 s49, s74, {WS_OB}
s_add_u32 s50, s74, {WS_OB + 8192}
s_add_u32 s51, s74, {WS_OA + 8192}
s_add_u32 s48, s74, {WS_OA}
v_mov_b32 v40, -1
v_mov_b32 v41, -1
v_mov_b32 v42, -1
v_mov_b32 v43, -1
buffer_store_dwordx4 v[40:43], v164, {SRD_WS}, s49 offen sc1
buffer_store_dwordx4 v[40:43], v164, {SRD_WS}, s50 offen sc1
s_waitcnt lgkmcnt(0)
buffer_store_dwordx4 v[32:35], v164, {SRD_WS}, s48 offen sc1
buffer_store_dwordx4 v[36:39], v164, {SRD_WS}, s51 offen sc1
buffer_load_dword v24, v165, {SRD_WS}, s75 offen sc1
buffer_load_dword v25, v165, {SRD_WS}, s75 offen offset:256 sc1
v_mov_b32 v26, v166
s_waitcnt vmcnt(6)
""")
    def wq_dma(srdw, r0, nrows, dst_off):
        for i in range(nrows // 8):
            a(f"s_add_u32 m0, s78, {dst_off + i*1024}")
            a(f"s_add_u32 s95, s79, {(r0 + 8*i)*1024}")
            a(f"buffer_load_dwordx4 {vWQP}, {srdw}, s95 offen lds")
    stamp(46)
    a(f"s_setprio {ENV('SWP', '3')}")
    a("s_barrier   ; b2")
    kv_dma4(3)
    wq_dma(SRD_BWO, 0, 128, 0)
    a("s_waitcnt vmcnt(16)")
    a("s_barrier   ; b3")
    a(f"""
s_cmp_lg_u32 {S_A}, 0
s_cbranch_scc1 L_nopub
s_lshl_b32 s48, s88, 7
s_add_u32 s48, s48, {WS_FL + 4}
v_mov_b32 v12, s48
v_mov_b32 v13, 1
s_mov_b64 exec, 1
buffer_store_dword v13, v12, {SRD_WS}, 0 offen sc1
s_mov_b64 exec, -1
L_nopub:
""")
    kv_dma4(4)
    a("s_waitcnt vmcnt(4)")
    BW = lambda kk, nt: 100 + 8 * kk + 4 * nt
    OACC = lambda i: 36 + 16 * i
    for kk in range(8):
        for nt in range(2):
            for half in range(2):
                r = BW(kk, nt) + 2 * half
                a(f"ds_read_b64_tr_b16 v[{r}:{r+1}], v{2+nt} offset:{kk*2048 + half*1024}")
        if kk % 2 == 1: a("s_waitcnt lgkmcnt(0)")
    wq_dma(SRD_AWO, 0, 64, 0)
    a("s_waitcnt vmcnt(8)")
    a("s_barrier   ; b4")
    kv_dma4(5)
    a(f"""
s_mov_b32 s49, 0
s_mov_b32 s50, {WS_FL + 4}
L_ap_poll:
buffer_load_dword v12, v28, {SRD_WS}, s50 offen sc1
s_add_u32 s49, s49, 1
s_waitcnt vmcnt(0)
v_cmp_ne_u32 vcc, 1, v12
s_cmp_ge_u32 s49, {SPIN_MAX}
s_cbranch_scc1 L_ap_go
s_cbranch_vccz L_ap_go
s_sleep 4
s_branch L_ap_poll
L_ap_go:
""")
    def o_dma(base, blk, dst=8192, fl=None):
        for n in range(8):
            a(f"s_add_u32 m0, s78, {dst + n*1024}")
            a(f"s_add_u32 s95, s86, {base + blk*128 + (n>>2)*32768}")
            a(f"buffer_load_dwordx4 v{20+(n&3)}, {SRD_WS}, s95 offen {fl if fl is not None else 'sc1'} lds")
    TW = lambda j, nt: 8 + 4 * nt if False else None
    def apiece(first):
        for j in range(4):
            for nt in range(2):
                for half in range(2):
                    r = 8 + 4 * nt + 2 * half
                    a(f"ds_read_b64_tr_b16 v[{r}:{r+1}], v{2+nt} offset:{j*2048 + half*1024}")
            a(f"ds_read_b128 v[32:35], v{4+j} offset:8192")
            a(f"ds_read_b128 v[{TMPO}:{TMPO+3}], v{4+j} offset:{8192+4096}")
            a("s_waitcnt lgkmcnt(0)")
            for nt in range(2):
                for mi in range(2):
                    d = OACC(2 * nt + mi); c = "0" if (first and j == 0) else f"v[{d}:{d+15}]"
                    o = 32 if mi == 0 else TMPO
                    a(f"v_mfma_f32_32x32x16_bf16 v[{d}:{d+15}], v[{8+4*nt}:{11+4*nt}], v[{o}:{o+3}], {c}")
    o_dma(WS_OA, 0)
    stamp(47)
    a("s_barrier   ; b5")
    kv_dma4(6)
    a("s_waitcnt vmcnt(4)")
    if ENV("PM", "0") != "0": a("s_setprio 3")
    apiece(True)
    if ENV("PM", "0") != "0": a("s_setprio 0")
    wq_dma(SRD_AWO, 64, 64, 0)
    o_dma(WS_OA, 1)
    a("s_waitcnt vmcnt(16)")
    a("s_barrier   ; b6")
    kv_dma4(7)
    a("s_waitcnt vmcnt(0)")
    a("s_barrier   ; b7")
    if ENV("FILL", "1") == "1": a("s_barrier   ; B_end")
    apiece(False)
    a.fence(12)
    for i in range(4):
        for r in range(16): a(f"v_mul_f32 v{OACC(i)+r}, v{24 + (i & 1)}, v{OACC(i)+r}")
    if ENV("BEND", "1") == "1" and ENV("FILL", "1") != "1": a("s_barrier   ; B_end")
    stamp(42)
    o_dma(WS_OB, 0, 0, ENV('TL1', 'sc1')); o_dma(WS_OB, 1, 8192, ENV('TL1', 'sc1'))
    for blk in range(2):
        dst = blk * 8192
        a(f"""
s_mov_b32 s49, 0
s_waitcnt vmcnt({8 if blk == 0 else 0})
s_branch L_t{blk}f
L_t{blk}r:
s_sleep {ENV('TSLEEP', '4')}
""")
        o_dma(WS_OB, blk, dst)
        a(f"s_add_u32 s49, s49, 1\ns_waitcnt vmcnt(0)\nL_t{blk}f:")
        for half in range(4):
            a(f"ds_read_b128 v[8:11], v26 offset:{dst + half*2048}")
            a(f"ds_read_b128 v[12:15], v26 offset:{dst + half*2048 + 1024}")
            a("s_waitcnt lgkmcnt(0)")
            a("v_max_u32 v27, v8, v9" if half == 0 else "v_max3_u32 v27, v27, v8, v9")
            a("v_max3_u32 v27, v27, v10, v11\nv_max3_u32 v27, v27, v12, v13\nv_max3_u32 v27, v27, v14, v15")
        a(f"""
v_cmp_eq_u32 vcc, -1, v27
s_cmp_ge_u32 s49, {SPIN_MAX // 4}
s_cbranch_scc1 L_t{blk}g
s_cbranch_vccnz L_t{blk}r
L_t{blk}g:
""")
        regs = [(8, 12), (32, TMPO)]
        def ord_(j):
            r0, r1 = regs[j & 1]
            a(f"ds_read_b128 v[{r0}:{r0+3}], v{4+j} offset:{dst}")
            a(f"ds_read_b128 v[{r1}:{r1+3}], v{4+j} offset:{dst+4096}")
        ord_(0)
        for j in range(4):
            if j + 1 < 4: ord_(j + 1); a("s_waitcnt lgkmcnt(2)")
            else: a("s_waitcnt lgkmcnt(0)")
            for nt in range(2):
                for mi in range(2):
                    d = OACC(2 * nt + mi); o = regs[j & 1][mi]; w = BW(4 * blk + j, nt)
                    a(f"v_mfma_f32_32x32x16_bf16 v[{d}:{d+15}], v[{w}:{w+3}], v[{o}:{o+3}], v[{d}:{d+15}]")
    stamp(43)
    a.fence(12)
    a(f"""
v_add_u32 v8, s75x, {vJ}
""".replace("v_add_u32 v8, s75x, {vJ}".replace("{vJ}", vJ), "s_nop 0"))
    for i in range(4):
        a(f"""
s_cmp_eq_u32 {S_A}, {i}
s_cbranch_scc1 L_rw{i}
s_sub_u32 s48, {S_A}, {i+1}
s_and_b32 s48, s48, 3
s_add_u32 s48, s48, {3*i}
s_lshl_b32 s48, s48, 12
s_add_u32 s48, s48, {L_REDX}
v_add_u32 v8, s48, {vL16}
""")
        for q in range(4): a(f"ds_write_b128 v8, v[{OACC(i)+4*q}:{OACC(i)+4*q+3}] offset:{q*1024}")
        a(f"L_rw{i}:")
    a(f"""
s_mul_i32 s48, {S_A}, 12288
s_add_u32 s48, s48, {L_REDX}
v_add_u32 v8, s48, {vL16}
s_and_b32 s48, {S_A}, 1
s_lshl_b32 s48, s48, 5
s_add_u32 s48, s48, {S_P0}
v_add_u32 v9, s48, {vJ}
v_lshlrev_b32 v9, 10, v9
v_lshrrev_b32 v10, 5, v1
v_lshlrev_b32 v10, 4, v10
v_add_u32 v9, v9, v10
s_lshl_b32 s85, {S_HG}, 7
s_lshr_b32 s49, {S_A}, 1
s_lshl_b32 s49, s49, 6
s_add_u32 s85, s85, s49
s_waitcnt lgkmcnt(0)
s_barrier   ; B_7
""")
    stamp(44)
    for sl in range(3):
        for q in range(4): a(f"ds_read_b128 v[{100+16*sl+4*q}:{103+16*sl+4*q}], v8 offset:{sl*4096 + q*1024}")
    for i in range(4):
        a(f"s_cmp_lg_u32 {S_A}, {i}\ns_cbranch_scc1 L_ow{i}")
        for r in range(16): a(f"v_mov_b32 v{148+r}, v{OACC(i)+r}")
        a(f"L_ow{i}:")
    a("s_waitcnt lgkmcnt(0)")
    for r in range(16):
        a(f"v_add_f32 v{100+r}, v{100+r}, v{116+r}")
        a(f"v_add_f32 v{132+r}, v{132+r}, v{148+r}")
    for r in range(16): a(f"v_add_f32 v{100+r}, v{100+r}, v{132+r}")
    for i in range(8): a(f"v_cvt_pk_bf16_f32 v{48+i}, v{100+2*i}, v{100+2*i+1}")
    a("""
v_permlane32_swap_b32 v48, v50
v_permlane32_swap_b32 v49, v51
v_permlane32_swap_b32 v52, v54
v_permlane32_swap_b32 v53, v55
""")
    a(f"buffer_store_dwordx4 v[48:51], v9, {SRD_OUT}, s85 offen")
    a(f"buffer_store_dwordx4 v[52:55], v9, {SRD_OUT}, s85 offen offset:32")
    stamp(45)
    prof_dump("s")
TMPO = 164

def build():
    here = os.path.dirname(os.path.abspath(__file__))
    a.raw(open(os.path.join(here, "header.txt")).read())
    a.raw(f"; @launch grid=(256,1,1) block=(768,1,1) lds={LDS_BYTES}")
    a.raw('.amdgcn_target "amdgcn-amd-amdhsa--gfx950"\n.text')
    a.raw(f".globl {NAME}_kernel\n.p2align 8\n.type {NAME}_kernel,@function\n{NAME}_kernel:")
    prologue()
    aw_phase1()
    aw_loop()
    sw_phase1()
    sw_post()
    a("L_end:")
    a("s_endpgm")
    a.raw(f""".section .rodata,"a"
.p2align 6
.amdhsa_kernel {NAME}_kernel
  .amdhsa_next_free_vgpr 168
  .amdhsa_next_free_sgpr 102
  .amdhsa_accum_offset 168
  .amdhsa_group_segment_fixed_size 0
  .amdhsa_kernarg_size 96
  .amdhsa_user_sgpr_count 2
  .amdhsa_user_sgpr_kernarg_segment_ptr 1
  .amdhsa_system_sgpr_workgroup_id_x 1
.end_amdhsa_kernel""")
    open(sys.argv[1], "w").write(a.text())
    print("nops inserted:", a.nops, "lines:", len(a.lines))
build()
```
